```python
import torch

def _softmax(x, axis=-1):
    return torch.softmax(x, dim=axis)
def _gelu(x):
    return torch.nn.functional.gelu(x, approximate="tanh")
def _silu(x):
    return torch.nn.functional.silu(x)
def _sigmoid(x):
    return torch.sigmoid(x)
def _layernorm(x, axis=-1, eps=1e-5):
    m = x.mean(dim=axis, keepdim=True)
    v = x.var(dim=axis, keepdim=True, unbiased=False)
    return (x - m) / torch.sqrt(v + eps)
def _scatter_add(tgt, idx, src, axis=0):
    return tgt.clone().index_add_(axis, idx, src)
def _segment_sum(src, seg, n):
    out = torch.zeros((n,) + src.shape[1:], dtype=src.dtype)
    return out.index_add_(0, seg, src)
def _pad(x, pw):
    flat = tuple(v for pair in reversed(pw) for v in pair)
    return torch.nn.functional.pad(x, flat)

kernel_name = 'recurrent_scan__sliding_block_cached__glu_gated_geglu__prompt'

def setup_inputs():

    _w = (lambda a: (lambda t: t.to(torch.bfloat16) if t.is_floating_point() else t)(torch.as_tensor(a)))
    def _A_setup():
        B, Sq, D = 1, 2048, 448
        Hq, Hkv, Sk, Dh = 16, 8, 2048, 256
        assert Hq % Hkv == 0, (Hq, Hkv)
        return {
            "x": _w((lambda *s: torch.randn(*s, dtype=torch.bfloat16) * 0.2)(B, Sq, D)),
            "k_cache": _w((lambda *s: torch.randn(*s, dtype=torch.bfloat16) * 0.8)(B, Hkv, Sk, Dh)),
            "v_cache": _w((lambda *s: torch.randn(*s, dtype=torch.bfloat16) * 1.6)(B, Hkv, Sk, Dh)),
            "wq": _w((lambda *s: torch.randn(*s, dtype=torch.bfloat16) * 0.8)(D, Hq * Dh) * (D ** -0.5)),
            "wo": _w((lambda *s: torch.randn(*s, dtype=torch.bfloat16) * 1.6)(Hq * Dh, D) * ((Hq * Dh) ** -0.5)),
        }
    _A_in = _A_setup()

    def _B_setup():
        B, S, Dm, Df = 1, 2048, 448, 1792
        return {
            "x": _w((lambda *s: torch.randn(*s, dtype=torch.bfloat16) * 0.2)(B, S, Dm)),
            "w_gate": _w((lambda *s: torch.randn(*s, dtype=torch.bfloat16) * 0.8)(Dm, Df) * (Dm ** -0.5)),
            "w_up": _w((lambda *s: torch.randn(*s, dtype=torch.bfloat16) * 0.8)(Dm, Df) * (Dm ** -0.5)),
            "w_down": _w((lambda *s: torch.randn(*s, dtype=torch.bfloat16) * 0.8)(Df, Dm) * (Df ** -0.5)),
        }
    _B_in = _B_setup()

    return {
        "A_x": _A_in["x"],
        "A_k_cache": _A_in["k_cache"],
        "A_v_cache": _A_in["v_cache"],
        "A_wq": _A_in["wq"],
        "A_wo": _A_in["wo"],
        "B_x": _B_in["x"],
        "B_w_gate": _B_in["w_gate"],
        "B_w_up": _B_in["w_up"],
        "B_w_down": _B_in["w_down"],
    }

def reference(A_x, A_k_cache, A_v_cache, A_wq, A_wo, B_x, B_w_gate, B_w_up, B_w_down):
    def _A_ref(x, k_cache, v_cache, wq, wo):
        B, Sq, D = x.shape
        Hq, Dh = 16, 256
        Hkv, Sk = k_cache.shape[1], k_cache.shape[2]
        W = min(4096, max(256, Sk // 4))
        rep = Hq // Hkv
        q = (lambda x, *d: x.permute(*d))((x @ wq).reshape(B, Sq, Hq, Dh), 0, 2, 1, 3)
        k = (lambda x, n, axis: torch.repeat_interleave(x, n, dim=axis))(k_cache[:, :, Sk - W:, :], rep, axis=1)
        v = (lambda x, n, axis: torch.repeat_interleave(x, n, dim=axis))(v_cache[:, :, Sk - W:, :], rep, axis=1)
        scores = torch.einsum("bhqd,bhkd->bhqk", q, k) * (Dh ** -0.5)
        p = _softmax(scores, axis=-1)
        o = torch.einsum("bhqk,bhkd->bhqd", p, v)
        return (lambda x, *d: x.permute(*d))(o, 0, 2, 1, 3).reshape(B, Sq, Hq * Dh) @ wo

    def _B_ref(x, w_gate, w_up, w_down):
        g = torch.einsum("bsd,df->bsf", x, w_gate)
        u = torch.einsum("bsd,df->bsf", x, w_up)
        h = _gelu(g) * u
        return torch.einsum("bsf,fd->bsd", h, w_down)

    x = A_x
    xn = _layernorm(x, axis=-1)
    s = _A_ref(xn, A_k_cache, A_v_cache, A_wq, A_wo)
    g = _silu(_B_ref(xn, B_w_gate, B_w_up, B_w_down))
    return x + s * g
```

```python
import re

def regs(spec):
    spec = spec.strip()
    if spec.startswith('-'): spec = spec[1:]
    m = re.fullmatch(r'([vas])\[(\d+):(\d+)\]', spec)
    if m: return [(m.group(1), i) for i in range(int(m.group(2)), int(m.group(3)) + 1)]
    m = re.fullmatch(r'([vas])(\d+)', spec)
    if m: return [(m.group(1), int(m.group(2)))]
    if spec in ('vcc', 'm0', 'exec', 'scc'): return [(spec, 0)]
    return []

def rr(f, i, n=1):
    return f"{f}{i}" if n == 1 else f"{f}[{i}:{i+n-1}]"
def v(i, n=1): return rr('v', i, n)
def a(i, n=1): return rr('a', i, n)
def s(i, n=1): return rr('s', i, n)

TRANS = ('v_exp_f32', 'v_rcp_f32', 'v_rsq_f32', 'v_log_f32', 'v_sqrt_f32')

class I:
    __slots__ = ('text', 'kind', 'rd', 'wr', 'tag', 'srcc', 'extra_need', 'cost')
    def __init__(self, text, kind, rd=(), wr=(), tag=None, srcc=()):
        self.text = text; self.kind = kind
        self.rd = set(rd); self.wr = set(wr); self.tag = tag; self.srcc = set(srcc)
        self.extra_need = set()
    def __repr__(self): return self.text

def _rs(*specs):
    out = []
    for x in specs:
        if isinstance(x, str): out += regs(x)
    return out

def mfma(d, A, B, C, need=()):
    c = _rs(C) if isinstance(C, str) else []
    ins = I(f"v_mfma_f32_16x16x32_bf16 {d}, {A}, {B}, {C}", 'mfma', _rs(A, B) + c, _rs(d), srcc=c)
    ins.extra_need = set(_rs(*need))
    return ins

def valu(op, dst, *src, rmw=False, mods=''):
    ops = ', '.join([dst] + [str(x) for x in src])
    rd = _rs(*[x for x in src if isinstance(x, str)])
    wr = _rs(dst)
    if rmw: rd += wr
    kind = 'valu'
    base = op.replace('_e32', '').replace('_e64', '')
    if base in TRANS: kind = 'trans'
    if 'permlane' in op:
        kind = 'permlane'; rd = _rs(dst, *src); wr = _rs(dst, *src)
    if base.startswith('v_cmp'):
        kind = 'valu'
    if 'cndmask' in op and len(src) == 2: rd += [('vcc', 0)]
    if 'dpp' in op or 'quad_perm' in mods or 'row_' in mods: kind = 'dpp'
    if base == 'v_readfirstlane_b32': kind = 'readlane'
    if base.startswith('v_dot2'): kind = 'dot'
    return I(f"{op} {ops}{(' ' + mods) if mods else ''}", kind, rd, wr)

def salu(op, dst, *src):
    ops = ', '.join([str(x) for x in ((dst,) + src) if x is not None])
    rd = _rs(*[x for x in src if isinstance(x, str)])
    wr = _rs(dst) if isinstance(dst, str) else []
    if op.startswith('s_cmp'):
        rd += _rs(dst); wr = []
    return I(f"{op} {ops}", 'salu', rd, wr)

def ds_read(op, dst, addr, off=0, tag=None):
    assert 0 <= off < 65536, off
    return I(f"{op} {dst}, {addr} offset:{off}", 'ds_read', _rs(addr), _rs(dst), tag=tag)
def ds_write(op, addr, data, off=0, tag=None):
    assert 0 <= off < 65536, off
    return I(f"{op} {addr}, {data} offset:{off}", 'ds_write', _rs(addr, data), [], tag=tag)
def ds_write2_b64(addr, d0, d1, o0, o1, tag=None):
    assert 0 <= o0 < 256 and 0 <= o1 < 256
    return I(f"ds_write2_b64 {addr}, {d0}, {d1} offset0:{o0} offset1:{o1}", 'ds_write', _rs(addr, d0, d1), [], tag=tag)
def dma(voff, srd, soff, imm, tag=None):
    assert 0 <= imm < 4096
    return I(f"buffer_load_dwordx4 {voff}, {srd}, {soff} offen offset:{imm} lds", 'dma', _rs(voff, srd, soff) + [('m0', 0)], [], tag=tag)
def gdma(voff, sbase, imm, tag=None):
    assert 0 <= imm < 4096
    return I(f"global_load_lds_dwordx4 {voff}, {sbase} offset:{imm}", 'dma', _rs(voff, sbase) + [('m0', 0)], [], tag=tag)
def vload(op, dst, voff, srd, soff, imm=0, flags='', tag=None):
    assert 0 <= imm < 4096
    return I(f"{op} {dst}, {voff}, {srd}, {soff} offen offset:{imm}{(' ' + flags) if flags else ''}", 'vload', _rs(voff, srd, soff), _rs(dst), tag=tag)
def vstore(op, data, voff, srd, soff, imm=0, flags='', tag=None):
    assert 0 <= imm < 4096
    return I(f"{op} {data}, {voff}, {srd}, {soff} offen offset:{imm}{(' ' + flags) if flags else ''}", 'vstore', _rs(data, voff, srd, soff), [], tag=tag)
def raw(text, kind='salu', rd=(), wr=(), tag=None):
    return I(text, kind, _rs(*rd), _rs(*wr), tag=tag)
def label(name): return I(f"{name}:", 'label')
def barrier(tag=None): return I("s_barrier", 'barrier', tag=tag)
def wait_vm_tag(tags):
    return I("s_waitcnt vmcnt(?)", 'wait_vm', tag=tags)
def wait_lgkm_tag(tags):
    return I("s_waitcnt lgkmcnt(?)", 'wait_lgkm', tag=tags)
def wait_raw(text): return I(text, 'wait_raw')
def nop(n): return I(f"s_nop {n}", 'nop', tag=n)

VALU_KINDS = ('valu', 'trans', 'permlane', 'dpp', 'readlane', 'dot')

def finalize(prog, check_barrier_reads=True):
    out = []
    lg = []
    vm = []
    stats = dict(lgkm_waits=0, vm_waits=0)
    def emit_lg(n):
        n = min(n, 15)
        out.append(I(f"s_waitcnt lgkmcnt({n})", 'wait'))
        del lg[:max(0, len(lg) - n)]
        stats['lgkm_waits'] += 1
    def emit_vm(n):
        n = min(n, 63)
        out.append(I(f"s_waitcnt vmcnt({n})", 'wait'))
        del vm[:max(0, len(vm) - n)]
        stats['vm_waits'] += 1
    for ins in prog:
        if ins.kind == 'wait_vm':
            tags = ins.tag if isinstance(ins.tag, (set, list, tuple)) else [ins.tag]
            idx = [k for k, o in enumerate(vm) if o.tag in tags]
            if idx: emit_vm(len(vm) - 1 - idx[-1])
            continue
        if ins.kind == 'wait_lgkm':
            tags = ins.tag if isinstance(ins.tag, (set, list, tuple)) else [ins.tag]
            idx = [k for k, o in enumerate(lg) if o.tag in tags]
            if idx: emit_lg(len(lg) - 1 - idx[-1])
            continue
        if ins.kind == 'wait_raw':
            m = re.search(r'lgkmcnt\((\d+)\)', ins.text)
            if m: del lg[:max(0, len(lg) - int(m.group(1)))]
            m = re.search(r'vmcnt\((\d+)\)', ins.text)
            if m: del vm[:max(0, len(vm) - int(m.group(1)))]
            out.append(ins); continue
        touched = ins.rd | ins.wr | ins.extra_need
        idx = [k for k, o in enumerate(lg) if o.kind == 'ds_read' and (o.wr & touched)]
        if idx: emit_lg(len(lg) - 1 - idx[-1])
        idx = [k for k, o in enumerate(vm) if o.kind == 'vload' and o.tag != 'warm' and (o.wr & touched)]
        if idx: emit_vm(len(vm) - 1 - idx[-1])
        out.append(ins)
        if ins.kind in ('ds_read', 'ds_write'): lg.append(ins)
        if ins.kind in ('dma', 'vload', 'vstore'): vm.append(ins)
    return hazards(out), stats

def hazards(prog):
    out = []
    def states_since(pred, maxlook):
        n = 0
        for o in reversed(out):
            if o.kind == 'label': continue
            if pred(o): return n
            n += (o.tag + 1) if o.kind == 'nop' else 1
            if n >= maxlook: return None
        return None
    nnops = 0
    for ins in prog:
        need = 0
        def req(pred, ws):
            nonlocal need
            d = states_since(pred, ws)
            if d is not None and d < ws: need = max(need, ws - d)
        k = ins.kind
        rw = ins.rd | ins.wr
        vr = {r for r in ins.rd if r[0] in 'va'}
        vw = {r for r in ins.wr if r[0] in 'va'}
        if k == 'mfma':
            req(lambda o: o.kind in VALU_KINDS and (o.wr & vr), 2)
            ab = vr - ins.srcc
            req(lambda o: o.kind == 'mfma' and (o.wr & ab), 8)
            req(lambda o: o.kind == 'mfma' and (o.wr & ins.srcc) and o.wr != ins.srcc, 6)
        if k in VALU_KINDS:
            req(lambda o: o.kind == 'mfma' and (o.wr & (vr | vw)), 8)
            req(lambda o: o.kind == 'mfma' and (o.srcc & vw), 3)
            req(lambda o: o.kind == 'trans' and (o.wr & vr) and k != 'trans', 1)
            req(lambda o: o.kind == 'vstore' and (o.rd & vw), 2)
            if k != 'dot': req(lambda o: o.kind == 'dot' and (o.wr & (vr | vw)), 3)
            sr = {r for r in ins.rd if r[0] in ('s', 'vcc')}
            req(lambda o: o.kind in VALU_KINDS and (o.wr & sr), 2)
        if k == 'permlane' or k == 'dpp':
            req(lambda o: o.kind in VALU_KINDS and (o.wr & vr), 2)
        if k == 'readlane':
            req(lambda o: o.kind in VALU_KINDS and (o.wr & vr), 1)
        if k in ('ds_read', 'ds_write', 'dma', 'vload', 'vstore'):
            req(lambda o: o.kind == 'mfma' and (o.wr & (vr | vw)), 8)
            sr = {r for r in ins.rd if r[0] == 's'}
            req(lambda o: o.kind in VALU_KINDS and (o.wr & sr), 5)
        if k == 'dma':
            req(lambda o: o.kind == 'salu' and (('m0', 0) in o.wr), 1)
        if k in ('salu', 'branch'):
            sr = {r for r in ins.rd if r[0] in ('s', 'vcc')}
            req(lambda o: o.kind in VALU_KINDS and (o.wr & sr), 4)
        if need:
            nnops += 1
            while need > 0:
                n = min(need, 16)
                out.append(nop(n - 1)); need -= n
        out.append(ins)
    return out

def text(prog):
    return "\n".join(i.text if i.kind == 'label' else "    " + i.text for i in prog)
```

```python
import sys, math
from asmlib import *

KNAME = "recurrent_scan__sliding_block_cached__glu_gated_geglu__prompt"
MAIN = "fused_main_kernel"
RED = "fused_reduce_kernel"

class Cfg:
    store_flags = "sc1"
    debug = None
    nb = 6
CFG = Cfg()

SLOT = 16384; NSLOT = 6; XA = 98304; LDS_BYTES = 163840
XROW = 912
AHEAD = 4

S_X, S_F1, S_WQ, S_WD, S_K, S_V, S_WO, S_WS = 4, 8, 12, 16, 20, 24, 28, 32
S_KVH, S_RB, S_W, S_CH, S_RH, S_PAR, S_WLDS, S_SOFF = 36, 37, 38, 39, 40, 41, 42, 43
S_F1B = 44
S_QB = 48
S_F2B = 49
S_F2C3, S_F2C10, S_F2C11, S_F2C12 = 52, 53, 54, 55
S_KB, S_VB = 56, 57
S_OOWN = 58
S_OPAR = 61
S_KA = 64
S_O3 = 88
S_PB = 89
S_CB = 90
S_HI = 94
S_T0, S_T1, S_T2 = 98, 99, 100
S_THR = 101
S_ONES = 3
S_RET = 64
S_GB = 66

V_S = 128; V_P = 160; V_NEGM = 176; V_T = 184
V_L0, V_L1, V_TS0, V_TS1, V_TM, V_C1 = 192, 193, 194, 195, 196, 197
V_TAC = 200; V_TS = 208; V_TH = 212; V_KA = 216; V_TA = 224
V_DVA = 232; V_DVB = 236
V_L16, V_HW, V_HR, V_R8, V_SC16, V_XW, V_XR = 240, 241, 242, 243, 244, 245, 246
V_RL0, V_RL1 = 247, 248
V_LANE, V_N16, V_GQ = 249, 250, 251
V_U0, V_U1, V_U2, V_U3 = 252, 253, 254, 255
HIOFF = 49152
SETS = [0, 32, 96]
def accset(gstep): return SETS[gstep % 3]
A_XB = 0; A_H = 112; A_FB = 168; A_Q = 192; A_G = 0; A_PART = 192

C_GELU0 = -2.0 * math.sqrt(2.0 / math.pi) * math.log2(math.e)
C_GELU1 = C_GELU0 * 0.044715
C_QS = math.log2(math.e) / 16.0
import struct
def f2u(x): return struct.unpack("<I", struct.pack("<f", x))[0]
def lit(x): return f"0x{f2u(x):08x}"

class Group:
    def __init__(self, chunk, frs, mk):
        self.chunk = chunk; self.frs = frs; self.mk = mk
class Chunk:
    def __init__(self, name, srd, dv, soff, imm):
        self.name = name; self.srd = srd; self.dv = dv; self.soff = soff; self.imm = imm

def tr_reads(addr_lo, off):
    lo, hi = addr_lo
    def f(buf, slot, c):
        ar = lo if slot < 3 else hi
        o = (slot % 3) * SLOT + off
        return [ds_read("ds_read_b64_tr_b16", a(buf, 2), v(ar), o, tag=('rd', c)),
                ds_read("ds_read_b64_tr_b16", a(buf + 2, 2), v(ar), o + 2048, tag=('rd', c))]
    return f
def b128_read(addr_lo, off):
    lo, hi = addr_lo
    def f(buf, slot, c):
        ar = lo if slot < 3 else hi
        o = (slot % 3) * SLOT + off
        return [ds_read("ds_read_b128", a(buf, 4), v(ar), o, tag=('rd', c))]
    return f

def build_main():
    chunks = []; groups = []
    marks = {}
    def mark(n): marks[n] = len(groups)
    def newchunk(*args):
        chunks.append(Chunk(*args)); return len(chunks) - 1
    TAC = lambda tt: (V_TAC + tt, V_TAC + 4 + tt)
    TS = lambda ti: (V_TS + ti, V_TS + 2 + ti)
    TH = (V_TH, V_TH + 1)
    KA = lambda i: (V_KA + i, V_KA + 4 + i)
    TA = lambda tt: (V_TA + tt, V_TA + 4 + tt)
    XB = lambda ks, ct: a(A_XB + (ks * 2 + ct) * 4, 4)

    def pair_mk(accf, Bf, first):
        def mk(fr):
            out = []
            for ct in range(2):
                for i, f in enumerate(fr):
                    d = v(accf(ct), 4)
                    C = '0' if (first and i == 0) else d
                    out.append(mfma(d, a(f, 4), Bf(i, ct), C, need=[a(x, 4) for x in fr] if (ct == 0 and i == 0) else ()))
            return out
        return mk

    for st in range(4):
        mark(f"F1_{st}")
        base = accset(st)
        for j in range(7):
            c = newchunk(f"F1 s{st} j{j}", S_F1, V_DVA, S_F1B + st, j * 64 * 3584)
            tis = range(2) if st < 3 else range(1)
            for ti in tis:
                for mat in range(2):
                    ad = TS(ti) if st < 3 else TH
                    frs = [tr_reads(ad, (ksl * 2 + mat) * 4096) for ksl in range(2)]
                    accf = (lambda ct, mat=mat, ti=ti, base=base: base + ((mat * 2 + ti) * 2 + ct) * 4)
                    Bf = (lambda i, ct, j=j: XB(2 * j + i, ct))
                    groups.append(Group(c, frs, pair_mk(accf, Bf, j == 0)))
    for st in range(4):
        mark(f"Q_{st}")
        base = accset(4 + st)
        for j in range(7):
            c = newchunk(f"Q s{st} j{j}", S_WQ, V_DVB, S_QB, j * 64 * 8192 + st * 128)
            for tt in range(4):
                frs = [tr_reads(TAC(tt), ksl * 4096) for ksl in range(2)]
                accf = (lambda ct, tt=tt, base=base: base + (tt * 2 + ct) * 4)
                Bf = (lambda i, ct, j=j: XB(2 * j + i, ct))
                groups.append(Group(c, frs, pair_mk(accf, Bf, j == 0)))
    HB = lambda ks, ct: a(A_H + (ks * 2 + ct) * 4, 4)
    KR = 32 * 896
    def f2_pair(c, st, ks0, first):
        base = accset(8 + st)
        for tt in range(4):
            frs = [tr_reads(TAC(tt), ksl * 4096) for ksl in range(2)]
            accf = (lambda ct, tt=tt, base=base: base + (tt * 2 + ct) * 4)
            groups.append(Group(c, frs, pair_mk(accf, (lambda i, ct, ks0=ks0: HB(ks0 + i, ct)), first)))
    def f2_single(c, st, ks, item, first):
        base = accset(8 + st)
        for tt in range(4):
            frs = [tr_reads(TAC(tt), item * 4096)]
            accf = (lambda ct, tt=tt, base=base: base + (tt * 2 + ct) * 4)
            groups.append(Group(c, frs, pair_mk(accf, (lambda i, ct, ks=ks: HB(ks, ct)), first)))
    def f2_shared(c, kss, items, first):
        for ti in range(2):
            frs = [tr_reads(TS(ti), it * 4096) for it in items]
            accf = (lambda ct, ti=ti: accset(11) + (ti * 2 + ct) * 4)
            groups.append(Group(c, frs, pair_mk(accf, (lambda i, ct, kss=kss: HB(kss[i], ct)), first)))
    mark("F2_0")
    for i in range(3):
        c = newchunk(f"F2 s0 p{i}", S_WD, V_DVA, S_F2B + 0, 2 * i * KR); f2_pair(c, 0, 2 * i, i == 0)
    c = newchunk("F2 c3", S_WD, V_DVA, S_F2C3, 6 * KR)
    f2_single(c, 0, 6, 0, False)
    mark("F2_1")
    f2_single(c, 1, 6, 1, True)
    for i in range(3):
        c = newchunk(f"F2 s1 p{i}", S_WD, V_DVA, S_F2B + 1, 2 * i * KR); f2_pair(c, 1, 2 * i, False)
    mark("F2_2")
    for i in range(3):
        c = newchunk(f"F2 s2 p{i}", S_WD, V_DVA, S_F2B + 2, 2 * i * KR); f2_pair(c, 2, 2 * i, i == 0)
    c = newchunk("F2 c10", S_WD, V_DVA, S_F2C10, 0)
    f2_single(c, 2, 6, 0, False)
    mark("F2_3")
    f2_shared(c, [0, 1], [1, 3], True)
    c = newchunk("F2 c11", S_WD, V_DVA, S_F2C11, 2 * KR)
    f2_shared(c, [2, 3], [0, 1], False)
    f2_shared(c, [4, 5], [2, 3], False)
    c = newchunk("F2 c12", S_WD, V_DVA, S_F2C12, 0)
    f2_shared(c, [6], [0], False)
    QB = lambda ks, ct: a(A_Q + (ks * 2 + ct) * 4, 4)
    Sreg = lambda t, T, ct: V_S + 16 * (t & 1) + (ct * 2 + T) * 4
    Preg = lambda t, ct: V_P + 8 * (t & 1) + ct * 4
    Oacc = lambda dt, ct: ((dt >> 1) * 2 + ct) * 8 + (dt & 1) * 4
    def S_phase(t):
        mark(f"S_{t}")
        c = newchunk(f"K{t}", S_K, V_DVB, S_KB, t * 16384)
        for T in range(2):
            for kp in range(4):
                frs = [b128_read(KA((2 * kp + i) & 3), T * 8192 + ((2 * kp + i) >> 2) * 256) for i in range(2)]
                def mk(fr, T=T, kp=kp, t=t):
                    out = []
                    for ct in range(2):
                        for i, f in enumerate(fr):
                            d = v(Sreg(t, T, ct), 4)
                            if kp == 0 and i == 0:
                                C = '0' if t < 2 else v(V_NEGM + 4 * ct, 4)
                            else: C = d
                            out.append(mfma(d, a(f, 4), QB(2 * kp + i, ct), C, need=[a(x, 4) for x in fr] if (ct == 0 and i == 0) else ()))
                    return out
                groups.append(Group(c, frs, mk))
    def PV_phase(t):
        mark(f"PV_{t}")
        c = newchunk(f"V{t}", S_V, V_DVA, S_VB, t * 16384)
        for dp in range(8):
            frs = [tr_reads(TA((2 * dp + i) & 3), ((2 * dp + i) >> 2) * 4096) for i in range(2)]
            def mk(fr, dp=dp, t=t):
                out = []
                for i, f in enumerate(fr):
                    for ct in range(2):
                        d = v(Oacc(2 * dp + i, ct), 4)
                        C = '0' if t == 0 else d
                        out.append(mfma(d, a(f, 4), v(Preg(t, ct), 4), C, need=[a(x, 4) for x in fr] if (ct == 0 and i == 0) else ()))
                return out
            groups.append(Group(c, frs, mk))
    S_phase(0); S_phase(1)
    for t in range(1, 15):
        S_phase(t + 1); PV_phase(t - 1)
    PV_phase(14); PV_phase(15)
    OWN = lambda ks, ct: v((ks * 2 + ct) * 8, 4)
    PART = lambda ks, ct: a(A_PART + (ks * 2 + ct) * 4, 4)
    OB = lambda kk, ct: OWN(kk, ct) if kk < 8 else PART(kk - 8, ct)
    OR = 64 * 896
    for st in range(3):
        mark(f"O_{st}")
        base = 128 + 32 * (st & 1)
        for j in range(8):
            if j < 4: c = newchunk(f"O s{st} j{j}", S_WO, V_DVB, S_OOWN + st, j * OR)
            else: c = newchunk(f"O s{st} j{j}", S_WO, V_DVB, S_OPAR + st, (j - 4) * OR)
            if st == 0 and j == 4: mark("O_part")
            for tt in range(4):
                frs = [tr_reads(TAC(tt), ksl * 4096) for ksl in range(2)]
                accf = (lambda ct, tt=tt, base=base: base + (tt * 2 + ct) * 4)
                groups.append(Group(c, frs, pair_mk(accf, (lambda i, ct, j=j: OB(2 * j + i, ct)), j == 0)))
    mark("O_3")
    for j in range(4):
        c = newchunk(f"O s3 j{j}", S_WO, V_DVB, S_O3, j * OR)
        for who in range(2):
            for ti in range(2):
                ad = (V_TS + who * 4 + ti, V_TS + who * 4 + 2 + ti)
                frs = [tr_reads(ad, ksl * 4096) for ksl in range(2)]
                accf = (lambda ct, ti=ti: 160 + (ti * 2 + ct) * 4)
                groups.append(Group(c, frs, pair_mk(accf, (lambda i, ct, j=j, who=who: OB(8 * who + 2 * j + i, ct)), j == 0 and who == 0)))
    mark("END")
    return chunks, groups, marks

def prologue():
    P = []
    E = P.append
    E(salu('s_cmp_ge_u32', s(2), 256)); E(raw("s_cbranch_scc1 L_main_end", 'branch'))
    E(raw(f"s_load_dwordx16 s[{S_KA}:{S_KA+15}], s[0:1], 0"))
    E(raw(f"s_load_dwordx8 s[{S_KA+16}:{S_KA+23}], s[0:1], 64"))
    E(valu('v_and_b32', v(V_LANE), 63, v(0)))
    E(valu('v_lshrrev_b32', v(V_U0), 6, v(0)))
    E(valu('v_and_b32', v(V_N16), 15, v(V_LANE)))
    E(valu('v_readfirstlane_b32', s(S_W), v(V_U0)))
    E(valu('v_lshrrev_b32', v(V_GQ), 4, v(V_LANE)))
    E(valu('v_lshrrev_b32', v(V_R8), 3, v(V_LANE)))
    E(valu('v_lshlrev_b32', v(V_L16), 4, v(V_LANE)))
    E(salu('s_and_b32', s(S_KVH), s(2), 7)); E(salu('s_lshr_b32', s(S_RB), s(2), 3))
    E(salu('s_and_b32', s(S_PAR), s(S_KVH), 1))
    E(salu('s_and_b32', s(S_RH), s(S_W), 1)); E(salu('s_lshr_b32', s(S_CH), s(S_W), 1))
    E(salu('s_lshl_b32', s(S_WLDS), s(S_W), 12))
    E(valu('v_and_b32', v(V_U1), 7, v(V_LANE)))
    E(valu('v_lshlrev_b32', v(V_U2), 4, v(V_U1)))
    E(salu('s_mov_b32', s(S_T0), 896))
    E(valu('v_mad_u32_u24', v(V_U0), v(V_R8), s(S_T0), v(V_U2)))
    E(raw("s_waitcnt lgkmcnt(0)", 'wait_raw'))
    kx, kk, kv, kwq, kwo, kwg, kwu, kwd, kws = [S_KA + o for o in (0, 2, 4, 6, 8, 12, 14, 16, 22)]
    def srd(dst, ptr, nbytes):
        E(salu('s_mov_b32', s(dst), s(ptr))); E(salu('s_mov_b32', s(dst + 1), s(ptr + 1)))
        E(salu('s_mov_b32', s(dst + 2), nbytes)); E(salu('s_mov_b32', s(dst + 3), '0x00020000'))
    srd(S_X, kx, 2048 * 896)
    E(salu('s_mul_i32', s(S_T0), s(S_RB), 57344)); E(salu('s_mul_i32', s(S_T1), s(S_W), 14336))
    E(salu('s_add_u32', s(S_T0), s(S_T0), s(S_T1))); E(salu('s_add_u32', s(S_T1), s(S_T0), 7168))
    for p in range(2):
        for i in range(7):
            E(vload('buffer_load_dwordx4', v((p * 7 + i) * 4, 4), v(V_U0), s(S_X, 4), s(S_T0 + p), i * 128, tag='x'))
    E(salu('s_cmp_eq_u32', s(S_RH), 0))
    E(salu('s_cselect_b32', s(S_F1), s(kwg), s(kwu))); E(salu('s_cselect_b32', s(S_F1 + 1), s(kwg + 1), s(kwu + 1)))
    E(salu('s_mov_b32', s(S_F1 + 2), 448 * 3584)); E(salu('s_mov_b32', s(S_F1 + 3), '0x00020000'))
    srd(S_WQ, kwq, 448 * 8192); srd(S_WD, kwd, 1792 * 896); srd(S_WO, kwo, 4096 * 896)
    srd(S_WS, kws, 2 * 256 * 57344)
    for (dst, ptr) in ((S_K, kk), (S_V, kv)):
        E(salu('s_lshl_b32', s(S_T2), s(S_KVH), 20)); E(salu('s_add_u32', s(S_T2), s(S_T2), 1536 * 512))
        E(salu('s_add_u32', s(dst), s(ptr), s(S_T2))); E(salu('s_addc_u32', s(dst + 1), s(ptr + 1), 0))
        E(salu('s_mov_b32', s(dst + 2), 512 * 512)); E(salu('s_mov_b32', s(dst + 3), '0x00020000'))
    E(valu('v_lshrrev_b32', v(V_U2), 1, v(V_R8))); E(valu('v_and_b32', v(V_U2), 3, v(V_U2)))
    E(valu('v_lshlrev_b32', v(V_U2), 1, v(V_U2))); E(valu('v_xor_b32', v(V_U2), v(V_U2), v(V_U1)))
    E(valu('v_lshlrev_b32', v(V_SC16), 4, v(V_U2)))
    P += dv_setup(V_DVA, 3584)
    E(salu('s_mul_i32', s(S_T0), s(S_KVH), 7)); E(salu('s_lshr_b32', s(S_T0), s(S_T0), 1)); E(salu('s_lshl_b32', s(S_T0), s(S_T0), 7))
    E(salu('s_mul_i32', s(S_T1), s(S_CH), 32 * 3584)); E(salu('s_add_u32', s(S_T0), s(S_T0), s(S_T1)))
    for st in range(4):
        P += sel(S_T1, S_PAR, st * 128, (3 - st) * 128)
        E(salu('s_add_u32', s(S_F1B + st), s(S_T0), s(S_T1)))
    return P

def sel(dst, cond, v0, v1):
    d = (v1 - v0) & 0xffffffff
    return [salu('s_mul_i32', s(dst), s(cond), f"0x{d:x}"), salu('s_add_u32', s(dst), s(dst), v0)]

def dv_setup(dst, stride):
    out = [salu('s_mov_b32', s(S_T2), stride),
           valu('v_mad_u32_u24', v(dst), v(V_R8), s(S_T2), v(V_SC16))]
    for j in range(1, 4):
        out.append(valu('v_add_u32', v(dst + j), j * (8 * stride - 1024), v(dst)))
    return out
def dv_setup_K(dst):
    out = [valu('v_lshrrev_b32', v(V_U0), 5, v(V_LANE)), valu('v_and_b32', v(V_U1), 31, v(V_LANE)),
           salu('s_lshl_b32', s(S_T2), s(S_RH), 3),
           valu('v_xor_b32', v(V_U1), v(V_U1), v(V_U0)),
           valu('v_xor_b32', v(V_U1), s(S_T2), v(V_U1)),
           valu('v_lshlrev_b32', v(V_U0), 9, v(V_U0))]
    for j in range(4):
        out.append(valu('v_xor_b32', v(V_U2), 2 * j, v(V_U1)))
        out.append(valu('v_lshl_add_u32', v(dst + j), v(V_U2), 4, v(V_U0)))
    return out

def chunk_dma(c, ch):
    slot = c % NSLOT
    out = [salu('s_add_u32', 'm0', s(S_WLDS), slot * SLOT),
           salu('s_add_u32', s(S_SOFF), s(ch.soff), ch.imm)]
    for j in range(4):
        imm = j * 1024
        out.append(dma(v(ch.dv + j), s(ch.srd, 4), s(S_SOFF), imm, tag=('dma', c)))
    return out

def prologue2():
    P = []; E = P.append
    E(salu('s_lshl_b32', s(S_T0), s(S_KVH), 1)); E(salu('s_add_u32', s(S_T0), s(S_T0), s(S_CH))); E(salu('s_lshl_b32', s(S_T0), s(S_T0), 9))
    E(salu('s_lshl_b32', s(S_T1), s(S_RH), 18)); E(salu('s_add_u32', s(S_QB), s(S_T0), s(S_T1)))
    KR = 32 * 896
    E(salu('s_mul_i32', s(S_T0), s(S_KVH), 224 * 896))
    E(salu('s_mul_i32', s(S_T1), s(S_RH), KR))
    for st in range(3):
        P += sel(S_T2, S_CH, st * 128, (6 - st) * 128)
        E(salu('s_add_u32', s(S_F2B + st), s(S_T0), s(S_T2))); E(salu('s_add_u32', s(S_F2B + st), s(S_F2B + st), s(S_T1)))
    P += sel(S_T2, S_CH, 0, 6 * 128); P += sel(S_F2C3, S_CH, 128, 5 * 128)
    E(salu('s_cmp_eq_u32', s(S_RH), 0)); E(salu('s_cselect_b32', s(S_T2), s(S_T2), s(S_F2C3)))
    E(salu('s_add_u32', s(S_F2C3), s(S_T0), s(S_T2)))
    P += sel(S_T2, S_CH, 6 * KR + 2 * 128, 6 * KR + 4 * 128); P += sel(S_F2C10, S_CH, 384, KR + 384)
    E(salu('s_cmp_eq_u32', s(S_RH), 0)); E(salu('s_cselect_b32', s(S_T2), s(S_T2), s(S_F2C10)))
    E(salu('s_add_u32', s(S_F2C10), s(S_T0), s(S_T2)))
    E(salu('s_mul_i32', s(S_T2), s(S_W), KR)); E(salu('s_add_u32', s(S_F2C11), s(S_T0), s(S_T2))); E(salu('s_add_u32', s(S_F2C11), s(S_F2C11), 384))
    E(salu('s_add_u32', s(S_F2C12), s(S_T0), 6 * KR + 384))
    E(salu('s_lshl_b32', s(S_KB), s(S_W), 12)); E(salu('s_lshl_b32', s(S_VB), s(S_W), 7))
    E(salu('s_lshl_b32', s(S_T0), s(S_KVH), 9)); E(salu('s_lshl_b32', s(S_T1), s(S_RH), 5)); E(salu('s_add_u32', s(S_T0), s(S_T0), s(S_T1)))
    E(salu('s_lshl_b32', s(S_T1), s(S_CH), 8)); E(salu('s_add_u32', s(S_T1), s(S_T0), s(S_T1))); E(salu('s_mul_i32', s(S_T1), s(S_T1), 896))
    E(salu('s_xor_b32', s(S_T2), s(S_CH), 1)); E(salu('s_lshl_b32', s(S_T2), s(S_T2), 8)); E(salu('s_add_u32', s(S_T0), s(S_T0), s(S_T2))); E(salu('s_mul_i32', s(S_T0), s(S_T0), 896))
    for st in range(3):
        P += sel(S_T2, S_CH, st * 128, (6 - st) * 128)
        E(salu('s_add_u32', s(S_OOWN + st), s(S_T1), s(S_T2))); E(salu('s_add_u32', s(S_OPAR + st), s(S_T0), s(S_T2)))
    E(salu('s_add_u32', s(S_O3), s(S_T1), 384))
    E(salu('s_mul_i32', s(S_T0), s(2), 57344))
    E(salu('s_mul_i32', s(S_T1), s(S_RH), 28672)); E(salu('s_add_u32', s(S_PB), s(S_T0), s(S_T1)))
    E(salu('s_add_u32', s(S_GB), s(S_PB), 256 * 57344))
    for st in range(3):
        P += sel(S_CB + st, S_CH, 2 * st * 2048, (12 - 2 * st) * 2048)
    P += sel(S_CB + 3, S_CH, 6 * 2048, 7 * 2048)
    for st in range(3):
        P += sel(S_T0, S_PAR, 2 * st, 2 * (3 - st) - 1)
        E(salu('s_add_u32', s(S_T0), s(S_T0), s(S_CH))); E(salu('s_lshl_b32', s(S_HI + st), s(S_T0), 12))
    P += sel(S_T0, S_PAR, 6 * 4096, 0)
    E(salu('s_lshl_b32', s(S_T1), s(S_CH), 3)); E(salu('s_add_u32', s(S_HI + 3), s(S_T0), s(S_T1)))
    E(salu('s_mov_b32', s(S_THR), lit(65536.0)))
    E(salu('s_mov_b32', s(S_ONES), '0x3f803f80'))
    E(valu('v_bfe_u32', v(V_U0), v(V_LANE), 2, 2))
    E(valu('v_lshl_add_u32', v(V_U1), v(V_GQ), 2, v(V_U0)))
    E(valu('v_lshrrev_b32', v(V_U2), 1, v(V_U1))); E(valu('v_and_b32', v(V_U2), 3, v(V_U2)))
    E(valu('v_and_b32', v(V_U3), 3, v(V_LANE))); E(valu('v_lshlrev_b32', v(V_U3), 3, v(V_U3)))
    E(valu('v_lshl_add_u32', v(V_U3), v(V_U1), 7, v(V_U3)))
    for tt in range(4):
        E(valu('v_xor_b32', v(V_U0), tt, v(V_U2)))
        E(valu('v_lshl_add_u32', v(V_TA + tt), v(V_U0), 5, v(V_U3)))
        E(valu('v_add_u32', v(V_TA + 4 + tt), HIOFF, v(V_TA + tt)))
    E(salu('s_lshl_b32', s(S_T0), s(S_CH), 13))
    for tt in range(8):
        E(valu('v_add_u32', v(V_TAC + tt), s(S_T0), v(V_TA + tt)))
    E(salu('s_lshl_b32', s(S_T0), s(S_CH), 1))
    for ti in range(2):
        E(salu('s_add_u32', s(S_T1), s(S_T0), ti))
        E(valu('v_xor_b32', v(V_U0), s(S_T1), v(V_U2)))
        E(valu('v_lshl_add_u32', v(V_TS + ti), v(V_U0), 5, v(V_U3)))
        E(valu('v_add_u32', v(V_TS + 2 + ti), HIOFF, v(V_TS + ti)))
    E(salu('s_lshl_b32', s(S_T0), s(S_PAR), 1)); E(salu('s_add_u32', s(S_T1), s(S_T0), s(S_CH)))
    E(valu('v_xor_b32', v(V_U0), s(S_T1), v(V_U2)))
    E(valu('v_lshl_add_u32', v(V_TH), v(V_U0), 5, v(V_U3)))
    E(valu('v_add_u32', v(V_TH + 1), HIOFF, v(V_TH)))
    for i in range(4):
        E(valu('v_add_u32', v(V_U0), 4 * i, v(V_GQ))); E(valu('v_xor_b32', v(V_U0), v(V_U0), v(V_N16)))
        E(valu('v_lshlrev_b32', v(V_U0), 4, v(V_U0)))
        E(valu('v_lshl_add_u32', v(V_KA + i), v(V_N16), 9, v(V_U0)))
        E(valu('v_add_u32', v(V_KA + 4 + i), HIOFF, v(V_KA + i)))
    E(salu('s_lshl_b32', s(S_T0), s(S_RH), 11)); E(salu('s_add_u32', s(S_T0), s(S_T0), XA))
    E(valu('v_add_u32', v(V_HR), s(S_T0), v(V_L16)))
    E(salu('s_lshl_b32', s(S_T0), s(S_W), 14)); E(salu('s_add_u32', s(S_T0), s(S_T0), XA))
    E(valu('v_add_u32', v(V_XW), s(S_T0), v(V_L16)))
    E(salu('s_xor_b32', s(S_T0), s(S_W), 2)); E(salu('s_lshl_b32', s(S_T0), s(S_T0), 14)); E(salu('s_add_u32', s(S_T0), s(S_T0), XA))
    E(valu('v_add_u32', v(V_XR), s(S_T0), v(V_L16)))
    E(valu('v_mov_b32', v(V_C1), lit(C_GELU1)))
    return P

def layernorm():
    P = []; E = P.append
    ACC = 64
    for p in range(2):
        b = ACC + 4 * p
        for k in range(4): E(valu('v_mov_b32', v(b + k), 0))
        for n in range(28):
            d = p * 28 + n
            E(valu('v_dot2_f32_bf16', v(b + (n & 1)), v(d), s(S_ONES), v(b + (n & 1))))
            E(valu('v_dot2_f32_bf16', v(b + 2 + (n & 1)), v(d), v(d), v(b + 2 + (n & 1))))
        E(valu('v_add_f32', v(b), v(b), v(b + 1))); E(valu('v_add_f32', v(b + 2), v(b + 2), v(b + 3)))
    for mods in ("quad_perm:[1,0,3,2] row_mask:0xf bank_mask:0xf", "quad_perm:[2,3,0,1] row_mask:0xf bank_mask:0xf", "row_half_mirror row_mask:0xf bank_mask:0xf"):
        for p in range(2):
            for k in (0, 2):
                r = ACC + 4 * p + k
                E(valu('v_add_f32_dpp', v(r), v(r), v(r), mods=mods))
    for p in range(2):
        b = ACC + 4 * p
        E(valu('v_mul_f32', v(b), lit(1.0 / 448), v(b)))
        E(valu('v_mul_f32', v(b + 2), lit(1.0 / 448), v(b + 2)))
        E(valu('v_fma_f32', v(b + 2), '-' + v(b), v(b), v(b + 2)))
        E(valu('v_max_f32', v(b + 2), 0, v(b + 2)))
        E(valu('v_add_f32', v(b + 2), lit(1e-5), v(b + 2)))
        E(valu('v_rsq_f32', v(b + 2), v(b + 2)))
        E(valu('v_mul_f32', v(b), v(b), v(b + 2)))
    E(valu('v_and_b32', v(V_U0), 7, v(V_LANE)))
    E(valu('v_and_b32', v(V_U1), 3, v(V_U0)))
    E(valu('v_lshrrev_b32', v(V_U0), 2, v(V_U0))); E(valu('v_lshlrev_b32', v(V_U0), 6, v(V_U0)))
    E(valu('v_and_b32', v(V_U2), 1, v(V_U1))); E(valu('v_lshl_add_u32', v(V_U0), v(V_U2), 5, v(V_U0)))
    E(valu('v_lshrrev_b32', v(V_U1), 1, v(V_U1))); E(valu('v_lshl_add_u32', v(V_U0), v(V_U1), 3, v(V_U0)))
    E(salu('s_mov_b32', s(S_T0), XROW)); E(valu('v_mad_u32_u24', v(V_U0), v(V_R8), s(S_T0), v(V_U0)))
    E(salu('s_mul_i32', s(S_T1), s(S_W), 16 * XROW)); E(salu('s_add_u32', s(S_T1), s(S_T1), XA))
    E(valu('v_add_u32', v(V_U0), s(S_T1), v(V_U0)))
    E(valu('v_add_u32', v(V_U1), 8 * XROW, v(V_U0)))
    E(salu('s_mov_b32', s(S_T2), '0xffff0000'))
    T = 72
    for p in range(2):
        b = ACC + 4 * p
        for i in range(7):
            d0 = (p * 7 + i) * 4
            for k in range(4):
                t = T + 2 * k
                E(valu('v_lshlrev_b32', v(t), 16, v(d0 + k))); E(valu('v_and_b32', v(t + 1), s(S_T2), v(d0 + k)))
            for k in range(4):
                t = T + 2 * k
                E(valu('v_fma_f32', v(t), v(t), v(b + 2), '-' + v(b))); E(valu('v_fma_f32', v(t + 1), v(t + 1), v(b + 2), '-' + v(b)))
            for k in range(4):
                t = T + 2 * k
                E(valu('v_cvt_pk_bf16_f32', v(d0 + k), v(t), v(t + 1)))
            E(ds_write2_b64(v(V_U0 + p), v(d0, 2), v(d0 + 2, 2), 16 * i, 16 * i + 2, tag='xw'))
    E(wait_lgkm_tag('xw')); E(barrier())
    E(salu('s_lshl_b32', s(S_T0), s(S_RH), 5)); E(valu('v_add_u32', v(V_U0), s(S_T0), v(V_N16)))
    E(salu('s_mov_b32', s(S_T0), XROW)); E(valu('v_lshlrev_b32', v(V_U1), 4, v(V_GQ)))
    E(valu('v_mad_u32_u24', v(V_U0), v(V_U0), s(S_T0), v(V_U1))); E(valu('v_add_u32', v(V_U0), XA, v(V_U0)))
    for ks in range(14):
        for ct in range(2):
            E(ds_read('ds_read_b128', a(A_XB + (ks * 2 + ct) * 4, 4), v(V_U0), ks * 64 + ct * 16 * XROW, tag='xb'))
    return P

def interleave(*lists):
    out = []; its = [list(l) for l in lists]
    while any(its):
        for l in its:
            if l: out.append(l.pop(0))
    return out

def geglu(st):
    base = accset(st); out = []
    tis = range(2) if st < 3 else range(1)
    TT = 64; HP = 80
    out.append(valu('v_add_u32', v(V_HW), s(S_HI + st), v(V_HR)))
    for ct in range(2):
        for ti in tis:
            G = base + ((0 * 2 + ti) * 2 + ct) * 4; U = base + ((1 * 2 + ti) * 2 + ct) * 4
            t = [TT + k for k in range(4)]; e = [TT + 4 + k for k in range(4)]
            for k in range(4): out.append(valu('v_mul_f32', v(t[k]), v(G + k), v(G + k)))
            for k in range(4): out.append(valu('v_fmaak_f32', v(t[k]), v(t[k]), v(V_C1), lit(C_GELU0)))
            for k in range(4): out.append(valu('v_mul_f32', v(t[k]), v(G + k), v(t[k])))
            for k in range(4): out.append(valu('v_exp_f32', v(e[k]), v(t[k])))
            for k in range(4): out.append(valu('v_mul_f32', v(t[k]), v(G + k), v(U + k)))
            for k in range(4): out.append(valu('v_add_f32', v(e[k]), '1.0', v(e[k])))
            for k in range(4): out.append(valu('v_rcp_f32', v(e[k]), v(e[k])))
            hp = HP + ct * 4 + ti * 2
            for k in range(4): out.append(valu('v_mul_f32', v(t[k]), v(t[k]), v(e[k])))
            out.append(valu('v_cvt_pk_bf16_f32', v(hp), v(t[0]), v(t[1]))); out.append(valu('v_cvt_pk_bf16_f32', v(hp + 1), v(t[2]), v(t[3])))
        if st < 3: out.append(ds_write('ds_write_b128', v(V_HW), v(HP + ct * 4, 4), ct * 1024, tag='hw'))
        else: out.append(ds_write('ds_write_b64', v(V_HW), v(HP + ct * 4, 2), ct * 1024, tag='hw'))
    return out

def qconv(st):
    base = accset(4 + st); out = []
    for pp in range(2):
        for ct in range(2):
            X0 = base + ((2 * pp) * 2 + ct) * 4; X1 = base + ((2 * pp + 1) * 2 + ct) * 4
            t = 64 + 8 * ct; h = 80 + 4 * ct
            for k in range(4): out.append(valu('v_mul_f32', v(t + k), lit(C_QS), v(X0 + k)))
            for k in range(4): out.append(valu('v_mul_f32', v(t + 4 + k), lit(C_QS), v(X1 + k)))
            for k in range(4): out.append(valu('v_cvt_pk_bf16_f32', v(h + k), v(t + 2 * k), v(t + 2 * k + 1)))
            out.append(valu('v_permlane32_swap_b32', v(h), v(h + 2))); out.append(valu('v_permlane32_swap_b32', v(h + 1), v(h + 3)))
            out.append(nop(0))
            out.append(valu('v_permlane16_swap_b32', v(h), v(h + 2))); out.append(valu('v_permlane16_swap_b32', v(h + 1), v(h + 3)))
            ks = 2 * st + pp
            for k in range(4): out.append(valu('v_accvgpr_write_b32', a(A_Q + (ks * 2 + ct) * 4 + k), v(h + k)))
    return out

def gconv(st):
    base = accset(8 + st); out = []
    pps = range(2) if st < 3 else range(1)
    for pp in pps:
        for ct in range(2):
            if st < 3: X0 = base + ((2 * pp) * 2 + ct) * 4; X1 = base + ((2 * pp + 1) * 2 + ct) * 4
            else: X0 = base + (0 * 2 + ct) * 4; X1 = base + (1 * 2 + ct) * 4
            h = 80 + 4 * ct
            out.append(valu('v_cvt_pk_bf16_f32', v(h), v(X0), v(X0 + 1))); out.append(valu('v_cvt_pk_bf16_f32', v(h + 1), v(X0 + 2), v(X0 + 3)))
            out.append(valu('v_cvt_pk_bf16_f32', v(h + 2), v(X1), v(X1 + 1))); out.append(valu('v_cvt_pk_bf16_f32', v(h + 3), v(X1 + 2), v(X1 + 3)))
            li = st * 2 + pp
            for k in range(4): out.append(valu('v_accvgpr_write_b32', a(A_G + (li * 2 + ct) * 4 + k), v(h + k)))
    return out
def gstore(li, ct):
    st, pp = li // 2, li % 2
    return [salu('s_add_u32', s(S_T0), s(S_GB), s(S_CB + st)),
            vstore('buffer_store_dwordx4', a(A_G + (li * 2 + ct) * 4, 4), v(V_L16), s(S_WS, 4), s(S_T0), pp * 2048 + ct * 1024, CFG.store_flags, tag='gst')]

def sconv(st):
    base = 128 + 32 * (st & 1); out = []
    pps = range(2) if st < 3 else range(1)
    out.append(salu('s_add_u32', s(S_T1), s(S_PB), s(S_CB + st)))
    n = 0
    for pp in pps:
        for ct in range(2):
            if st < 3: X0 = base + ((2 * pp) * 2 + ct) * 4; X1 = base + ((2 * pp + 1) * 2 + ct) * 4
            else: X0 = 160 + (0 * 2 + ct) * 4; X1 = 160 + (1 * 2 + ct) * 4
            h = 192 + 4 * (n & 1); n += 1
            out.append(valu('v_cvt_pk_bf16_f32', v(h), v(X0), v(X0 + 1))); out.append(valu('v_cvt_pk_bf16_f32', v(h + 1), v(X0 + 2), v(X0 + 3)))
            out.append(valu('v_cvt_pk_bf16_f32', v(h + 2), v(X1), v(X1 + 1))); out.append(valu('v_cvt_pk_bf16_f32', v(h + 3), v(X1 + 2), v(X1 + 3)))
            out.append(vstore('buffer_store_dwordx4', v(h, 4), v(V_L16), s(S_WS, 4), s(S_T1), pp * 2048 + ct * 1024, CFG.store_flags, tag='sst'))
    return out

def xlane_reduce(op, reg, tmp):
    return [valu('v_mov_b32', v(tmp), v(reg)), nop(0), valu('v_permlane16_swap_b32', v(reg), v(tmp)), nop(0), valu(op, v(reg), v(reg), v(tmp)),
            valu('v_mov_b32', v(tmp), v(reg)), nop(0), valu('v_permlane32_swap_b32', v(reg), v(tmp)), nop(0), valu(op, v(reg), v(reg), v(tmp))]

def Sreg(t, T, ct): return V_S + 16 * (t & 1) + (ct * 2 + T) * 4
def Preg(t, ct): return V_P + 8 * (t & 1) + ct * 4

def softmax_first():
    out = []
    for ct in range(2):
        r = [Sreg(0, 0, ct) + k for k in range(4)] + [Sreg(0, 1, ct) + k for k in range(4)]
        m = V_T + ct
        out.append(valu('v_max3_f32', v(m), v(r[0]), v(r[1]), v(r[2])))
        out.append(valu('v_max3_f32', v(m), v(m), v(r[3]), v(r[4])))
        out.append(valu('v_max3_f32', v(m), v(m), v(r[5]), v(r[6])))
        out.append(valu('v_max_f32', v(m), v(m), v(r[7])))
    a0 = xlane_reduce('v_max_f32', V_T, V_T + 2); a1 = xlane_reduce('v_max_f32', V_T + 1, V_T + 3)
    out += interleave(a0, a1)
    for ct in range(2):
        for k in range(4): out.append(valu('v_sub_f32', v(V_NEGM + 4 * ct + k), 0, v(V_T + ct)))
    for ct in range(2):
        for T in range(2):
            for k in range(4): out.append(valu('v_add_f32', v(Sreg(0, T, ct) + k), v(V_NEGM + 4 * ct), v(Sreg(0, T, ct) + k)))
    out.append(valu('v_mov_b32', v(V_L0), 0)); out.append(valu('v_mov_b32', v(V_L1), 0))
    return out
def s1_fix():
    out = []
    for ct in range(2):
        for T in range(2):
            for k in range(4): out.append(valu('v_add_f32', v(Sreg(1, T, ct) + k), v(V_NEGM + 4 * ct), v(Sreg(1, T, ct) + k)))
    return out
def softmax_body(t):
    out = []
    for ct in range(2):
        ts = V_TS0 + ct
        for T in range(2):
            S = Sreg(t, T, ct); e = V_T + 4 * T
            for k in range(4): out.append(valu('v_exp_f32', v(e + k), v(S + k)))
            if T == 0:
                out.append(valu('v_add_f32', v(ts), v(e), v(e + 1)))
            else:
                out.append(valu('v_add_f32', v(ts), v(ts), v(e)));
            out.append(valu('v_cvt_pk_bf16_f32', v(Preg(t, ct) + 2 * T), v(e), v(e + 1)))
            if T == 1: out.append(valu('v_add_f32', v(ts), v(ts), v(e + 1)))
            out.append(valu('v_add_f32', v(ts), v(ts), v(e + 2)))
            out.append(valu('v_cvt_pk_bf16_f32', v(Preg(t, ct) + 2 * T + 1), v(e + 2), v(e + 3)))
            out.append(valu('v_add_f32', v(ts), v(ts), v(e + 3)))
    return out
def softmax_check(t):
    return [valu('v_max_f32', v(V_TM), v(V_TS0), v(V_TS1)),
            valu('v_cmp_lt_f32', 'vcc', s(S_THR), v(V_TM)),
            raw(f"s_cbranch_vccnz L_slow_{t}", 'branch', ['vcc']),
            label(f"L_back_{t}"),
            valu('v_add_f32', v(V_L0), v(V_L0), v(V_TS0)), valu('v_add_f32', v(V_L1), v(V_L1), v(V_TS1))]

def slow_path(par):
    t = par
    o = []
    o.append(label(f"L_slowsub_{par}"))
    o.append(nop(15))
    for ct in range(2):
        r = [Sreg(t, 0, ct) + k for k in range(4)] + [Sreg(t, 1, ct) + k for k in range(4)]
        m = V_T + ct
        o += [valu('v_max3_f32', v(m), v(r[0]), v(r[1]), v(r[2])), valu('v_max3_f32', v(m), v(m), v(r[3]), v(r[4])),
              valu('v_max3_f32', v(m), v(m), v(r[5]), v(r[6])), valu('v_max_f32', v(m), v(m), v(r[7]))]
        o += xlane_reduce('v_max_f32', m, V_T + 2)
        o.append(valu('v_max_f32', v(m), 0, v(m)))
    for ct in range(2):
        d = V_T + ct; f = V_T + 2 + ct
        o.append(valu('v_sub_f32', v(f), 0, v(d))); o.append(valu('v_exp_f32', v(f), v(f)))
        for k in range(4): o.append(valu('v_sub_f32', v(V_NEGM + 4 * ct + k), v(V_NEGM + 4 * ct + k), v(d)))
        for tt in (t, t + 1):
            for T in range(2):
                for k in range(4): o.append(valu('v_sub_f32', v(Sreg(tt, T, ct) + k), v(Sreg(tt, T, ct) + k), v(d)))
        o.append(valu('v_mul_f32', v(V_L0 + ct), v(V_L0 + ct), v(f)))
        for dt in range(16):
            b = ((dt >> 1) * 2 + ct) * 8 + (dt & 1) * 4
            for k in range(4): o.append(valu('v_mul_f32', v(b + k), v(b + k), v(f)))
    o += softmax_body(t)
    o.append(nop(3))
    o.append(raw(f"s_setpc_b64 s[{S_RET}:{S_RET+1}]", 'branch', [s(S_RET, 2)]))
    return o

def onorm(i):
    ct = i & 1; b = 8 * i; rl = V_RL0 + ct; t = V_T
    out = []
    for k in range(8): out.append(valu('v_mul_f32', v(t + k), v(b + k), v(rl)))
    for k in range(4): out.append(valu('v_cvt_pk_bf16_f32', v(b + k), v(t + 2 * k), v(t + 2 * k + 1)))
    out.append(ds_write('ds_write_b128', v(V_XW), v(b, 4), i * 1024, tag='ow'))
    return out

def build():
    chunks, groups, marks = build_main()
    nchunks = len(chunks)
    fcount = 0
    for g in groups:
        g.bufs = []
        for _ in g.frs:
            g.bufs.append(A_FB + 4 * (fcount % CFG.nb)); fcount += 1
        g.f0 = fcount - len(g.frs)
        g.mf = g.mk(g.bufs)
    mstart = []; m = 0
    for g in groups:
        mstart.append(m); m += len(g.mf)
    mstart.append(m); NM = m
    M = {k: mstart[i] for k, i in marks.items()}
    chunk_first_m = {}
    for gi, g in enumerate(groups): chunk_first_m.setdefault(g.chunk, mstart[gi])

    side = []
    seq = [0]
    def spread(ins, m0, m1):
        n = len(ins)
        for k, x in enumerate(ins):
            side.append((m0 + (m1 - m0) * k / max(n, 1), seq[0], x)); seq[0] += 1
    def at(ins, m0):
        for x in ins:
            side.append((m0, seq[0], x)); seq[0] += 1
    LAT = 6
    nxt = ["F1_1", "F1_2", "F1_3", "Q_0"]; nxt_end = ["F1_2", "F1_3", "Q_0", "Q_1"]
    for st in range(4):
        m0 = M[nxt[st]] + LAT; m1 = M[nxt_end[st]] - 4
        if st == 2: m1 = M["Q_0"] + 40
        if st == 3: m0 = M["Q_0"] + 44; m1 = M["Q_1"] - 8
        geglu_windows = None
        spread(geglu(st), m0, m1)
    pre_barrier = {}
    def first_chunk(name):
        return min(i for i, c in enumerate(chunks) if c.name.startswith(name))
    pre_dma = {}
    pre_dma[first_chunk("Q ")] = dv_setup(V_DVB, 8192)
    pre_dma[first_chunk("F2")] = dv_setup(V_DVA, 896)
    pre_dma[first_chunk("K0")] = dv_setup_K(V_DVB)
    pre_dma[first_chunk("V0")] = dv_setup(V_DVA, 512)
    pre_dma[first_chunk("O ")] = dv_setup(V_DVB, 896)
    qn = ["Q_1", "Q_2", "Q_3", "F2_0"]; qe = ["Q_2", "Q_3", "F2_0", "F2_1"]
    for st in range(4):
        spread(qconv(st), M[qn[st]] + LAT, M[qe[st]] - 8)
    hc = first_chunk("Q s1 j2")
    fence = {hc: ['hw']}; fence_count = {'hw': 8, 'ow': 16}
    hreads = [ds_read('ds_read_b128', a(A_H + (ks * 2 + ct) * 4, 4), v(V_HR), ks * 4096 + ct * 1024, tag='hr') for ks in range(7) for ct in range(2)]
    spread(hreads, chunk_first_m[hc] + 2, M["Q_2"] - 4)
    spread(gconv(0), M["F2_1"] + LAT, M["F2_2"] - 8)
    spread(gconv(1), M["F2_2"] + LAT, M["F2_3"] - 8)
    spread(gconv(2), M["F2_3"] + LAT, M["S_0"] + 8)
    spread(gconv(3), M["S_0"] + 12, M["S_1"] - 2)
    spread(softmax_first() + softmax_body(0), M["S_1"] + LAT, M["S_2"] - 2)
    at([valu('v_add_f32', v(V_L0), v(V_L0), v(V_TS0)), valu('v_add_f32', v(V_L1), v(V_L1), v(V_TS1))], M["S_2"] - 1)
    for t in range(1, 16):
        if t < 15: m0, m1 = M[f"S_{t+1}"], (M[f"S_{t+2}"] if t < 14 else M["PV_14"])
        else: m0, m1 = M["PV_14"], M["PV_15"]
        body = softmax_body(t)
        if t == 1: body = s1_fix() + body
        spread(body, m0 + (LAT if t == 1 else 1), m1 - 3)
        at(softmax_check(t), m1 - 1)
    k = 0
    for li in range(7):
        for ct in range(2):
            t = 1 + k
            at(gstore(li, ct), M[f"PV_{t-1}"] + 8); k += 1
    fin = interleave(xlane_reduce('v_add_f32', V_L0, V_T), xlane_reduce('v_add_f32', V_L1, V_T + 1))
    fin += [valu('v_rcp_f32', v(V_RL0), v(V_L0)), valu('v_rcp_f32', v(V_RL1), v(V_L1))]
    spread(fin, M["PV_15"], M["PV_15"] + 10)
    allnorm = []
    for ks in range(8): allnorm += onorm(2 * ks) + onorm(2 * ks + 1)
    spread(allnorm, M["PV_15"] + 12, M["O_0"] + 28)
    oc = first_chunk("O s0 j3")
    fence[oc] = ['ow']
    preads = [ds_read('ds_read_b128', a(A_PART + i * 4, 4), v(V_XR), i * 1024, tag='pr') for i in range(16)]
    spread(preads, chunk_first_m[oc] + 0, M["O_part"] - 4)
    o3 = [salu('s_lshl_b32', s(S_T0), s(S_CH), 13), salu('s_xor_b32', s(S_T2), s(S_T0), 8192)]
    for k in range(4): o3.append(valu('v_add_u32', v(V_TS + 4 + k), s(S_T2), v(V_TS + k)))
    for k in range(4): o3.append(valu('v_add_u32', v(V_TS + k), s(S_T0), v(V_TS + k)))
    spread(o3, M["O_1"] + 8, M["O_1"] + 30)
    spread(sconv(0), M["O_1"] + LAT, M["O_1"] + 40)
    spread(sconv(1), M["O_2"] + LAT, M["O_2"] + 40)
    spread(sconv(2), M["O_3"] + LAT, M["O_3"] + 30)
    tail = sconv(3)

    side.sort(key=lambda x: (x[0], x[1]))
    P = prologue()
    for c in range(AHEAD): P += chunk_dma(c, chunks[c])
    P += prologue2()
    P += layernorm()
    sp = 0
    opened = -1
    rq = []
    for gi, g in enumerate(groups):
        g.reads = []
        for fi, fr in enumerate(g.frs):
            g.reads += fr(g.bufs[fi], g.chunk % NSLOT, g.chunk)
    dq = []
    rg = 0
    ri = 0
    def open_chunk(c):
        nonlocal opened
        if c >= 2: P.append(wait_lgkm_tag([('rd', c - 2)]))
        if c in fence:
            for tg in fence[c]:
                have = sum(1 for x in P if x.tag == tg); want = fence_count[tg]
                assert have == want, (tg, have, want)
            P.append(wait_lgkm_tag(fence[c]))
        P.append(wait_vm_tag([('dma', c)]))
        P.append(barrier())
        opened = c
        n = c + AHEAD
        if n < nchunks:
            if n in pre_dma: dq.extend(pre_dma[n])
            dq.extend(chunk_dma(n, chunks[n]))
    def can_read(gidx, cur):
        g = groups[gidx]
        lastf = g.f0 + len(g.frs) - 1
        prevf = lastf - CFG.nb
        if prevf < 0: return True
        return groups[cur].f0 > prevf
    def issue_reads(cur, maxn):
        nonlocal rg, ri
        n = 0
        while rg < len(groups) and n < maxn and can_read(rg, cur):
            g = groups[rg]
            if g.chunk > opened:
                flush_dq()
                open_chunk(g.chunk)
            P.append(g.reads[ri]); ri += 1; n += 1
            if ri == len(g.reads): rg += 1; ri = 0
        return n
    def flush_dq(maxn=None):
        n = 0
        while dq and (maxn is None or n < maxn):
            x = dq.pop(0); P.append(x)
            if x.kind == 'dma' or x.kind in VALU_KINDS: n += 1
    while rg < len(groups) and groups[rg].f0 + len(groups[rg].frs) <= CFG.nb: issue_reads(0, 1) or None
    mi = 0
    for gi, g in enumerate(groups):
        while rg <= gi:
            if not issue_reads(gi, 8): raise Exception("cannot issue reads")
        for k, mf in enumerate(g.mf):
            P.append(mf)
            issue_reads(gi + (1 if k == len(g.mf) - 1 else 0) if gi + 1 < len(groups) else gi, 1 if len(g.mf) >= 4 else 2)
            flush_dq(1)
            while sp < len(side) and side[sp][0] <= mi:
                P.append(side[sp][2]); sp += 1
            mi += 1
    while sp < len(side):
        P.append(side[sp][2]); sp += 1
    P += tail
    P.append(raw("s_waitcnt vmcnt(0)", 'wait_raw'))
    P.append(label("L_main_end")); P.append(raw("s_endpgm", 'branch'))
    for t in range(1, 16):
        P.append(label(f"L_slow_{t}"))
        P.append(raw(f"s_call_b64 s[{S_RET}:{S_RET+1}], L_slowsub_{t & 1}", 'branch', [], [s(S_RET, 2)]))
        P.append(raw(f"s_branch L_back_{t}", 'branch'))
    P += slow_path(0); P += slow_path(1)
    Pf, stats = finalize(P)
    return Pf, stats, M, NM

def reduce_kernel():
    P = []; E = P.append
    E(salu('s_cmp_ge_u32', s(2), 448)); E(raw("s_cbranch_scc1 L_red_end", 'branch'))
    E(raw("s_load_dwordx2 s[4:5], s[0:1], 0")); E(raw("s_load_dwordx2 s[6:7], s[0:1], 72")); E(raw("s_load_dwordx2 s[8:9], s[0:1], 88"))
    E(valu('v_and_b32', v(1), 63, v(0))); E(valu('v_lshrrev_b32', v(2), 6, v(0)))
    E(valu('v_lshlrev_b32', v(3), 4, v(1)))
    E(valu('v_readfirstlane_b32', s(20), v(2)))
    E(salu('s_lshl_b32', s(21), s(2), 2)); E(salu('s_add_u32', s(21), s(21), s(20)))
    E(salu('s_mul_hi_u32', s(22), s(21), (2 ** 32 + 55) // 56))
    E(salu('s_mul_i32', s(23), s(22), 56)); E(salu('s_sub_u32', s(23), s(21), s(23)))
    E(raw("s_waitcnt lgkmcnt(0)", 'wait_raw'))
    E(salu('s_mov_b32', s(12), s(8))); E(salu('s_mov_b32', s(13), s(9))); E(salu('s_mov_b32', s(14), 2 * 256 * 57344)); E(salu('s_mov_b32', s(15), '0x00020000'))
    E(salu('s_mul_i32', s(24), s(22), 8 * 57344)); E(salu('s_lshl_b32', s(25), s(23), 10)); E(salu('s_add_u32', s(24), s(24), s(25)))
    for which in range(2):
        for k in range(8):
            E(salu('s_add_u32', s(26), s(24), which * 256 * 57344 + k * 57344))
            E(vload('buffer_load_dwordx4', v(16 + (which * 8 + k) * 4, 4), v(3), s(12, 4), s(26), 0, tag='p'))
    E(salu('s_and_b32', s(27), s(23), 1))
    E(salu('s_lshr_b32', s(28), s(23), 1))
    E(salu('s_cmp_ge_u32', s(28), 14)); E(salu('s_cselect_b32', s(29), 1, 0))
    E(salu('s_mul_i32', s(30), s(29), 14)); E(salu('s_sub_u32', s(28), s(28), s(30)))
    E(salu('s_lshl_b32', s(30), s(22), 6)); E(salu('s_lshl_b32', s(31), s(29), 5)); E(salu('s_add_u32', s(30), s(30), s(31)))
    E(salu('s_lshl_b32', s(31), s(27), 4)); E(salu('s_add_u32', s(30), s(30), s(31)))
    E(salu('s_mul_i32', s(30), s(30), 896)); E(salu('s_lshl_b32', s(31), s(28), 6)); E(salu('s_add_u32', s(30), s(30), s(31)))
    E(valu('v_and_b32', v(4), 15, v(1))); E(valu('v_lshrrev_b32', v(5), 4, v(1)))
    E(salu('s_mov_b32', s(32), 896)); E(valu('v_lshlrev_b32', v(5), 4, v(5))); E(valu('v_mad_u32_u24', v(4), v(4), s(32), v(5)))
    E(salu('s_mov_b32', s(16), s(4))); E(salu('s_mov_b32', s(17), s(5))); E(salu('s_mov_b32', s(18), 2048 * 896)); E(salu('s_mov_b32', s(19), '0x00020000'))
    E(vload('buffer_load_dwordx4', v(8, 4), v(4), s(16, 4), s(30), 0, tag='x'))
    E(salu('s_mov_b32', s(33), '0xffff0000'))
    for which in range(2):
        acc = 80 + 8 * which
        for k in range(8):
            src = 16 + (which * 8 + k) * 4
            for d in range(4):
                E(valu('v_lshlrev_b32', v(96), 16, v(src + d))); E(valu('v_and_b32', v(97), s(33), v(src + d)))
                if k == 0:
                    E(valu('v_mov_b32', v(acc + 2 * d), v(96))); E(valu('v_mov_b32', v(acc + 2 * d + 1), v(97)))
                else:
                    E(valu('v_add_f32', v(acc + 2 * d), v(acc + 2 * d), v(96))); E(valu('v_add_f32', v(acc + 2 * d + 1), v(acc + 2 * d + 1), v(97)))
    for k in range(8): E(valu('v_mul_f32', v(100 + k), lit(-math.log2(math.e)), v(88 + k)))
    for k in range(8): E(valu('v_exp_f32', v(100 + k), v(100 + k)))
    for k in range(8): E(valu('v_add_f32', v(100 + k), '1.0', v(100 + k)))
    for k in range(8): E(valu('v_rcp_f32', v(100 + k), v(100 + k)))
    for k in range(8): E(valu('v_mul_f32', v(88 + k), v(88 + k), v(100 + k)))
    for k in range(8): E(valu('v_mul_f32', v(80 + k), v(80 + k), v(88 + k)))
    for k in range(4): E(valu('v_cvt_pk_bf16_f32', v(108 + k), v(80 + 2 * k), v(81 + 2 * k)))
    E(valu('v_permlane32_swap_b32', v(108), v(110))); E(valu('v_permlane32_swap_b32', v(109), v(111)))
    E(valu('v_permlane16_swap_b32', v(108), v(110))); E(valu('v_permlane16_swap_b32', v(109), v(111)))
    for d in range(4):
        E(valu('v_lshlrev_b32', v(80 + 2 * d), 16, v(108 + d))); E(valu('v_and_b32', v(81 + 2 * d), s(33), v(108 + d)))
        E(valu('v_lshlrev_b32', v(88 + 2 * d), 16, v(8 + d))); E(valu('v_and_b32', v(89 + 2 * d), s(33), v(8 + d)))
    for k in range(8): E(valu('v_add_f32', v(80 + k), v(80 + k), v(88 + k)))
    for k in range(4): E(valu('v_cvt_pk_bf16_f32', v(108 + k), v(80 + 2 * k), v(81 + 2 * k)))
    E(salu('s_mov_b32', s(16), s(6))); E(salu('s_mov_b32', s(17), s(7)))
    E(vstore('buffer_store_dwordx4', v(108, 4), v(4), s(16, 4), s(30), 0))
    E(raw("s_waitcnt vmcnt(0)", 'wait_raw'))
    E(label("L_red_end")); E(raw("s_endpgm", 'branch'))
    Pf, _ = finalize(P)
    return Pf

HEADER = """; Kernarg layout (96 bytes, ptrs only, base s[0:1]):
; @launch kernel=fused_main_kernel grid=(256,1,1) block=(256,1,1) lds=163840
; @launch kernel=fused_reduce_kernel grid=(448,1,1) block=(256,1,1) lds=0
.amdgcn_target "amdgcn-amd-amdhsa--gfx950"
.text
"""
def kd(name, nv, acc, ns):
    return f""".section .rodata,"a"
.p2align 6
.amdhsa_kernel {name}
  .amdhsa_next_free_vgpr {nv}
  .amdhsa_next_free_sgpr {ns}
  .amdhsa_accum_offset {acc}
  .amdhsa_group_segment_fixed_size 0
  .amdhsa_kernarg_size 96
  .amdhsa_user_sgpr_count 2
  .amdhsa_user_sgpr_kernarg_segment_ptr 1
  .amdhsa_system_sgpr_workgroup_id_x 1
  .amdhsa_float_denorm_mode_32 3
.end_amdhsa_kernel
"""
def generate():
    Pm, stats, M, NM = build()
    Pr = reduce_kernel()
    t = HEADER
    t += f".globl {MAIN}\n.p2align 8\n.type {MAIN},@function\n{MAIN}:\n" + text(Pm) + "\n"
    t += f".globl {RED}\n.p2align 8\n.type {RED},@function\n{RED}:\n" + text(Pr) + "\n"
    t += kd(MAIN, 512, 256, 102) + kd(RED, 112, 112, 40)
    return t, Pm, stats, M, NM

if __name__ == "__main__":
    t, Pm, stats, M, NM = generate()
    out = sys.argv[1] if len(sys.argv) > 1 else f"cdna_kernels/{KNAME}.s"
    open(out, "w").write(t)
    from collections import Counter
    cn = Counter(i.kind for i in Pm)
    print("instrs:", len(Pm), dict(cn)); print(stats, "NM", NM)
```

```python
import sys, math
from asmlib import *

KNAME = "recurrent_scan__sliding_block_cached__glu_gated_geglu__prompt"
MAIN = "fused_main_kernel"
RED = "fused_reduce_kernel"

class Cfg:
    warm_code = True
    warm_w = True
    code_bytes = 72 * 1024
    gdma = True
    dma_gap = 4
    abl = ''
    stampop = 's_memrealtime'
    stamps = False
    store_flags = "sc1"
    debug = None
    nb = 6
CFG = Cfg()

SLOT = 16384; NSLOT = 6; XA = 98304; LDS_BYTES = 163840
XROW = 912
AHEAD = 4

S_X, S_F1, S_WQ, S_WD, S_K, S_V, S_WO, S_WS = 4, 8, 12, 16, 20, 24, 28, 32
S_WG, S_WU = 48, 52
S_KVH, S_RB, S_W, S_CH, S_RH, S_PAR, S_WLDS, S_SOFF = 36, 37, 38, 39, 40, 41, 42, 43
S_F1B = 44
S_QB = 48
S_F2B = 49
S_F2C3, S_F2C10, S_F2C11, S_F2C12 = 52, 53, 54, 55
S_KB, S_VB = 56, 57
S_OOWN = 58
S_OPAR = 61
S_KA = 64
S_O3 = 88
S_PB = 89
S_CB = 90
S_HI = 94
S_T0, S_T1, S_T2 = 98, 99, 100
S_THR = 101
S_ONES = 3
S_RET = 64
S_GB = 66

V_S = 128; V_P = 160; V_NEGM = 176; V_T = 184
V_L0, V_L1, V_TS0, V_TS1, V_TM, V_C1 = 192, 193, 194, 195, 196, 197
V_TAC = 200; V_TS = 208; V_TH = 212; V_KA = 216; V_TA = 224
V_DVA = 232; V_DVB = 236
V_L16, V_HW, V_HR, V_R8, V_SC16, V_XW, V_XR = 240, 241, 242, 243, 244, 245, 246
V_RL0, V_RL1 = 247, 248
V_LANE, V_N16, V_GQ = 249, 250, 251
V_U0, V_U1, V_U2, V_U3 = 252, 253, 254, 255
HIOFF = 49152
SETS = [0, 32, 96]
def accset(gstep): return SETS[gstep % 3]
A_XB = 0; A_H = 112; A_FB = 168; A_Q = 192; A_G = 0; A_PART = 192

C_GELU0 = -2.0 * math.sqrt(2.0 / math.pi) * math.log2(math.e)
C_GELU1 = C_GELU0 * 0.044715
C_QS = math.log2(math.e) / 16.0
import struct
def f2u(x): return struct.unpack("<I", struct.pack("<f", x))[0]
def lit(x): return f"0x{f2u(x):08x}"

class Group:
    def __init__(self, chunk, frs, mk):
        self.chunk = chunk; self.frs = frs; self.mk = mk
class Chunk:
    def __init__(self, name, srd, dv, soff, imm):
        self.name = name; self.srd = srd; self.dv = dv; self.soff = soff; self.imm = imm

def tr_reads(addr_lo, off):
    lo, hi = addr_lo
    def f(buf, slot, c):
        ar = lo if slot < 3 else hi
        o = (slot % 3) * SLOT + off
        return [ds_read("ds_read_b64_tr_b16", a(buf, 2), v(ar), o, tag=('rd', c)),
                ds_read("ds_read_b64_tr_b16", a(buf + 2, 2), v(ar), o + 2048, tag=('rd', c))]
    return f
def b128_read(addr_lo, off):
    lo, hi = addr_lo
    def f(buf, slot, c):
        ar = lo if slot < 3 else hi
        o = (slot % 3) * SLOT + off
        return [ds_read("ds_read_b128", a(buf, 4), v(ar), o, tag=('rd', c))]
    return f

def build_main():
    chunks = []; groups = []
    marks = {}
    def mark(n): marks[n] = len(groups)
    def newchunk(*args):
        chunks.append(Chunk(*args)); return len(chunks) - 1
    TAC = lambda tt: (V_TAC + tt, V_TAC + 4 + tt)
    TS = lambda ti: (V_TS + ti, V_TS + 2 + ti)
    TH = (V_TH, V_TH + 1)
    KA = lambda i: (V_KA + i, V_KA + 4 + i)
    TA = lambda tt: (V_TA + tt, V_TA + 4 + tt)
    XB = lambda ks, ct: a(A_XB + (ks * 2 + ct) * 4, 4)

    def pair_mk(accf, Bf, first):
        def mk(fr):
            out = []
            for ct in range(2):
                for i, f in enumerate(fr):
                    d = v(accf(ct), 4)
                    C = '0' if (first and i == 0) else d
                    out.append(mfma(d, a(f, 4), Bf(i, ct), C, need=[a(x, 4) for x in fr] if (ct == 0 and i == 0) else ()))
            return out
        return mk

    for st in range(4):
        mark(f"F1_{st}")
        base = accset(st)
        for j in range(7):
            c = newchunk(f"F1 s{st} j{j}", S_F1, V_DVA, S_F1B + st, j * 64 * 3584)
            tis = range(2) if st < 3 else range(1)
            for ti in tis:
                for mat in range(2):
                    ad = TS(ti) if st < 3 else TH
                    frs = [tr_reads(ad, (ksl * 2 + mat) * 4096) for ksl in range(2)]
                    accf = (lambda ct, mat=mat, ti=ti, base=base: base + ((mat * 2 + ti) * 2 + ct) * 4)
                    Bf = (lambda i, ct, j=j: XB(2 * j + i, ct))
                    groups.append(Group(c, frs, pair_mk(accf, Bf, j == 0)))
    for st in range(4):
        mark(f"Q_{st}")
        base = accset(4 + st)
        for j in range(7):
            c = newchunk(f"Q s{st} j{j}", S_WQ, V_DVB, S_QB, j * 64 * 8192 + st * 128)
            for tt in range(4):
                frs = [tr_reads(TAC(tt), ksl * 4096) for ksl in range(2)]
                accf = (lambda ct, tt=tt, base=base: base + (tt * 2 + ct) * 4)
                Bf = (lambda i, ct, j=j: XB(2 * j + i, ct))
                groups.append(Group(c, frs, pair_mk(accf, Bf, j == 0)))
    HB = lambda ks, ct: a(A_H + (ks * 2 + ct) * 4, 4)
    KR = 32 * 896
    def f2_pair(c, st, ks0, first):
        base = accset(8 + st)
        for tt in range(4):
            frs = [tr_reads(TAC(tt), ksl * 4096) for ksl in range(2)]
            accf = (lambda ct, tt=tt, base=base: base + (tt * 2 + ct) * 4)
            groups.append(Group(c, frs, pair_mk(accf, (lambda i, ct, ks0=ks0: HB(ks0 + i, ct)), first)))
    def f2_single(c, st, ks, item, first):
        base = accset(8 + st)
        for tt in range(4):
            frs = [tr_reads(TAC(tt), item * 4096)]
            accf = (lambda ct, tt=tt, base=base: base + (tt * 2 + ct) * 4)
            groups.append(Group(c, frs, pair_mk(accf, (lambda i, ct, ks=ks: HB(ks, ct)), first)))
    def f2_shared(c, kss, items, first):
        for ti in range(2):
            frs = [tr_reads(TS(ti), it * 4096) for it in items]
            accf = (lambda ct, ti=ti: accset(11) + (ti * 2 + ct) * 4)
            groups.append(Group(c, frs, pair_mk(accf, (lambda i, ct, kss=kss: HB(kss[i], ct)), first)))
    mark("F2_0")
    for i in range(3):
        c = newchunk(f"F2 s0 p{i}", S_WD, V_DVA, S_F2B + 0, 2 * i * KR); f2_pair(c, 0, 2 * i, i == 0)
    c = newchunk("F2 c3", S_WD, V_DVA, S_F2C3, 6 * KR)
    f2_single(c, 0, 6, 0, False)
    mark("F2_1")
    f2_single(c, 1, 6, 1, True)
    for i in range(3):
        c = newchunk(f"F2 s1 p{i}", S_WD, V_DVA, S_F2B + 1, 2 * i * KR); f2_pair(c, 1, 2 * i, False)
    mark("F2_2")
    for i in range(3):
        c = newchunk(f"F2 s2 p{i}", S_WD, V_DVA, S_F2B + 2, 2 * i * KR); f2_pair(c, 2, 2 * i, i == 0)
    c = newchunk("F2 c10", S_WD, V_DVA, S_F2C10, 0)
    f2_single(c, 2, 6, 0, False)
    mark("F2_3")
    f2_shared(c, [0, 1], [1, 3], True)
    c = newchunk("F2 c11", S_WD, V_DVA, S_F2C11, 2 * KR)
    f2_shared(c, [2, 3], [0, 1], False)
    f2_shared(c, [4, 5], [2, 3], False)
    c = newchunk("F2 c12", S_WD, V_DVA, S_F2C12, 0)
    f2_shared(c, [6], [0], False)
    QB = lambda ks, ct: a(A_Q + (ks * 2 + ct) * 4, 4)
    Sreg = lambda t, T, ct: V_S + 16 * (t & 1) + (ct * 2 + T) * 4
    Preg = lambda t, ct: V_P + 8 * (t & 1) + ct * 4
    Oacc = lambda dt, ct: ((dt >> 1) * 2 + ct) * 8 + (dt & 1) * 4
    def S_phase(t):
        mark(f"S_{t}")
        c = newchunk(f"K{t}", S_K, V_DVB, S_KB, t * 16384)
        for T in range(2):
            for kp in range(4):
                frs = [b128_read(KA((2 * kp + i) & 3), T * 8192 + ((2 * kp + i) >> 2) * 256) for i in range(2)]
                def mk(fr, T=T, kp=kp, t=t):
                    out = []
                    for ct in range(2):
                        for i, f in enumerate(fr):
                            d = v(Sreg(t, T, ct), 4)
                            if kp == 0 and i == 0:
                                C = '0' if t < 2 else v(V_NEGM + 4 * ct, 4)
                            else: C = d
                            out.append(mfma(d, a(f, 4), QB(2 * kp + i, ct), C, need=[a(x, 4) for x in fr] if (ct == 0 and i == 0) else ()))
                    return out
                groups.append(Group(c, frs, mk))
    def PV_phase(t):
        mark(f"PV_{t}")
        c = newchunk(f"V{t}", S_V, V_DVA, S_VB, t * 16384)
        for dp in range(8):
            frs = [tr_reads(TA((2 * dp + i) & 3), ((2 * dp + i) >> 2) * 4096) for i in range(2)]
            def mk(fr, dp=dp, t=t):
                out = []
                for i, f in enumerate(fr):
                    for ct in range(2):
                        d = v(Oacc(2 * dp + i, ct), 4)
                        C = '0' if t == 0 else d
                        out.append(mfma(d, a(f, 4), v(Preg(t, ct), 4), C, need=[a(x, 4) for x in fr] if (ct == 0 and i == 0) else ()))
                return out
            groups.append(Group(c, frs, mk))
    S_phase(0); S_phase(1)
    for t in range(1, 15):
        S_phase(t + 1); PV_phase(t - 1)
    PV_phase(14); PV_phase(15)
    OWN = lambda ks, ct: v((ks * 2 + ct) * 8, 4)
    PART = lambda ks, ct: a(A_PART + (ks * 2 + ct) * 4, 4)
    OB = lambda kk, ct: OWN(kk, ct) if kk < 8 else PART(kk - 8, ct)
    OR = 64 * 896
    for st in range(3):
        mark(f"O_{st}")
        base = 128 + 32 * (st & 1)
        for j in range(8):
            if j < 4: c = newchunk(f"O s{st} j{j}", S_WO, V_DVB, S_OOWN + st, j * OR)
            else: c = newchunk(f"O s{st} j{j}", S_WO, V_DVB, S_OPAR + st, (j - 4) * OR)
            if st == 0 and j == 4: mark("O_part")
            for tt in range(4):
                frs = [tr_reads(TAC(tt), ksl * 4096) for ksl in range(2)]
                accf = (lambda ct, tt=tt, base=base: base + (tt * 2 + ct) * 4)
                groups.append(Group(c, frs, pair_mk(accf, (lambda i, ct, j=j: OB(2 * j + i, ct)), j == 0)))
    mark("O_3")
    for j in range(4):
        c = newchunk(f"O s3 j{j}", S_WO, V_DVB, S_O3, j * OR)
        for who in range(2):
            for ti in range(2):
                ad = (V_TS + who * 4 + ti, V_TS + who * 4 + 2 + ti)
                frs = [tr_reads(ad, ksl * 4096) for ksl in range(2)]
                accf = (lambda ct, ti=ti: 160 + (ti * 2 + ct) * 4)
                groups.append(Group(c, frs, pair_mk(accf, (lambda i, ct, j=j, who=who: OB(8 * who + 2 * j + i, ct)), j == 0 and who == 0)))
    mark("END")
    return chunks, groups, marks

def prologue():
    P = []
    E = P.append
    E(salu('s_cmp_ge_u32', s(2), 256)); E(raw("s_cbranch_scc1 L_main_end", 'branch'))
    E(raw(f"s_load_dwordx16 s[{S_KA}:{S_KA+15}], s[0:1], 0"))
    E(raw(f"s_load_dwordx8 s[{S_KA+16}:{S_KA+23}], s[0:1], 64"))
    E(valu('v_and_b32', v(V_LANE), 63, v(0)))
    E(valu('v_lshrrev_b32', v(V_U0), 6, v(0)))
    E(valu('v_and_b32', v(V_N16), 15, v(V_LANE)))
    E(valu('v_readfirstlane_b32', s(S_W), v(V_U0)))
    E(valu('v_lshrrev_b32', v(V_GQ), 4, v(V_LANE)))
    E(valu('v_lshrrev_b32', v(V_R8), 3, v(V_LANE)))
    E(valu('v_lshlrev_b32', v(V_L16), 4, v(V_LANE)))
    E(salu('s_and_b32', s(S_KVH), s(2), 7)); E(salu('s_lshr_b32', s(S_RB), s(2), 3))
    E(salu('s_and_b32', s(S_PAR), s(S_KVH), 1))
    E(salu('s_and_b32', s(S_RH), s(S_W), 1)); E(salu('s_lshr_b32', s(S_CH), s(S_W), 1))
    E(salu('s_lshl_b32', s(S_WLDS), s(S_W), 12))
    E(valu('v_and_b32', v(V_U1), 7, v(V_LANE)))
    E(valu('v_lshlrev_b32', v(V_U2), 4, v(V_U1)))
    E(salu('s_mov_b32', s(S_T0), 896))
    E(valu('v_mad_u32_u24', v(V_U0), v(V_R8), s(S_T0), v(V_U2)))
    E(raw("s_waitcnt lgkmcnt(0)", 'wait_raw'))
    kx, kk, kv, kwq, kwo, kwg, kwu, kwd, kws = [S_KA + o for o in (0, 2, 4, 6, 8, 12, 14, 16, 22)]
    def srd(dst, ptr, nbytes):
        E(salu('s_mov_b32', s(dst), s(ptr))); E(salu('s_mov_b32', s(dst + 1), s(ptr + 1)))
        E(salu('s_mov_b32', s(dst + 2), nbytes)); E(salu('s_mov_b32', s(dst + 3), '0x00020000'))
    srd(S_X, kx, 2048 * 896)
    E(salu('s_mul_i32', s(S_T0), s(S_RB), 57344)); E(salu('s_mul_i32', s(S_T1), s(S_W), 14336))
    E(salu('s_add_u32', s(S_T0), s(S_T0), s(S_T1))); E(salu('s_add_u32', s(S_T1), s(S_T0), 7168))
    for p in range(2):
        for i in range(7):
            E(vload('buffer_load_dwordx4', v((p * 7 + i) * 4, 4), v(V_U0), s(S_X, 4), s(S_T0 + p), i * 128, tag='x'))
    E(salu('s_cmp_eq_u32', s(S_RH), 0))
    E(salu('s_cselect_b32', s(S_F1), s(kwg), s(kwu))); E(salu('s_cselect_b32', s(S_F1 + 1), s(kwg + 1), s(kwu + 1)))
    E(salu('s_mov_b32', s(S_F1 + 2), 448 * 3584)); E(salu('s_mov_b32', s(S_F1 + 3), '0x00020000'))
    srd(S_WQ, kwq, 448 * 8192); srd(S_WD, kwd, 1792 * 896); srd(S_WO, kwo, 4096 * 896)
    srd(S_WS, kws, 2 * 256 * 57344)
    for (dst, ptr) in ((S_K, kk), (S_V, kv)):
        E(salu('s_lshl_b32', s(S_T2), s(S_KVH), 20)); E(salu('s_add_u32', s(S_T2), s(S_T2), 1536 * 512))
        E(salu('s_add_u32', s(dst), s(ptr), s(S_T2))); E(salu('s_addc_u32', s(dst + 1), s(ptr + 1), 0))
        E(salu('s_mov_b32', s(dst + 2), 512 * 512)); E(salu('s_mov_b32', s(dst + 3), '0x00020000'))
    if CFG.warm_w:
        srd(S_WG, kwg, 448 * 3584); srd(S_WU, kwu, 448 * 3584)
    E(valu('v_lshrrev_b32', v(V_U2), 1, v(V_R8))); E(valu('v_and_b32', v(V_U2), 3, v(V_U2)))
    E(valu('v_lshlrev_b32', v(V_U2), 1, v(V_U2))); E(valu('v_xor_b32', v(V_U2), v(V_U2), v(V_U1)))
    E(valu('v_lshlrev_b32', v(V_SC16), 4, v(V_U2)))
    P += dv_setup(V_DVA, 3584)
    E(salu('s_mul_i32', s(S_T0), s(S_KVH), 7)); E(salu('s_lshr_b32', s(S_T0), s(S_T0), 1)); E(salu('s_lshl_b32', s(S_T0), s(S_T0), 7))
    E(salu('s_mul_i32', s(S_T1), s(S_CH), 32 * 3584)); E(salu('s_add_u32', s(S_T0), s(S_T0), s(S_T1)))
    for st in range(4):
        P += sel(S_T1, S_PAR, st * 128, (3 - st) * 128)
        E(salu('s_add_u32', s(S_F1B + st), s(S_T0), s(S_T1)))
    return P

def sel(dst, cond, v0, v1):
    d = (v1 - v0) & 0xffffffff
    return [salu('s_mul_i32', s(dst), s(cond), f"0x{d:x}"), salu('s_add_u32', s(dst), s(dst), v0)]

def dv_setup(dst, stride):
    out = [salu('s_mov_b32', s(S_T2), stride),
           valu('v_mad_u32_u24', v(dst), v(V_R8), s(S_T2), v(V_SC16))]
    for j in range(1, 4):
        out.append(valu('v_add_u32', v(dst + j), j * (8 * stride - 1024), v(dst)))
    return out
def dv_setup_K(dst):
    out = [valu('v_lshrrev_b32', v(V_U0), 5, v(V_LANE)), valu('v_and_b32', v(V_U1), 31, v(V_LANE)),
           salu('s_lshl_b32', s(S_T2), s(S_RH), 3),
           valu('v_xor_b32', v(V_U1), v(V_U1), v(V_U0)),
           valu('v_xor_b32', v(V_U1), s(S_T2), v(V_U1)),
           valu('v_lshlrev_b32', v(V_U0), 9, v(V_U0))]
    for j in range(4):
        out.append(valu('v_xor_b32', v(V_U2), 2 * j, v(V_U1)))
        out.append(valu('v_lshl_add_u32', v(dst + j), v(V_U2), 4, v(V_U0)))
    return out

S_GA = {V_DVA: 68, V_DVB: 70}
S_GC = 72
_last_base = {}
def chunk_dma(c, ch):
    slot = c % NSLOT
    if CFG.gdma:
        out = []
        ga = S_GA[ch.dv]
        if _last_base.get(ch.dv) != (ch.srd, ch.soff):
            _last_base[ch.dv] = (ch.srd, ch.soff)
            out += [salu('s_add_u32', s(ga), s(ch.srd), s(ch.soff)), salu('s_addc_u32', s(ga + 1), s(ch.srd + 1), 0)]
        out += [salu('s_add_u32', 'm0', s(S_WLDS), slot * SLOT),
                salu('s_add_u32', s(S_GC), s(ga), ch.imm), salu('s_addc_u32', s(S_GC + 1), s(ga + 1), 0)]
        for j in range(4): out.append(gdma(v(ch.dv + j), s(S_GC, 2), j * 1024, tag=('dma', c)))
        return out
    out = [salu('s_add_u32', 'm0', s(S_WLDS), slot * SLOT),
           salu('s_add_u32', s(S_SOFF), s(ch.soff), ch.imm)]
    for j in range(4):
        imm = j * 1024
        out.append(dma(v(ch.dv + j), s(ch.srd, 4), s(S_SOFF), imm, tag=('dma', c)))
    return out

V_DUM = 199
def warm_code():
    out = [raw("s_getpc_b64 s[92:93]", 'salu', [], [s(92, 2)]), label("L_pc_here"),
           salu('s_and_b32', s(93), s(93), '0xffff'),
           raw("s_mov_b32 s94, L_main_code_end-L_pc_here", 'salu', [], [s(94)]), salu('s_mov_b32', s(95), '0x00020000'),
           salu('s_and_b32', s(S_T2), s(S_RB), 7), salu('s_lshl_b32', s(S_T2), s(S_T2), 2), salu('s_add_u32', s(S_T2), s(S_T2), s(S_W)),
           salu('s_lshl_b32', s(S_T2), s(S_T2), 12),
           valu('v_lshlrev_b32', v(V_U3), 6, v(V_LANE)),
           vload('buffer_load_dword', v(V_DUM), v(V_U3), s(92, 4), s(S_T2), 0, tag='warm')]
    return out
def warm_weights():
    out = []
    cnt = [0]
    def dum():
        cnt[0] += 1; return v(V_T + cnt[0] - 1)
    out += [salu('s_lshl_b32', s(S_T0), s(S_RB), 2), salu('s_add_u32', s(S_T0), s(S_T0), s(S_W))]
    def lin(srd, per64, base_sgpr_instrs):
        o = list(base_sgpr_instrs)
        o += [salu('s_mul_i32', s(S_T2), s(S_T0), per64 * 64), salu('s_add_u32', s(S_T1), s(S_T1), s(S_T2)),
              valu('v_lshlrev_b32', v(V_U3), 6, v(V_LANE)),
              valu('v_cmp_gt_u32', 'vcc', per64, v(V_LANE)), valu('v_cndmask_b32', v(V_U3), v(V_U2), v(V_U3), 'vcc'),
              vload('buffer_load_dword', dum(), v(V_U3), s(srd, 4), s(S_T1), 0, tag='warm')]
        return o
    def strided(srd, lg_per_row, stride, per64, colbase):
        o = list(colbase)
        o += [salu('s_mul_i32', s(S_T2), s(S_T0), per64),
              valu('v_add_u32', v(V_U0), s(S_T2), v(V_LANE)),
              valu('v_lshrrev_b32', v(V_U1), lg_per_row, v(V_U0)), valu('v_and_b32', v(V_U0), (1 << lg_per_row) - 1, v(V_U0)),
              salu('s_mov_b32', s(S_T2), stride), valu('v_lshlrev_b32', v(V_U0), 6, v(V_U0)),
              valu('v_mad_u32_u24', v(V_U3), v(V_U1), s(S_T2), v(V_U0)),
              valu('v_cmp_gt_u32', 'vcc', per64, v(V_LANE)), valu('v_cndmask_b32', v(V_U3), v(V_U2), v(V_U3), 'vcc'),
              vload('buffer_load_dword', dum(), v(V_U3), s(srd, 4), s(S_T1), 0, tag='warm')]
        return o
    out.append(valu('v_mov_b32', v(V_U2), '0x7ffffff0'))
    cb = [salu('s_mul_i32', s(S_T1), s(S_KVH), 7), salu('s_lshr_b32', s(S_T1), s(S_T1), 1), salu('s_lshl_b32', s(S_T1), s(S_T1), 7)]
    out += strided(S_WG, 3, 3584, 28, cb); out += strided(S_WU, 3, 3584, 28, cb)
    out += strided(S_WQ, 4, 8192, 56, [salu('s_lshl_b32', s(S_T1), s(S_KVH), 10)])
    out += lin(S_WD, 25, [salu('s_mul_i32', s(S_T1), s(S_KVH), 224 * 896)])
    out += lin(S_K, 32, [salu('s_mov_b32', s(S_T1), 0)]); out += lin(S_V, 32, [salu('s_mov_b32', s(S_T1), 0)])
    out += lin(S_WO, 56, [salu('s_mul_i32', s(S_T1), s(S_KVH), 512 * 896)])
    return out

def prologue2():
    P = []; E = P.append
    E(salu('s_lshl_b32', s(S_T0), s(S_KVH), 1)); E(salu('s_add_u32', s(S_T0), s(S_T0), s(S_CH))); E(salu('s_lshl_b32', s(S_T0), s(S_T0), 9))
    E(salu('s_lshl_b32', s(S_T1), s(S_RH), 18)); E(salu('s_add_u32', s(S_QB), s(S_T0), s(S_T1)))
    KR = 32 * 896
    E(salu('s_mul_i32', s(S_T0), s(S_KVH), 224 * 896))
    E(salu('s_mul_i32', s(S_T1), s(S_RH), KR))
    for st in range(3):
        P += sel(S_T2, S_CH, st * 128, (6 - st) * 128)
        E(salu('s_add_u32', s(S_F2B + st), s(S_T0), s(S_T2))); E(salu('s_add_u32', s(S_F2B + st), s(S_F2B + st), s(S_T1)))
    P += sel(S_T2, S_CH, 0, 6 * 128); P += sel(S_F2C3, S_CH, 128, 5 * 128)
    E(salu('s_cmp_eq_u32', s(S_RH), 0)); E(salu('s_cselect_b32', s(S_T2), s(S_T2), s(S_F2C3)))
    E(salu('s_add_u32', s(S_F2C3), s(S_T0), s(S_T2)))
    P += sel(S_T2, S_CH, 6 * KR + 2 * 128, 6 * KR + 4 * 128); P += sel(S_F2C10, S_CH, 384, KR + 384)
    E(salu('s_cmp_eq_u32', s(S_RH), 0)); E(salu('s_cselect_b32', s(S_T2), s(S_T2), s(S_F2C10)))
    E(salu('s_add_u32', s(S_F2C10), s(S_T0), s(S_T2)))
    E(salu('s_mul_i32', s(S_T2), s(S_W), KR)); E(salu('s_add_u32', s(S_F2C11), s(S_T0), s(S_T2))); E(salu('s_add_u32', s(S_F2C11), s(S_F2C11), 384))
    E(salu('s_add_u32', s(S_F2C12), s(S_T0), 6 * KR + 384))
    E(salu('s_lshl_b32', s(S_KB), s(S_W), 12)); E(salu('s_lshl_b32', s(S_VB), s(S_W), 7))
    E(salu('s_lshl_b32', s(S_T0), s(S_KVH), 9)); E(salu('s_lshl_b32', s(S_T1), s(S_RH), 5)); E(salu('s_add_u32', s(S_T0), s(S_T0), s(S_T1)))
    E(salu('s_lshl_b32', s(S_T1), s(S_CH), 8)); E(salu('s_add_u32', s(S_T1), s(S_T0), s(S_T1))); E(salu('s_mul_i32', s(S_T1), s(S_T1), 896))
    E(salu('s_xor_b32', s(S_T2), s(S_CH), 1)); E(salu('s_lshl_b32', s(S_T2), s(S_T2), 8)); E(salu('s_add_u32', s(S_T0), s(S_T0), s(S_T2))); E(salu('s_mul_i32', s(S_T0), s(S_T0), 896))
    for st in range(3):
        P += sel(S_T2, S_CH, st * 128, (6 - st) * 128)
        E(salu('s_add_u32', s(S_OOWN + st), s(S_T1), s(S_T2))); E(salu('s_add_u32', s(S_OPAR + st), s(S_T0), s(S_T2)))
    E(salu('s_add_u32', s(S_O3), s(S_T1), 384))
    E(salu('s_mul_i32', s(S_T0), s(2), 57344))
    E(salu('s_mul_i32', s(S_T1), s(S_RH), 28672)); E(salu('s_add_u32', s(S_PB), s(S_T0), s(S_T1)))
    E(salu('s_add_u32', s(S_GB), s(S_PB), 256 * 57344))
    for st in range(3):
        P += sel(S_CB + st, S_CH, 2 * st * 2048, (12 - 2 * st) * 2048)
    P += sel(S_CB + 3, S_CH, 6 * 2048, 7 * 2048)
    for st in range(3):
        P += sel(S_T0, S_PAR, 2 * st, 2 * (3 - st) - 1)
        E(salu('s_add_u32', s(S_T0), s(S_T0), s(S_CH))); E(salu('s_lshl_b32', s(S_HI + st), s(S_T0), 12))
    P += sel(S_T0, S_PAR, 6 * 4096, 0)
    E(salu('s_lshl_b32', s(S_T1), s(S_CH), 3)); E(salu('s_add_u32', s(S_HI + 3), s(S_T0), s(S_T1)))
    E(salu('s_mov_b32', s(S_THR), lit(65536.0)))
    E(salu('s_mov_b32', s(S_ONES), '0x3f803f80'))
    E(valu('v_bfe_u32', v(V_U0), v(V_LANE), 2, 2))
    E(valu('v_lshl_add_u32', v(V_U1), v(V_GQ), 2, v(V_U0)))
    E(valu('v_lshrrev_b32', v(V_U2), 1, v(V_U1))); E(valu('v_and_b32', v(V_U2), 3, v(V_U2)))
    E(valu('v_and_b32', v(V_U3), 3, v(V_LANE))); E(valu('v_lshlrev_b32', v(V_U3), 3, v(V_U3)))
    E(valu('v_lshl_add_u32', v(V_U3), v(V_U1), 7, v(V_U3)))
    for tt in range(4):
        E(valu('v_xor_b32', v(V_U0), tt, v(V_U2)))
        E(valu('v_lshl_add_u32', v(V_TA + tt), v(V_U0), 5, v(V_U3)))
        E(valu('v_add_u32', v(V_TA + 4 + tt), HIOFF, v(V_TA + tt)))
    E(salu('s_lshl_b32', s(S_T0), s(S_CH), 13))
    for tt in range(8):
        E(valu('v_add_u32', v(V_TAC + tt), s(S_T0), v(V_TA + tt)))
    E(salu('s_lshl_b32', s(S_T0), s(S_CH), 1))
    for ti in range(2):
        E(salu('s_add_u32', s(S_T1), s(S_T0), ti))
        E(valu('v_xor_b32', v(V_U0), s(S_T1), v(V_U2)))
        E(valu('v_lshl_add_u32', v(V_TS + ti), v(V_U0), 5, v(V_U3)))
        E(valu('v_add_u32', v(V_TS + 2 + ti), HIOFF, v(V_TS + ti)))
    E(salu('s_lshl_b32', s(S_T0), s(S_PAR), 1)); E(salu('s_add_u32', s(S_T1), s(S_T0), s(S_CH)))
    E(valu('v_xor_b32', v(V_U0), s(S_T1), v(V_U2)))
    E(valu('v_lshl_add_u32', v(V_TH), v(V_U0), 5, v(V_U3)))
    E(valu('v_add_u32', v(V_TH + 1), HIOFF, v(V_TH)))
    for i in range(4):
        E(valu('v_add_u32', v(V_U0), 4 * i, v(V_GQ))); E(valu('v_xor_b32', v(V_U0), v(V_U0), v(V_N16)))
        E(valu('v_lshlrev_b32', v(V_U0), 4, v(V_U0)))
        E(valu('v_lshl_add_u32', v(V_KA + i), v(V_N16), 9, v(V_U0)))
        E(valu('v_add_u32', v(V_KA + 4 + i), HIOFF, v(V_KA + i)))
    E(salu('s_lshl_b32', s(S_T0), s(S_RH), 11)); E(salu('s_add_u32', s(S_T0), s(S_T0), XA))
    E(valu('v_add_u32', v(V_HR), s(S_T0), v(V_L16)))
    E(salu('s_lshl_b32', s(S_T0), s(S_W), 14)); E(salu('s_add_u32', s(S_T0), s(S_T0), XA))
    E(valu('v_add_u32', v(V_XW), s(S_T0), v(V_L16)))
    E(salu('s_xor_b32', s(S_T0), s(S_W), 2)); E(salu('s_lshl_b32', s(S_T0), s(S_T0), 14)); E(salu('s_add_u32', s(S_T0), s(S_T0), XA))
    E(valu('v_add_u32', v(V_XR), s(S_T0), v(V_L16)))
    E(valu('v_mov_b32', v(V_C1), lit(C_GELU1)))
    return P

def layernorm():
    P = []; E = P.append
    ACC = 64
    for p in range(2):
        b = ACC + 4 * p
        for k in range(4): E(valu('v_mov_b32', v(b + k), 0))
        for n in range(28):
            d = p * 28 + n
            E(valu('v_dot2_f32_bf16', v(b + (n & 1)), v(d), s(S_ONES), v(b + (n & 1))))
            E(valu('v_dot2_f32_bf16', v(b + 2 + (n & 1)), v(d), v(d), v(b + 2 + (n & 1))))
        E(valu('v_add_f32', v(b), v(b), v(b + 1))); E(valu('v_add_f32', v(b + 2), v(b + 2), v(b + 3)))
    for mods in ("quad_perm:[1,0,3,2] row_mask:0xf bank_mask:0xf", "quad_perm:[2,3,0,1] row_mask:0xf bank_mask:0xf", "row_half_mirror row_mask:0xf bank_mask:0xf"):
        for p in range(2):
            for k in (0, 2):
                r = ACC + 4 * p + k
                E(valu('v_add_f32_dpp', v(r), v(r), v(r), mods=mods))
    for p in range(2):
        b = ACC + 4 * p
        E(valu('v_mul_f32', v(b), lit(1.0 / 448), v(b)))
        E(valu('v_mul_f32', v(b + 2), lit(1.0 / 448), v(b + 2)))
        E(valu('v_fma_f32', v(b + 2), '-' + v(b), v(b), v(b + 2)))
        E(valu('v_max_f32', v(b + 2), 0, v(b + 2)))
        E(valu('v_add_f32', v(b + 2), lit(1e-5), v(b + 2)))
        E(valu('v_rsq_f32', v(b + 2), v(b + 2)))
        E(valu('v_mul_f32', v(b), v(b), v(b + 2)))
    E(valu('v_and_b32', v(V_U0), 7, v(V_LANE)))
    E(valu('v_and_b32', v(V_U1), 3, v(V_U0)))
    E(valu('v_lshrrev_b32', v(V_U0), 2, v(V_U0))); E(valu('v_lshlrev_b32', v(V_U0), 6, v(V_U0)))
    E(valu('v_and_b32', v(V_U2), 1, v(V_U1))); E(valu('v_lshl_add_u32', v(V_U0), v(V_U2), 5, v(V_U0)))
    E(valu('v_lshrrev_b32', v(V_U1), 1, v(V_U1))); E(valu('v_lshl_add_u32', v(V_U0), v(V_U1), 3, v(V_U0)))
    E(salu('s_mov_b32', s(S_T0), XROW)); E(valu('v_mad_u32_u24', v(V_U0), v(V_R8), s(S_T0), v(V_U0)))
    E(salu('s_mul_i32', s(S_T1), s(S_W), 16 * XROW)); E(salu('s_add_u32', s(S_T1), s(S_T1), XA))
    E(valu('v_add_u32', v(V_U0), s(S_T1), v(V_U0)))
    E(valu('v_add_u32', v(V_U1), 8 * XROW, v(V_U0)))
    E(salu('s_mov_b32', s(S_T2), '0xffff0000'))
    T = 72
    for p in range(2):
        b = ACC + 4 * p
        for i in range(7):
            d0 = (p * 7 + i) * 4
            for k in range(4):
                t = T + 2 * k
                E(valu('v_lshlrev_b32', v(t), 16, v(d0 + k))); E(valu('v_and_b32', v(t + 1), s(S_T2), v(d0 + k)))
            for k in range(4):
                t = T + 2 * k
                E(valu('v_fma_f32', v(t), v(t), v(b + 2), '-' + v(b))); E(valu('v_fma_f32', v(t + 1), v(t + 1), v(b + 2), '-' + v(b)))
            for k in range(4):
                t = T + 2 * k
                E(valu('v_cvt_pk_bf16_f32', v(d0 + k), v(t), v(t + 1)))
            E(ds_write2_b64(v(V_U0 + p), v(d0, 2), v(d0 + 2, 2), 16 * i, 16 * i + 2, tag='xw'))
    E(wait_lgkm_tag('xw')); E(barrier())
    E(salu('s_lshl_b32', s(S_T0), s(S_RH), 5)); E(valu('v_add_u32', v(V_U0), s(S_T0), v(V_N16)))
    E(salu('s_mov_b32', s(S_T0), XROW)); E(valu('v_lshlrev_b32', v(V_U1), 4, v(V_GQ)))
    E(valu('v_mad_u32_u24', v(V_U0), v(V_U0), s(S_T0), v(V_U1))); E(valu('v_add_u32', v(V_U0), XA, v(V_U0)))
    for ks in range(14):
        for ct in range(2):
            E(ds_read('ds_read_b128', a(A_XB + (ks * 2 + ct) * 4, 4), v(V_U0), ks * 64 + ct * 16 * XROW, tag='xb'))
    return P

def interleave(*lists):
    out = []; its = [list(l) for l in lists]
    while any(its):
        for l in its:
            if l: out.append(l.pop(0))
    return out

def geglu(st):
    base = accset(st); out = []
    tis = range(2) if st < 3 else range(1)
    TT = 64; HP = 80
    out.append(valu('v_add_u32', v(V_HW), s(S_HI + st), v(V_HR)))
    for ct in range(2):
        for ti in tis:
            G = base + ((0 * 2 + ti) * 2 + ct) * 4; U = base + ((1 * 2 + ti) * 2 + ct) * 4
            t = [TT + k for k in range(4)]; e = [TT + 4 + k for k in range(4)]
            for k in range(4): out.append(valu('v_mul_f32', v(t[k]), v(G + k), v(G + k)))
            for k in range(4): out.append(valu('v_fmaak_f32', v(t[k]), v(t[k]), v(V_C1), lit(C_GELU0)))
            for k in range(4): out.append(valu('v_mul_f32', v(t[k]), v(G + k), v(t[k])))
            for k in range(4): out.append(valu('v_exp_f32', v(e[k]), v(t[k])))
            for k in range(4): out.append(valu('v_mul_f32', v(t[k]), v(G + k), v(U + k)))
            for k in range(4): out.append(valu('v_add_f32', v(e[k]), '1.0', v(e[k])))
            for k in range(4): out.append(valu('v_rcp_f32', v(e[k]), v(e[k])))
            hp = HP + ct * 4 + ti * 2
            for k in range(4): out.append(valu('v_mul_f32', v(t[k]), v(t[k]), v(e[k])))
            out.append(valu('v_cvt_pk_bf16_f32', v(hp), v(t[0]), v(t[1]))); out.append(valu('v_cvt_pk_bf16_f32', v(hp + 1), v(t[2]), v(t[3])))
        if st < 3: out.append(ds_write('ds_write_b128', v(V_HW), v(HP + ct * 4, 4), ct * 1024, tag='hw'))
        else: out.append(ds_write('ds_write_b64', v(V_HW), v(HP + ct * 4, 2), ct * 1024, tag='hw'))
    return out

def qconv(st):
    base = accset(4 + st); out = []
    for pp in range(2):
        for ct in range(2):
            X0 = base + ((2 * pp) * 2 + ct) * 4; X1 = base + ((2 * pp + 1) * 2 + ct) * 4
            t = 64 + 8 * ct; h = 80 + 4 * ct
            for k in range(4): out.append(valu('v_mul_f32', v(t + k), lit(C_QS), v(X0 + k)))
            for k in range(4): out.append(valu('v_mul_f32', v(t + 4 + k), lit(C_QS), v(X1 + k)))
            for k in range(4): out.append(valu('v_cvt_pk_bf16_f32', v(h + k), v(t + 2 * k), v(t + 2 * k + 1)))
            out.append(valu('v_permlane32_swap_b32', v(h), v(h + 2))); out.append(valu('v_permlane32_swap_b32', v(h + 1), v(h + 3)))
            out.append(nop(0))
            out.append(valu('v_permlane16_swap_b32', v(h), v(h + 2))); out.append(valu('v_permlane16_swap_b32', v(h + 1), v(h + 3)))
            ks = 2 * st + pp
            for k in range(4): out.append(valu('v_accvgpr_write_b32', a(A_Q + (ks * 2 + ct) * 4 + k), v(h + k)))
    return out

def gconv(st):
    base = accset(8 + st); out = []
    pps = range(2) if st < 3 else range(1)
    for pp in pps:
        for ct in range(2):
            if st < 3: X0 = base + ((2 * pp) * 2 + ct) * 4; X1 = base + ((2 * pp + 1) * 2 + ct) * 4
            else: X0 = base + (0 * 2 + ct) * 4; X1 = base + (1 * 2 + ct) * 4
            h = 80 + 4 * ct
            out.append(valu('v_cvt_pk_bf16_f32', v(h), v(X0), v(X0 + 1))); out.append(valu('v_cvt_pk_bf16_f32', v(h + 1), v(X0 + 2), v(X0 + 3)))
            out.append(valu('v_cvt_pk_bf16_f32', v(h + 2), v(X1), v(X1 + 1))); out.append(valu('v_cvt_pk_bf16_f32', v(h + 3), v(X1 + 2), v(X1 + 3)))
            li = st * 2 + pp
            for k in range(4): out.append(valu('v_accvgpr_write_b32', a(A_G + (li * 2 + ct) * 4 + k), v(h + k)))
    return out
def gstore(li, ct):
    st, pp = li // 2, li % 2
    return [salu('s_add_u32', s(S_T0), s(S_GB), s(S_CB + st)),
            vstore('buffer_store_dwordx4', a(A_G + (li * 2 + ct) * 4, 4), v(V_L16), s(S_WS, 4), s(S_T0), pp * 2048 + ct * 1024, CFG.store_flags, tag='gst')]

def sconv(st):
    base = 128 + 32 * (st & 1); out = []
    pps = range(2) if st < 3 else range(1)
    out.append(salu('s_add_u32', s(S_T1), s(S_PB), s(S_CB + st)))
    n = 0
    for pp in pps:
        for ct in range(2):
            if st < 3: X0 = base + ((2 * pp) * 2 + ct) * 4; X1 = base + ((2 * pp + 1) * 2 + ct) * 4
            else: X0 = 160 + (0 * 2 + ct) * 4; X1 = 160 + (1 * 2 + ct) * 4
            h = 192 + 4 * (n & 1); n += 1
            out.append(valu('v_cvt_pk_bf16_f32', v(h), v(X0), v(X0 + 1))); out.append(valu('v_cvt_pk_bf16_f32', v(h + 1), v(X0 + 2), v(X0 + 3)))
            out.append(valu('v_cvt_pk_bf16_f32', v(h + 2), v(X1), v(X1 + 1))); out.append(valu('v_cvt_pk_bf16_f32', v(h + 3), v(X1 + 2), v(X1 + 3)))
            out.append(vstore('buffer_store_dwordx4', v(h, 4), v(V_L16), s(S_WS, 4), s(S_T1), pp * 2048 + ct * 1024, CFG.store_flags, tag='sst'))
    return out

def xlane_reduce(op, reg, tmp):
    return [valu('v_mov_b32', v(tmp), v(reg)), nop(0), valu('v_permlane16_swap_b32', v(reg), v(tmp)), nop(0), valu(op, v(reg), v(reg), v(tmp)),
            valu('v_mov_b32', v(tmp), v(reg)), nop(0), valu('v_permlane32_swap_b32', v(reg), v(tmp)), nop(0), valu(op, v(reg), v(reg), v(tmp))]

def Sreg(t, T, ct): return V_S + 16 * (t & 1) + (ct * 2 + T) * 4
def Preg(t, ct): return V_P + 8 * (t & 1) + ct * 4

def softmax_first():
    out = []
    for ct in range(2):
        r = [Sreg(0, 0, ct) + k for k in range(4)] + [Sreg(0, 1, ct) + k for k in range(4)]
        m = V_T + ct
        out.append(valu('v_max3_f32', v(m), v(r[0]), v(r[1]), v(r[2])))
        out.append(valu('v_max3_f32', v(m), v(m), v(r[3]), v(r[4])))
        out.append(valu('v_max3_f32', v(m), v(m), v(r[5]), v(r[6])))
        out.append(valu('v_max_f32', v(m), v(m), v(r[7])))
    a0 = xlane_reduce('v_max_f32', V_T, V_T + 2); a1 = xlane_reduce('v_max_f32', V_T + 1, V_T + 3)
    out += interleave(a0, a1)
    for ct in range(2):
        for k in range(4): out.append(valu('v_sub_f32', v(V_NEGM + 4 * ct + k), 0, v(V_T + ct)))
    for ct in range(2):
        for T in range(2):
            for k in range(4): out.append(valu('v_add_f32', v(Sreg(0, T, ct) + k), v(V_NEGM + 4 * ct), v(Sreg(0, T, ct) + k)))
    out.append(valu('v_mov_b32', v(V_L0), 0)); out.append(valu('v_mov_b32', v(V_L1), 0))
    return out
def s1_fix():
    out = []
    for ct in range(2):
        for T in range(2):
            for k in range(4): out.append(valu('v_add_f32', v(Sreg(1, T, ct) + k), v(V_NEGM + 4 * ct), v(Sreg(1, T, ct) + k)))
    return out
def softmax_body(t):
    out = []
    for ct in range(2):
        ts = V_TS0 + ct
        for T in range(2):
            S = Sreg(t, T, ct); e = V_T + 4 * T
            for k in range(4): out.append(valu('v_exp_f32', v(e + k), v(S + k)))
            if T == 0:
                out.append(valu('v_add_f32', v(ts), v(e), v(e + 1)))
            else:
                out.append(valu('v_add_f32', v(ts), v(ts), v(e)));
            out.append(valu('v_cvt_pk_bf16_f32', v(Preg(t, ct) + 2 * T), v(e), v(e + 1)))
            if T == 1: out.append(valu('v_add_f32', v(ts), v(ts), v(e + 1)))
            out.append(valu('v_add_f32', v(ts), v(ts), v(e + 2)))
            out.append(valu('v_cvt_pk_bf16_f32', v(Preg(t, ct) + 2 * T + 1), v(e + 2), v(e + 3)))
            out.append(valu('v_add_f32', v(ts), v(ts), v(e + 3)))
    return out
def softmax_check(t):
    return [valu('v_max_f32', v(V_TM), v(V_TS0), v(V_TS1)),
            valu('v_cmp_lt_f32', 'vcc', s(S_THR), v(V_TM)),
            raw(f"s_cbranch_vccnz L_slow_{t}", 'branch', ['vcc']),
            label(f"L_back_{t}"),
            valu('v_add_f32', v(V_L0), v(V_L0), v(V_TS0)), valu('v_add_f32', v(V_L1), v(V_L1), v(V_TS1))]

def slow_path(par):
    t = par
    o = []
    o.append(label(f"L_slowsub_{par}"))
    o.append(nop(15))
    for ct in range(2):
        r = [Sreg(t, 0, ct) + k for k in range(4)] + [Sreg(t, 1, ct) + k for k in range(4)]
        m = V_T + ct
        o += [valu('v_max3_f32', v(m), v(r[0]), v(r[1]), v(r[2])), valu('v_max3_f32', v(m), v(m), v(r[3]), v(r[4])),
              valu('v_max3_f32', v(m), v(m), v(r[5]), v(r[6])), valu('v_max_f32', v(m), v(m), v(r[7]))]
        o += xlane_reduce('v_max_f32', m, V_T + 2)
        o.append(valu('v_max_f32', v(m), 0, v(m)))
    for ct in range(2):
        d = V_T + ct; f = V_T + 2 + ct
        o.append(valu('v_sub_f32', v(f), 0, v(d))); o.append(valu('v_exp_f32', v(f), v(f)))
        for k in range(4): o.append(valu('v_sub_f32', v(V_NEGM + 4 * ct + k), v(V_NEGM + 4 * ct + k), v(d)))
        for tt in (t, t + 1):
            for T in range(2):
                for k in range(4): o.append(valu('v_sub_f32', v(Sreg(tt, T, ct) + k), v(Sreg(tt, T, ct) + k), v(d)))
        o.append(valu('v_mul_f32', v(V_L0 + ct), v(V_L0 + ct), v(f)))
        for dt in range(16):
            b = ((dt >> 1) * 2 + ct) * 8 + (dt & 1) * 4
            for k in range(4): o.append(valu('v_mul_f32', v(b + k), v(b + k), v(f)))
    o += softmax_body(t)
    o.append(nop(3))
    o.append(raw(f"s_setpc_b64 s[{S_RET}:{S_RET+1}]", 'branch', [s(S_RET, 2)]))
    return o

def onorm(i):
    ct = i & 1; b = 8 * i; rl = V_RL0 + ct; t = V_T
    out = []
    for k in range(8): out.append(valu('v_mul_f32', v(t + k), v(b + k), v(rl)))
    for k in range(4): out.append(valu('v_cvt_pk_bf16_f32', v(b + k), v(t + 2 * k), v(t + 2 * k + 1)))
    out.append(ds_write('ds_write_b128', v(V_XW), v(b, 4), i * 1024, tag='ow'))
    return out

def build():
    _last_base.clear()
    chunks, groups, marks = build_main()
    nchunks = len(chunks)
    fcount = 0
    for g in groups:
        g.bufs = []
        for _ in g.frs:
            g.bufs.append(A_FB + 4 * (fcount % CFG.nb)); fcount += 1
        g.f0 = fcount - len(g.frs)
        g.mf = g.mk(g.bufs)
    mstart = []; m = 0
    for g in groups:
        mstart.append(m); m += len(g.mf)
    mstart.append(m); NM = m
    M = {k: mstart[i] for k, i in marks.items()}
    chunk_first_m = {}
    for gi, g in enumerate(groups): chunk_first_m.setdefault(g.chunk, mstart[gi])

    side = []
    seq = [0]
    def spread(ins, m0, m1):
        n = len(ins)
        for k, x in enumerate(ins):
            side.append((m0 + (m1 - m0) * k / max(n, 1), seq[0], x)); seq[0] += 1
    def at(ins, m0):
        for x in ins:
            side.append((m0, seq[0], x)); seq[0] += 1
    LAT = 6
    nxt = ["F1_1", "F1_2", "F1_3", "Q_0"]; nxt_end = ["F1_2", "F1_3", "Q_0", "Q_1"]
    for st in range(4):
        m0 = M[nxt[st]] + LAT; m1 = M[nxt_end[st]] - 4
        if st == 2: m1 = M["Q_0"] + 40
        if st == 3: m0 = M["Q_0"] + 44; m1 = M["Q_1"] - 8
        geglu_windows = None
        spread(geglu(st), m0, m1)
    pre_barrier = {}
    def first_chunk(name):
        return min(i for i, c in enumerate(chunks) if c.name.startswith(name))
    pre_dma = {}
    pre_dma[first_chunk("Q ")] = dv_setup(V_DVB, 8192)
    pre_dma[first_chunk("F2")] = dv_setup(V_DVA, 896)
    pre_dma[first_chunk("K0")] = dv_setup_K(V_DVB)
    pre_dma[first_chunk("V0")] = dv_setup(V_DVA, 512)
    pre_dma[first_chunk("O ")] = dv_setup(V_DVB, 896)
    qn = ["Q_1", "Q_2", "Q_3", "F2_0"]; qe = ["Q_2", "Q_3", "F2_0", "F2_1"]
    for st in range(4):
        spread(qconv(st), M[qn[st]] + LAT, M[qe[st]] - 8)
    hc = first_chunk("Q s1 j2")
    fence = {hc: ['hw']}; fence_count = {'hw': 8, 'ow': 16}
    hreads = [ds_read('ds_read_b128', a(A_H + (ks * 2 + ct) * 4, 4), v(V_HR), ks * 4096 + ct * 1024, tag='hr') for ks in range(7) for ct in range(2)]
    spread(hreads, chunk_first_m[hc] + 2, M["Q_2"] - 4)
    spread(gconv(0), M["F2_1"] + LAT, M["F2_2"] - 8)
    spread(gconv(1), M["F2_2"] + LAT, M["F2_3"] - 8)
    spread(gconv(2), M["F2_3"] + LAT, M["S_0"] + 8)
    spread(gconv(3), M["S_0"] + 12, M["S_1"] - 2)
    spread(softmax_first() + softmax_body(0), M["S_1"] + LAT, M["S_2"] - 2)
    at([valu('v_add_f32', v(V_L0), v(V_L0), v(V_TS0)), valu('v_add_f32', v(V_L1), v(V_L1), v(V_TS1))], M["S_2"] - 1)
    for t in range(1, 16):
        if t < 15: m0, m1 = M[f"S_{t+1}"], (M[f"S_{t+2}"] if t < 14 else M["PV_14"])
        else: m0, m1 = M["PV_14"], M["PV_15"]
        body = softmax_body(t)
        if t == 1: body = s1_fix() + body
        spread(body, m0 + (LAT if t == 1 else 1), m1 - 3)
        at(softmax_check(t), m1 - 1)
    k = 0
    for li in range(7):
        for ct in range(2):
            t = 1 + k
            at(gstore(li, ct), M[f"PV_{t-1}"] + 8); k += 1
    fin = interleave(xlane_reduce('v_add_f32', V_L0, V_T), xlane_reduce('v_add_f32', V_L1, V_T + 1))
    fin += [valu('v_rcp_f32', v(V_RL0), v(V_L0)), valu('v_rcp_f32', v(V_RL1), v(V_L1))]
    spread(fin, M["PV_15"], M["PV_15"] + 10)
    allnorm = []
    for ks in range(8): allnorm += onorm(2 * ks) + onorm(2 * ks + 1)
    spread(allnorm, M["PV_15"] + 12, M["O_0"] + 28)
    oc = first_chunk("O s0 j3")
    fence[oc] = ['ow']
    preads = [ds_read('ds_read_b128', a(A_PART + i * 4, 4), v(V_XR), i * 1024, tag='pr') for i in range(16)]
    spread(preads, chunk_first_m[oc] + 0, M["O_part"] - 4)
    o3 = [salu('s_lshl_b32', s(S_T0), s(S_CH), 13), salu('s_xor_b32', s(S_T2), s(S_T0), 8192)]
    for k in range(4): o3.append(valu('v_add_u32', v(V_TS + 4 + k), s(S_T2), v(V_TS + k)))
    for k in range(4): o3.append(valu('v_add_u32', v(V_TS + k), s(S_T0), v(V_TS + k)))
    spread(o3, M["O_1"] + 8, M["O_1"] + 30)
    spread(sconv(0), M["O_1"] + LAT, M["O_1"] + 40)
    spread(sconv(1), M["O_2"] + LAT, M["O_2"] + 40)
    spread(sconv(2), M["O_3"] + LAT, M["O_3"] + 30)
    tail = sconv(3)

    STAMP = ["F1_0", "Q_0", "F2_0", "S_0", "S_2", "PV_14", "O_0"]
    if CFG.stamps:
        for k, nm in enumerate(STAMP):
            at([raw(f"s_memrealtime s[{74+2*k}:{75+2*k}]", 'salu')], M[nm])
    side.sort(key=lambda x: (x[0], x[1]))
    P = prologue()
    if CFG.stamps:
        P.insert(2, raw("s_memrealtime s[88:89]", 'salu'))
        P.append(raw("s_mov_b32 s67, s88", 'salu'))
    if CFG.warm_code: P += warm_code()
    for c in range(AHEAD): P += chunk_dma(c, chunks[c])
    if CFG.warm_w: P += warm_weights()
    P += prologue2()
    P += layernorm()
    sp = 0
    opened = -1
    rq = []
    for gi, g in enumerate(groups):
        g.reads = []
        for fi, fr in enumerate(g.frs):
            g.reads += fr(g.bufs[fi], g.chunk % NSLOT, g.chunk)
    dq = []
    rg = 0
    ri = 0
    def open_chunk(c):
        nonlocal opened
        if c >= 2: P.append(wait_lgkm_tag([('rd', c - 2)]))
        if c in fence:
            for tg in fence[c]:
                have = sum(1 for x in P if x.tag == tg); want = fence_count[tg]
                assert have == want, (tg, have, want)
            P.append(wait_lgkm_tag(fence[c]))
        P.append(wait_vm_tag([('dma', c)]))
        P.append(barrier())
        opened = c
        n = c + AHEAD
        if n < nchunks:
            if n in pre_dma: dq.extend(pre_dma[n])
            dq.extend(chunk_dma(n, chunks[n]))
    def can_read(gidx, cur):
        g = groups[gidx]
        lastf = g.f0 + len(g.frs) - 1
        prevf = lastf - CFG.nb
        if prevf < 0: return True
        return groups[cur].f0 > prevf
    def issue_reads(cur, maxn):
        nonlocal rg, ri
        n = 0
        while rg < len(groups) and n < maxn and can_read(rg, cur):
            g = groups[rg]
            if g.chunk > opened:
                flush_dq()
                open_chunk(g.chunk)
            P.append(g.reads[ri]); ri += 1; n += 1
            if ri == len(g.reads): rg += 1; ri = 0
        return n
    def flush_dq(maxn=None):
        n = 0
        while dq and (maxn is None or n < maxn):
            x = dq.pop(0); P.append(x)
            if x.kind == 'dma': n += 1
    while rg < len(groups) and groups[rg].f0 + len(groups[rg].frs) <= CFG.nb: issue_reads(0, 1) or None
    mi = 0
    next_dma = [0]
    for gi, g in enumerate(groups):
        while rg <= gi:
            if not issue_reads(gi, 8): raise Exception("cannot issue reads")
        for k, mf in enumerate(g.mf):
            P.append(mf)
            issue_reads(gi + (1 if k == len(g.mf) - 1 else 0) if gi + 1 < len(groups) else gi, 1 if len(g.mf) >= 4 else 2)
            if mi >= next_dma[0] and dq:
                flush_dq(1); next_dma[0] = mi + CFG.dma_gap
            while sp < len(side) and side[sp][0] <= mi:
                P.append(side[sp][2]); sp += 1
            mi += 1
    while sp < len(side):
        P.append(side[sp][2]); sp += 1
    P += tail
    if CFG.stamps: P.append(raw("s_memrealtime s[44:45]", 'salu'))
    P.append(raw("s_waitcnt vmcnt(0)", 'wait_raw'))
    if CFG.stamps:
        P.append(raw("s_memrealtime s[46:47]", 'salu'))
        P.append(raw("s_waitcnt lgkmcnt(0)", 'wait_raw'))
        P.append(salu('s_lshl_b32', s(S_T0), s(2), 2)); P.append(salu('s_add_u32', s(S_T0), s(S_T0), s(S_W))); P.append(salu('s_lshl_b32', s(S_T0), s(S_T0), 6))
        P.append(salu('s_add_u32', s(S_T0), s(S_T0), 30 << 20)); P.append(salu('s_mov_b32', s(S_WS + 2), 40 << 20))
        order = [67] + [74 + 2 * k for k in range(len(STAMP))] + [44, 46, 46, 46]
        for k, r in enumerate(order): P.append(valu('v_mov_b32', v(k), s(r)))
        P.append(valu('v_mov_b32', v(16), 0))
        P.append(raw("s_mov_b64 exec, 1", 'salu'))
        for k in range(3): P.append(vstore('buffer_store_dwordx4', v(4 * k, 4), v(16), s(S_WS, 4), s(S_T0), 16 * k))
        P.append(raw("s_waitcnt vmcnt(0)", 'wait_raw'))
    P.append(label("L_main_end")); P.append(raw("s_endpgm", 'branch'))
    for t in range(1, 16):
        P.append(label(f"L_slow_{t}"))
        P.append(raw(f"s_call_b64 s[{S_RET}:{S_RET+1}], L_slowsub_{t & 1}", 'branch', [], [s(S_RET, 2)]))
        P.append(raw(f"s_branch L_back_{t}", 'branch'))
    P += slow_path(0); P += slow_path(1)
    P.append(label("L_main_code_end"))
    if CFG.stampop != 's_memrealtime':
        for x in P:
            if x.text.startswith('s_memrealtime'): x.text = x.text.replace('s_memrealtime', CFG.stampop)
    Pf, stats = finalize(P)
    if 'nodma' in CFG.abl: Pf = [x for x in Pf if x.kind != 'dma']
    if 'nobar' in CFG.abl: Pf = [x for x in Pf if x.kind != 'barrier']
    if 'novm' in CFG.abl: Pf = [x for x in Pf if not (x.kind == 'wait' and 'vmcnt' in x.text)]
    if 'noread' in CFG.abl: Pf = [x for x in Pf if not (x.kind == 'ds_read' and isinstance(x.tag, tuple))]
    if 'novalu' in CFG.abl:
        k0 = [i for i, x in enumerate(Pf) if x.kind == 'mfma'][0]
        Pf = [x for i, x in enumerate(Pf) if i < k0 or x.kind not in ('valu', 'trans', 'permlane') or x.text.startswith('v_mov_b32 v') or 'v_cmp' in x.text]
    if 'nolgkm' in CFG.abl:
        k0 = [i for i, x in enumerate(Pf) if x.kind == 'mfma'][0]
        Pf = [x for i, x in enumerate(Pf) if i < k0 or not (x.kind == 'wait' and 'lgkm' in x.text)]
    if 'nostore' in CFG.abl: Pf = [x for x in Pf if not (x.kind == 'vstore' and x.tag in ('gst', 'sst'))]
    return Pf, stats, M, NM

def reduce_kernel():
    P = []; E = P.append
    E(salu('s_cmp_ge_u32', s(2), 448)); E(raw("s_cbranch_scc1 L_red_end", 'branch'))
    E(raw("s_load_dwordx2 s[4:5], s[0:1], 0")); E(raw("s_load_dwordx2 s[6:7], s[0:1], 72")); E(raw("s_load_dwordx2 s[8:9], s[0:1], 88"))
    E(valu('v_and_b32', v(1), 63, v(0))); E(valu('v_lshrrev_b32', v(2), 6, v(0)))
    E(valu('v_lshlrev_b32', v(3), 4, v(1)))
    E(valu('v_readfirstlane_b32', s(20), v(2)))
    E(salu('s_lshl_b32', s(21), s(2), 2)); E(salu('s_add_u32', s(21), s(21), s(20)))
    E(salu('s_mul_hi_u32', s(22), s(21), (2 ** 32 + 55) // 56))
    E(salu('s_mul_i32', s(23), s(22), 56)); E(salu('s_sub_u32', s(23), s(21), s(23)))
    E(raw("s_waitcnt lgkmcnt(0)", 'wait_raw'))
    E(salu('s_mov_b32', s(12), s(8))); E(salu('s_mov_b32', s(13), s(9))); E(salu('s_mov_b32', s(14), 2 * 256 * 57344)); E(salu('s_mov_b32', s(15), '0x00020000'))
    E(salu('s_mul_i32', s(24), s(22), 8 * 57344)); E(salu('s_lshl_b32', s(25), s(23), 10)); E(salu('s_add_u32', s(24), s(24), s(25)))
    for which in range(2):
        for k in range(8):
            E(salu('s_add_u32', s(26), s(24), which * 256 * 57344 + k * 57344))
            E(vload('buffer_load_dwordx4', v(16 + (which * 8 + k) * 4, 4), v(3), s(12, 4), s(26), 0, tag='p'))
    E(salu('s_and_b32', s(27), s(23), 1))
    E(salu('s_lshr_b32', s(28), s(23), 1))
    E(salu('s_cmp_ge_u32', s(28), 14)); E(salu('s_cselect_b32', s(29), 1, 0))
    E(salu('s_mul_i32', s(30), s(29), 14)); E(salu('s_sub_u32', s(28), s(28), s(30)))
    E(salu('s_lshl_b32', s(30), s(22), 6)); E(salu('s_lshl_b32', s(31), s(29), 5)); E(salu('s_add_u32', s(30), s(30), s(31)))
    E(salu('s_lshl_b32', s(31), s(27), 4)); E(salu('s_add_u32', s(30), s(30), s(31)))
    E(salu('s_mul_i32', s(30), s(30), 896)); E(salu('s_lshl_b32', s(31), s(28), 6)); E(salu('s_add_u32', s(30), s(30), s(31)))
    E(valu('v_and_b32', v(4), 15, v(1))); E(valu('v_lshrrev_b32', v(5), 4, v(1)))
    E(salu('s_mov_b32', s(32), 896)); E(valu('v_lshlrev_b32', v(5), 4, v(5))); E(valu('v_mad_u32_u24', v(4), v(4), s(32), v(5)))
    E(salu('s_mov_b32', s(16), s(4))); E(salu('s_mov_b32', s(17), s(5))); E(salu('s_mov_b32', s(18), 2048 * 896)); E(salu('s_mov_b32', s(19), '0x00020000'))
    E(vload('buffer_load_dwordx4', v(8, 4), v(4), s(16, 4), s(30), 0, tag='x'))
    E(salu('s_mov_b32', s(33), '0xffff0000'))
    for which in range(2):
        acc = 80 + 8 * which
        for k in range(8):
            src = 16 + (which * 8 + k) * 4
            for d in range(4):
                E(valu('v_lshlrev_b32', v(96), 16, v(src + d))); E(valu('v_and_b32', v(97), s(33), v(src + d)))
                if k == 0:
                    E(valu('v_mov_b32', v(acc + 2 * d), v(96))); E(valu('v_mov_b32', v(acc + 2 * d + 1), v(97)))
                else:
                    E(valu('v_add_f32', v(acc + 2 * d), v(acc + 2 * d), v(96))); E(valu('v_add_f32', v(acc + 2 * d + 1), v(acc + 2 * d + 1), v(97)))
    for k in range(8): E(valu('v_mul_f32', v(100 + k), lit(-math.log2(math.e)), v(88 + k)))
    for k in range(8): E(valu('v_exp_f32', v(100 + k), v(100 + k)))
    for k in range(8): E(valu('v_add_f32', v(100 + k), '1.0', v(100 + k)))
    for k in range(8): E(valu('v_rcp_f32', v(100 + k), v(100 + k)))
    for k in range(8): E(valu('v_mul_f32', v(88 + k), v(88 + k), v(100 + k)))
    for k in range(8): E(valu('v_mul_f32', v(80 + k), v(80 + k), v(88 + k)))
    for k in range(4): E(valu('v_cvt_pk_bf16_f32', v(108 + k), v(80 + 2 * k), v(81 + 2 * k)))
    E(valu('v_permlane32_swap_b32', v(108), v(110))); E(valu('v_permlane32_swap_b32', v(109), v(111)))
    E(valu('v_permlane16_swap_b32', v(108), v(110))); E(valu('v_permlane16_swap_b32', v(109), v(111)))
    for d in range(4):
        E(valu('v_lshlrev_b32', v(80 + 2 * d), 16, v(108 + d))); E(valu('v_and_b32', v(81 + 2 * d), s(33), v(108 + d)))
        E(valu('v_lshlrev_b32', v(88 + 2 * d), 16, v(8 + d))); E(valu('v_and_b32', v(89 + 2 * d), s(33), v(8 + d)))
    for k in range(8): E(valu('v_add_f32', v(80 + k), v(80 + k), v(88 + k)))
    for k in range(4): E(valu('v_cvt_pk_bf16_f32', v(108 + k), v(80 + 2 * k), v(81 + 2 * k)))
    E(salu('s_mov_b32', s(16), s(6))); E(salu('s_mov_b32', s(17), s(7)))
    E(vstore('buffer_store_dwordx4', v(108, 4), v(4), s(16, 4), s(30), 0))
    E(raw("s_waitcnt vmcnt(0)", 'wait_raw'))
    E(label("L_red_end")); E(raw("s_endpgm", 'branch'))
    Pf, _ = finalize(P)
    return Pf

HEADER = """; Kernarg layout (96 bytes, ptrs only, base s[0:1]):
; @launch kernel=fused_main_kernel grid=(256,1,1) block=(256,1,1) lds=163840
; @launch kernel=fused_reduce_kernel grid=(448,1,1) block=(256,1,1) lds=0
.amdgcn_target "amdgcn-amd-amdhsa--gfx950"
.text
"""
def kd(name, nv, acc, ns):
    return f""".section .rodata,"a"
.p2align 6
.amdhsa_kernel {name}
  .amdhsa_next_free_vgpr {nv}
  .amdhsa_next_free_sgpr {ns}
  .amdhsa_accum_offset {acc}
  .amdhsa_group_segment_fixed_size 0
  .amdhsa_kernarg_size 96
  .amdhsa_user_sgpr_count 2
  .amdhsa_user_sgpr_kernarg_segment_ptr 1
  .amdhsa_system_sgpr_workgroup_id_x 1
  .amdhsa_float_denorm_mode_32 3
.end_amdhsa_kernel
"""
def generate():
    Pm, stats, M, NM = build()
    Pr = reduce_kernel()
    t = HEADER
    t += f".globl {MAIN}\n.p2align 8\n.type {MAIN},@function\n{MAIN}:\n" + text(Pm) + "\n"
    t += f".globl {RED}\n.p2align 8\n.type {RED},@function\n{RED}:\n" + text(Pr) + "\n"
    t += kd(MAIN, 512, 256, 102) + kd(RED, 112, 112, 40)
    return t, Pm, stats, M, NM

if __name__ == "__main__":
    for arg in sys.argv[2:]:
        k, val = arg.split("=")
        setattr(CFG, k, {"True": True, "False": False}.get(val, int(val) if val.lstrip('-').isdigit() else val))
    t, Pm, stats, M, NM = generate()
    out = sys.argv[1] if len(sys.argv) > 1 else f"cdna_kernels/{KNAME}.s"
    open(out, "w").write(t)
    from collections import Counter
    cn = Counter(i.kind for i in Pm)
    print("instrs:", len(Pm), dict(cn)); print(stats, "NM", NM)
```

```python
import sys, math
from asmlib import *

KNAME = "recurrent_scan__sliding_block_cached__glu_gated_geglu__prompt"
MAIN = "fused_main_kernel"
RED = "fused_reduce_kernel"

class Cfg:
    merge_waits = 'all'
    qlds = False
    f1mix = False
    warm_first = 2
    warm_pro = 'f1'
    warm_main = 'wq:F1_2:2+wd:Q_2:2+k:F2_0:2+v:F2_0:9+wo:S_8:2'
    pro_order = 1
    warm_gran = 128
    warm_early = 2
    bar_every = 2
    fill = True
    pkln = True
    warm_code = True
    warm_w = True
    code_bytes = 72 * 1024
    gdma = True
    dma_gap = 4
    abl = ''
    stampop = 's_memrealtime'
    stamps = False
    store_flags = "sc1"
    gstore_flags = None
    debug = None
    nb = 12
CFG = Cfg()

SLOT = 16384; NSLOT = 8; XA = 131072; XSTAGE = 98304; LDS_BYTES = 163840
XROW = 912
AHEAD = 4

S_X, S_F1, S_WQ, S_WD, S_K, S_V, S_WO, S_WS = 4, 8, 12, 16, 20, 24, 28, 32
S_WG, S_WU = 56, 60
S_KVH, S_RB, S_W, S_CH, S_RH, S_PAR, S_WLDS, S_SOFF = 36, 37, 38, 39, 40, 41, 42, 43
S_F1B = 44
S_QB = 48
S_F2B = 49
S_F2C3, S_F2C10, S_F2C11, S_F2C12 = 52, 53, 54, 55
S_KB, S_VB = 56, 57
S_OOWN = 58
S_OPAR = 61
S_KA = 64
S_O3 = 88
S_PB = 89
S_CB = 90
S_HI = 94
S_T0, S_T1, S_T2 = 98, 99, 100
S_THR = 101
S_ONES = 3
S_RET = 64
S_GB = 66

V_S = 128; V_P = 160; V_NEGM = 176; V_T = 184
V_L0, V_L1, V_TS0, V_TS1, V_TM, V_C1 = 192, 193, 194, 195, 196, 197
V_TAC = 200; V_TS = 208; V_TH = 212; V_KA = 216; V_TA = 224
V_DVA = 232; V_DVB = 236
V_L16, V_HW, V_HR, V_R8, V_SC16, V_XW, V_XR = 240, 241, 242, 243, 244, 245, 246
V_RL0, V_RL1 = 247, 248
V_F1H = 128
V_QW, V_QR = 92, 93
V_LANE, V_N16, V_GQ = 249, 250, 251
V_U0, V_U1, V_U2, V_U3 = 252, 253, 254, 255
HIOFF = 65536
SETS = [0, 32, 96]
def accset(gstep): return SETS[gstep % 3]
A_XB = 0; A_H = 0; A_FB = 112; A_Q = 192; A_G = 56; A_PART = 192

C_GELU0 = -2.0 * math.sqrt(2.0 / math.pi) * math.log2(math.e)
C_GELU1 = C_GELU0 * 0.044715
C_QS = math.log2(math.e) / 16.0
import struct
def f2u(x): return struct.unpack("<I", struct.pack("<f", x))[0]
def lit(x): return f"0x{f2u(x):08x}"

class Group:
    def __init__(self, chunk, frs, mk):
        self.chunk = chunk; self.frs = frs; self.mk = mk
class Chunk:
    def __init__(self, name, srd, dv, soff, imm):
        self.name = name; self.srd = srd; self.dv = dv; self.soff = soff; self.imm = imm; self.pair = dv

def tr_reads(addr_lo, off):
    lo, hi = addr_lo
    def f(buf, slot, c):
        ar = lo if slot < 4 else hi
        o = (slot % 4) * SLOT + off
        return [ds_read("ds_read_b64_tr_b16", a(buf, 2), v(ar), o, tag=('rd', c)),
                ds_read("ds_read_b64_tr_b16", a(buf + 2, 2), v(ar), o + 2048, tag=('rd', c))]
    return f
def b128_read(addr_lo, off):
    lo, hi = addr_lo
    def f(buf, slot, c):
        ar = lo if slot < 4 else hi
        o = (slot % 4) * SLOT + off
        return [ds_read("ds_read_b128", a(buf, 4), v(ar), o, tag=('rd', c))]
    return f

def build_main():
    chunks = []; groups = []
    marks = {}
    def mark(n): marks[n] = len(groups)
    def newchunk(*args):
        chunks.append(Chunk(*args)); return len(chunks) - 1
    TAC = lambda tt: (V_TAC + tt, V_TAC + 4 + tt)
    TS = lambda ti: (V_TS + ti, V_TS + 2 + ti)
    TH = (V_TH, V_TH + 1)
    KA = lambda i: (V_KA + i, V_KA + 4 + i)
    TA = lambda tt: (V_TA + tt, V_TA + 4 + tt)
    XB = lambda ks, ct: a(A_XB + (ks * 2 + ct) * 4, 4)

    def pair_mk(accf, Bf, first):
        def mk(fr):
            out = []
            for ct in range(2):
                for i, f in enumerate(fr):
                    d = v(accf(ct), 4)
                    C = '0' if (first and i == 0) else d
                    out.append(mfma(d, a(f, 4), Bf(i, ct), C, need=[a(x, 4) for x in fr] if (ct == 0 and i == 0) else ()))
            return out
        return mk

    def f1_chunk(st, j):
        base = accset(st) if (st < 3 or not CFG.f1mix) else V_F1H
        c = newchunk(f"F1 s{st} j{j}", S_F1, V_DVA, S_F1B + st, j * 64 * 3584)
        if st == 3 and CFG.f1mix: chunks[c].pair = V_DVB
        tis = range(2) if st < 3 else range(1)
        for ti in tis:
            for mat in range(2):
                ad = TS(ti) if st < 3 else TH
                frs = [tr_reads(ad, (ksl * 2 + mat) * 4096) for ksl in range(2)]
                accf = (lambda ct, mat=mat, ti=ti, base=base: base + ((mat * 2 + ti) * 2 + ct) * 4)
                Bf = (lambda i, ct, j=j: XB(2 * j + i, ct))
                groups.append(Group(c, frs, pair_mk(accf, Bf, j == 0)))
    if CFG.f1mix:
        n = 0
        for st in range(3):
            mark(f"F1_{st}")
            for j in range(7):
                f1_chunk(st, j); n += 1
                if n % 3 == 1: f1_chunk(3, n // 3)
        mark("F1_3")
    else:
        for st in range(4):
            mark(f"F1_{st}")
            for j in range(7): f1_chunk(st, j)
    for st in range(4):
        mark(f"Q_{st}")
        base = accset(4 + st)
        for j in range(7):
            c = newchunk(f"Q s{st} j{j}", S_WQ, V_DVB, S_QB, j * 64 * 8192 + st * 128)
            for tt in range(4):
                frs = [tr_reads(TAC(tt), ksl * 4096) for ksl in range(2)]
                accf = (lambda ct, tt=tt, base=base: base + (tt * 2 + ct) * 4)
                Bf = (lambda i, ct, j=j: XB(2 * j + i, ct))
                groups.append(Group(c, frs, pair_mk(accf, Bf, j == 0)))
    HB = lambda ks, ct: a(A_H + (ks * 2 + ct) * 4, 4)
    KR = 32 * 896
    def f2_pair(c, st, ks0, first):
        base = accset(8 + st)
        for tt in range(4):
            frs = [tr_reads(TAC(tt), ksl * 4096) for ksl in range(2)]
            accf = (lambda ct, tt=tt, base=base: base + (tt * 2 + ct) * 4)
            groups.append(Group(c, frs, pair_mk(accf, (lambda i, ct, ks0=ks0: HB(ks0 + i, ct)), first)))
    def f2_single(c, st, ks, item, first):
        base = accset(8 + st)
        for tt in range(4):
            frs = [tr_reads(TAC(tt), item * 4096)]
            accf = (lambda ct, tt=tt, base=base: base + (tt * 2 + ct) * 4)
            groups.append(Group(c, frs, pair_mk(accf, (lambda i, ct, ks=ks: HB(ks, ct)), first)))
    def f2_shared(c, kss, items, first):
        for ti in range(2):
            frs = [tr_reads(TS(ti), it * 4096) for it in items]
            accf = (lambda ct, ti=ti: accset(11) + (ti * 2 + ct) * 4)
            groups.append(Group(c, frs, pair_mk(accf, (lambda i, ct, kss=kss: HB(kss[i], ct)), first)))
    mark("F2_0")
    for i in range(3):
        c = newchunk(f"F2 s0 p{i}", S_WD, V_DVA, S_F2B + 0, 2 * i * KR); f2_pair(c, 0, 2 * i, i == 0)
    c = newchunk("F2 c3", S_WD, V_DVA, S_F2C3, 6 * KR)
    f2_single(c, 0, 6, 0, False)
    mark("F2_1")
    f2_single(c, 1, 6, 1, True)
    for i in range(3):
        c = newchunk(f"F2 s1 p{i}", S_WD, V_DVA, S_F2B + 1, 2 * i * KR); f2_pair(c, 1, 2 * i, False)
    mark("F2_2")
    for i in range(3):
        c = newchunk(f"F2 s2 p{i}", S_WD, V_DVA, S_F2B + 2, 2 * i * KR); f2_pair(c, 2, 2 * i, i == 0)
    c = newchunk("F2 c10", S_WD, V_DVA, S_F2C10, 0)
    f2_single(c, 2, 6, 0, False)
    mark("F2_3")
    f2_shared(c, [0, 1], [1, 3], True)
    c = newchunk("F2 c11", S_WD, V_DVA, S_F2C11, 2 * KR)
    f2_shared(c, [2, 3], [0, 1], False)
    f2_shared(c, [4, 5], [2, 3], False)
    c = newchunk("F2 c12", S_WD, V_DVA, S_F2C12, 0)
    f2_shared(c, [6], [0], False)
    QB = lambda ks, ct: a(A_Q + (ks * 2 + ct) * 4, 4)
    Sreg = lambda t, T, ct: V_S + 16 * (t & 1) + (ct * 2 + T) * 4
    Preg = lambda t, ct: V_P + 8 * (t & 1) + ct * 4
    Oacc = lambda dt, ct: ((dt >> 1) * 2 + ct) * 8 + (dt & 1) * 4
    def S_phase(t):
        mark(f"S_{t}")
        c = newchunk(f"K{t}", S_K, V_DVB, S_KB, t * 16384)
        for T in range(2):
            for kp in range(4):
                frs = [b128_read(KA((2 * kp + i) & 3), T * 8192 + ((2 * kp + i) >> 2) * 256) for i in range(2)]
                def mk(fr, T=T, kp=kp, t=t):
                    out = []
                    for ct in range(2):
                        for i, f in enumerate(fr):
                            d = v(Sreg(t, T, ct), 4)
                            if kp == 0 and i == 0:
                                C = '0' if t < 2 else v(V_NEGM + 4 * ct, 4)
                            else: C = d
                            out.append(mfma(d, a(f, 4), QB(2 * kp + i, ct), C, need=[a(x, 4) for x in fr] if (ct == 0 and i == 0) else ()))
                    return out
                groups.append(Group(c, frs, mk))
    def PV_phase(t):
        mark(f"PV_{t}")
        c = newchunk(f"V{t}", S_V, V_DVA, S_VB, t * 16384)
        for dp in range(8):
            frs = [tr_reads(TA((2 * dp + i) & 3), ((2 * dp + i) >> 2) * 4096) for i in range(2)]
            def mk(fr, dp=dp, t=t):
                out = []
                for i, f in enumerate(fr):
                    for ct in range(2):
                        d = v(Oacc(2 * dp + i, ct), 4)
                        C = '0' if t == 0 else d
                        out.append(mfma(d, a(f, 4), v(Preg(t, ct), 4), C, need=[a(x, 4) for x in fr] if (ct == 0 and i == 0) else ()))
                return out
            groups.append(Group(c, frs, mk))
    S_phase(0); S_phase(1)
    for t in range(1, 15):
        S_phase(t + 1); PV_phase(t - 1)
    PV_phase(14); PV_phase(15)
    OWN = lambda ks, ct: v((ks * 2 + ct) * 8, 4)
    PART = lambda ks, ct: a(A_PART + (ks * 2 + ct) * 4, 4)
    OB = lambda kk, ct: OWN(kk, ct) if kk < 8 else PART(kk - 8, ct)
    OR = 64 * 896
    for st in range(3):
        mark(f"O_{st}")
        base = 128 + 32 * (st & 1)
        for j in range(8):
            if j < 4: c = newchunk(f"O s{st} j{j}", S_WO, V_DVB, S_OOWN + st, j * OR)
            else: c = newchunk(f"O s{st} j{j}", S_WO, V_DVB, S_OPAR + st, (j - 4) * OR)
            if st == 0 and j == 4: mark("O_part")
            for tt in range(4):
                frs = [tr_reads(TAC(tt), ksl * 4096) for ksl in range(2)]
                accf = (lambda ct, tt=tt, base=base: base + (tt * 2 + ct) * 4)
                groups.append(Group(c, frs, pair_mk(accf, (lambda i, ct, j=j: OB(2 * j + i, ct)), j == 0)))
    mark("O_3")
    for j in range(4):
        c = newchunk(f"O s3 j{j}", S_WO, V_DVB, S_O3, j * OR)
        for who in range(2):
            for ti in range(2):
                ad = (V_TS + who * 4 + ti, V_TS + who * 4 + 2 + ti)
                frs = [tr_reads(ad, ksl * 4096) for ksl in range(2)]
                accf = (lambda ct, ti=ti: 160 + (ti * 2 + ct) * 4)
                groups.append(Group(c, frs, pair_mk(accf, (lambda i, ct, j=j, who=who: OB(8 * who + 2 * j + i, ct)), j == 0 and who == 0)))
    mark("END")
    return chunks, groups, marks

def prologue():
    P = []
    E = P.append
    E(salu('s_cmp_ge_u32', s(2), 256)); E(raw("s_cbranch_scc1 L_main_end", 'branch'))
    E(raw(f"s_load_dwordx16 s[{S_KA}:{S_KA+15}], s[0:1], 0"))
    E(raw(f"s_load_dwordx8 s[{S_KA+16}:{S_KA+23}], s[0:1], 64"))
    E(valu('v_and_b32', v(V_LANE), 63, v(0)))
    E(valu('v_lshrrev_b32', v(V_U0), 6, v(0)))
    E(valu('v_and_b32', v(V_N16), 15, v(V_LANE)))
    E(valu('v_readfirstlane_b32', s(S_W), v(V_U0)))
    E(valu('v_lshrrev_b32', v(V_GQ), 4, v(V_LANE)))
    E(valu('v_lshrrev_b32', v(V_R8), 3, v(V_LANE)))
    E(valu('v_lshlrev_b32', v(V_L16), 4, v(V_LANE)))
    E(salu('s_and_b32', s(S_KVH), s(2), 7)); E(salu('s_lshr_b32', s(S_RB), s(2), 3))
    E(salu('s_and_b32', s(S_PAR), s(S_KVH), 1))
    E(salu('s_and_b32', s(S_RH), s(S_W), 1)); E(salu('s_lshr_b32', s(S_CH), s(S_W), 1))
    E(salu('s_lshl_b32', s(S_WLDS), s(S_W), 12))
    E(valu('v_and_b32', v(V_U1), 7, v(V_LANE)))
    E(valu('v_lshlrev_b32', v(V_U2), 4, v(V_U1)))
    E(salu('s_mov_b32', s(S_T0), 896))
    E(valu('v_mad_u32_u24', v(V_U0), v(V_R8), s(S_T0), v(V_U2)))
    E(raw("s_waitcnt lgkmcnt(0)", 'wait_raw'))
    kx, kk, kv, kwq, kwo, kwg, kwu, kwd, kws = [S_KA + o for o in (0, 2, 4, 6, 8, 12, 14, 16, 22)]
    def srd(dst, ptr, nbytes):
        E(salu('s_mov_b32', s(dst), s(ptr))); E(salu('s_mov_b32', s(dst + 1), s(ptr + 1)))
        E(salu('s_mov_b32', s(dst + 2), nbytes)); E(salu('s_mov_b32', s(dst + 3), '0x00020000'))
    srd(S_X, kx, 2048 * 896)
    E(salu('s_mul_i32', s(S_T0), s(S_RB), 57344)); E(salu('s_mul_i32', s(S_T1), s(S_W), 14336))
    E(salu('s_add_u32', s(S_T0), s(S_T0), s(S_T1))); E(salu('s_add_u32', s(S_T1), s(S_T0), 7168))
    for p in range(2):
        for i in range(7):
            E(vload('buffer_load_dwordx4', v((p * 7 + i) * 4, 4), v(V_U0), s(S_X, 4), s(S_T0 + p), i * 128, tag='x'))
    E(salu('s_cmp_eq_u32', s(S_RH), 0))
    E(salu('s_cselect_b32', s(S_F1), s(kwg), s(kwu))); E(salu('s_cselect_b32', s(S_F1 + 1), s(kwg + 1), s(kwu + 1)))
    E(salu('s_mov_b32', s(S_F1 + 2), 448 * 3584)); E(salu('s_mov_b32', s(S_F1 + 3), '0x00020000'))
    srd(S_WQ, kwq, 448 * 8192); srd(S_WD, kwd, 1792 * 896); srd(S_WO, kwo, 4096 * 896)
    srd(S_WS, kws, 2 * 256 * 57344)
    for (dst, ptr) in ((S_K, kk), (S_V, kv)):
        E(salu('s_lshl_b32', s(S_T2), s(S_KVH), 20)); E(salu('s_add_u32', s(S_T2), s(S_T2), 1536 * 512))
        E(salu('s_add_u32', s(dst), s(ptr), s(S_T2))); E(salu('s_addc_u32', s(dst + 1), s(ptr + 1), 0))
        E(salu('s_mov_b32', s(dst + 2), 512 * 512)); E(salu('s_mov_b32', s(dst + 3), '0x00020000'))
    E(valu('v_lshrrev_b32', v(V_U2), 1, v(V_R8))); E(valu('v_and_b32', v(V_U2), 3, v(V_U2)))
    E(valu('v_lshlrev_b32', v(V_U2), 1, v(V_U2))); E(valu('v_xor_b32', v(V_U2), v(V_U2), v(V_U1)))
    E(valu('v_lshlrev_b32', v(V_SC16), 4, v(V_U2)))
    P += dv_setup(V_DVA, 3584)
    E(salu('s_mul_i32', s(S_T0), s(S_KVH), 7)); E(salu('s_lshr_b32', s(S_T0), s(S_T0), 1)); E(salu('s_lshl_b32', s(S_T0), s(S_T0), 7))
    E(salu('s_mul_i32', s(S_T1), s(S_CH), 32 * 3584)); E(salu('s_add_u32', s(S_T0), s(S_T0), s(S_T1)))
    for st in range(4):
        P += sel(S_T1, S_PAR, st * 128, (3 - st) * 128)
        E(salu('s_add_u32', s(S_F1B + st), s(S_T0), s(S_T1)))
    return P

def sel(dst, cond, v0, v1):
    d = (v1 - v0) & 0xffffffff
    return [salu('s_mul_i32', s(dst), s(cond), f"0x{d:x}"), salu('s_add_u32', s(dst), s(dst), v0)]

def dv_setup(dst, stride):
    out = [salu('s_mov_b32', s(S_T2), stride),
           valu('v_mad_u32_u24', v(dst), v(V_R8), s(S_T2), v(V_SC16))]
    for j in range(1, 4):
        out.append(valu('v_add_u32', v(dst + j), j * (8 * stride - 1024), v(dst)))
    return out
def dv_setup_K(dst):
    out = [valu('v_lshrrev_b32', v(V_U0), 5, v(V_LANE)), valu('v_and_b32', v(V_U1), 31, v(V_LANE)),
           salu('s_lshl_b32', s(S_T2), s(S_RH), 3),
           valu('v_xor_b32', v(V_U1), v(V_U1), v(V_U0)),
           valu('v_xor_b32', v(V_U1), s(S_T2), v(V_U1)),
           valu('v_lshlrev_b32', v(V_U0), 9, v(V_U0))]
    for j in range(4):
        out.append(valu('v_xor_b32', v(V_U2), 2 * j, v(V_U1)))
        out.append(valu('v_lshl_add_u32', v(dst + j), v(V_U2), 4, v(V_U0)))
    return out

S_GA = {V_DVA: 68, V_DVB: 70}
S_GC = 72
_last_base = {}
def chunk_dma(c, ch):
    slot = c % NSLOT
    if CFG.gdma:
        out = []
        ga = S_GA[ch.pair]
        if _last_base.get(ch.pair) != (ch.srd, ch.soff):
            _last_base[ch.pair] = (ch.srd, ch.soff)
            out += [salu('s_add_u32', s(ga), s(ch.srd), s(ch.soff)), salu('s_addc_u32', s(ga + 1), s(ch.srd + 1), 0)]
        out += [salu('s_add_u32', 'm0', s(S_WLDS), slot * SLOT),
                salu('s_add_u32', s(S_GC), s(ga), ch.imm), salu('s_addc_u32', s(S_GC + 1), s(ga + 1), 0)]
        for j in range(4): out.append(gdma(v(ch.dv + j), s(S_GC, 2), j * 1024, tag=('dma', c)))
        return out
    out = [salu('s_add_u32', 'm0', s(S_WLDS), slot * SLOT),
           salu('s_add_u32', s(S_SOFF), s(ch.soff), ch.imm)]
    for j in range(4):
        imm = j * 1024
        out.append(dma(v(ch.dv + j), s(ch.srd, 4), s(S_SOFF), imm, tag=('dma', c)))
    return out

V_DUM = 198
def warm_code():
    out = [raw("s_getpc_b64 s[92:93]", 'salu', [], [s(92, 2)]), label("L_pc_here"),
           salu('s_and_b32', s(93), s(93), '0xffff'),
           raw("s_mov_b32 s94, L_main_code_end-L_pc_here", 'salu', [], [s(94)]), salu('s_mov_b32', s(95), '0x00020000'),
           salu('s_and_b32', s(S_T2), s(S_RB), 7), salu('s_lshl_b32', s(S_T2), s(S_T2), 2), salu('s_add_u32', s(S_T2), s(S_T2), s(S_W)),
           salu('s_lshl_b32', s(S_T2), s(S_T2), 12),
           valu('v_lshlrev_b32', v(V_U3), 6, v(V_LANE)),
           vload('buffer_load_dword', v(V_DUM), v(V_U3), s(92, 4), s(S_T2), 0, tag='warm')]
    return out
WARM_V = {'wq': 132, 'wd': 133, 'k': 134, 'v': 135, 'wo': 199}
WARM_S = {'wq': 4, 'wd': 5, 'k': 6, 'v': 7, 'wo': 43}
def warm_weights():
    W0, W1, W2 = 88, 89, 90
    T0, T2 = 64, 65
    G = CFG.warm_gran; lg = {64: 6, 128: 7}[G]
    head = [valu('v_mov_b32', v(W2), '0x7ffffff0')]
    setup = {}; issue = {}
    def lin(key, srd, nbytes, base):
        V, T1 = WARM_V[key], WARM_S[key]
        per = -(-nbytes // G // 128)
        o = [base(T1), salu('s_mul_i32', s(T2), s(T0), per * G), salu('s_add_u32', s(T1), s(T1), s(T2)),
             valu('v_lshlrev_b32', v(V), lg, v(V_LANE)),
             valu('v_cmp_gt_u32', 'vcc', per, v(V_LANE)), nop(0), valu('v_cndmask_b32', v(V), v(W2), v(V), 'vcc')]
        setup[key] = o; issue[key] = [vload('buffer_load_dword', v(198), v(V), s(srd, 4), s(T1), 0, tag='warm')]
    def strided(key, V, T1, srd, rowbytes, stride, nwaves, colbase):
        npr = rowbytes // G; lgr = npr.bit_length() - 1
        per = 448 * npr // nwaves
        o = list(colbase)
        o += [salu('s_mul_i32', s(T2), s(T0), per),
              valu('v_add_u32', v(W0), s(T2), v(V_LANE)),
              valu('v_lshrrev_b32', v(W1), lgr, v(W0)), valu('v_and_b32', v(W0), npr - 1, v(W0)),
              salu('s_mov_b32', s(T2), stride), valu('v_lshlrev_b32', v(W0), lg, v(W0)),
              valu('v_mad_u32_u24', v(V), v(W1), s(T2), v(W0)),
              valu('v_cmp_gt_u32', 'vcc', per, v(V_LANE)), nop(0), valu('v_cndmask_b32', v(V), v(W2), v(V), 'vcc')]
        setup[key] = o; issue[key] = [vload('buffer_load_dword', v(198), v(V), s(srd, 4), s(T1), 0, tag='warm')]
    strided('f1', 91, 43, S_F1, 512, 3584, 64,
            [salu('s_mul_i32', s(43), s(S_KVH), 7), salu('s_lshr_b32', s(43), s(43), 1), salu('s_lshl_b32', s(43), s(43), 7)])
    f1 = head + [salu('s_lshl_b32', s(T0), s(S_RB), 1), salu('s_add_u32', s(T0), s(T0), s(S_CH))] + setup.pop('f1') + issue.pop('f1')
    strided('wq', WARM_V['wq'], WARM_S['wq'], S_WQ, 1024, 8192, 128, [salu('s_lshl_b32', s(WARM_S['wq']), s(S_KVH), 10)])
    lin('wd', S_WD, 224 * 896, lambda r: salu('s_mul_i32', s(r), s(S_KVH), 224 * 896))
    lin('k', S_K, 262144, lambda r: salu('s_mov_b32', s(r), 0)); lin('v', S_V, 262144, lambda r: salu('s_mov_b32', s(r), 0))
    lin('wo', S_WO, 512 * 896, lambda r: salu('s_mul_i32', s(r), s(S_KVH), 512 * 896))
    allsetup = head + [salu('s_lshl_b32', s(T0), s(S_RB), 2), salu('s_add_u32', s(T0), s(T0), s(S_W))]
    for k in ('wq', 'wd', 'k', 'v', 'wo'): allsetup += setup[k]
    return f1, allsetup, issue

def prologue2():
    P = []; E = P.append
    E(salu('s_lshl_b32', s(S_T0), s(S_KVH), 1)); E(salu('s_add_u32', s(S_T0), s(S_T0), s(S_CH))); E(salu('s_lshl_b32', s(S_T0), s(S_T0), 9))
    E(salu('s_lshl_b32', s(S_T1), s(S_RH), 18)); E(salu('s_add_u32', s(S_QB), s(S_T0), s(S_T1)))
    KR = 32 * 896
    E(salu('s_mul_i32', s(S_T0), s(S_KVH), 224 * 896))
    E(salu('s_mul_i32', s(S_T1), s(S_RH), KR))
    for st in range(3):
        P += sel(S_T2, S_CH, st * 128, (6 - st) * 128)
        E(salu('s_add_u32', s(S_F2B + st), s(S_T0), s(S_T2))); E(salu('s_add_u32', s(S_F2B + st), s(S_F2B + st), s(S_T1)))
    P += sel(S_T2, S_CH, 0, 6 * 128); P += sel(S_F2C3, S_CH, 128, 5 * 128)
    E(salu('s_cmp_eq_u32', s(S_RH), 0)); E(salu('s_cselect_b32', s(S_T2), s(S_T2), s(S_F2C3)))
    E(salu('s_add_u32', s(S_F2C3), s(S_T0), s(S_T2)))
    P += sel(S_T2, S_CH, 6 * KR + 2 * 128, 6 * KR + 4 * 128); P += sel(S_F2C10, S_CH, 384, KR + 384)
    E(salu('s_cmp_eq_u32', s(S_RH), 0)); E(salu('s_cselect_b32', s(S_T2), s(S_T2), s(S_F2C10)))
    E(salu('s_add_u32', s(S_F2C10), s(S_T0), s(S_T2)))
    E(salu('s_mul_i32', s(S_T2), s(S_W), KR)); E(salu('s_add_u32', s(S_F2C11), s(S_T0), s(S_T2))); E(salu('s_add_u32', s(S_F2C11), s(S_F2C11), 384))
    E(salu('s_add_u32', s(S_F2C12), s(S_T0), 6 * KR + 384))
    E(salu('s_lshl_b32', s(S_KB), s(S_W), 12)); E(salu('s_lshl_b32', s(S_VB), s(S_W), 7))
    E(salu('s_lshl_b32', s(S_T0), s(S_KVH), 9)); E(salu('s_lshl_b32', s(S_T1), s(S_RH), 5)); E(salu('s_add_u32', s(S_T0), s(S_T0), s(S_T1)))
    E(salu('s_lshl_b32', s(S_T1), s(S_CH), 8)); E(salu('s_add_u32', s(S_T1), s(S_T0), s(S_T1))); E(salu('s_mul_i32', s(S_T1), s(S_T1), 896))
    E(salu('s_xor_b32', s(S_T2), s(S_CH), 1)); E(salu('s_lshl_b32', s(S_T2), s(S_T2), 8)); E(salu('s_add_u32', s(S_T0), s(S_T0), s(S_T2))); E(salu('s_mul_i32', s(S_T0), s(S_T0), 896))
    for st in range(3):
        P += sel(S_T2, S_CH, st * 128, (6 - st) * 128)
        E(salu('s_add_u32', s(S_OOWN + st), s(S_T1), s(S_T2))); E(salu('s_add_u32', s(S_OPAR + st), s(S_T0), s(S_T2)))
    E(salu('s_add_u32', s(S_O3), s(S_T1), 384))
    E(salu('s_mul_i32', s(S_T0), s(2), 57344))
    E(salu('s_mul_i32', s(S_T1), s(S_RH), 28672)); E(salu('s_add_u32', s(S_PB), s(S_T0), s(S_T1)))
    E(salu('s_add_u32', s(S_GB), s(S_PB), 256 * 57344))
    for st in range(3):
        P += sel(S_CB + st, S_CH, 2 * st * 2048, (12 - 2 * st) * 2048)
    P += sel(S_CB + 3, S_CH, 6 * 2048, 7 * 2048)
    for st in range(3):
        P += sel(S_T0, S_PAR, 2 * st, 2 * (3 - st) - 1)
        E(salu('s_add_u32', s(S_T0), s(S_T0), s(S_CH))); E(salu('s_lshl_b32', s(S_HI + st), s(S_T0), 12))
    P += sel(S_T0, S_PAR, 6 * 4096, 0)
    E(salu('s_lshl_b32', s(S_T1), s(S_CH), 3)); E(salu('s_add_u32', s(S_HI + 3), s(S_T0), s(S_T1)))
    E(salu('s_mov_b32', s(S_THR), lit(65536.0)))
    E(salu('s_mov_b32', s(S_ONES), '0x3f803f80'))
    E(valu('v_bfe_u32', v(V_U0), v(V_LANE), 2, 2))
    E(valu('v_lshl_add_u32', v(V_U1), v(V_GQ), 2, v(V_U0)))
    E(valu('v_lshrrev_b32', v(V_U2), 1, v(V_U1))); E(valu('v_and_b32', v(V_U2), 3, v(V_U2)))
    E(valu('v_and_b32', v(V_U3), 3, v(V_LANE))); E(valu('v_lshlrev_b32', v(V_U3), 3, v(V_U3)))
    E(valu('v_lshl_add_u32', v(V_U3), v(V_U1), 7, v(V_U3)))
    for tt in range(4):
        E(valu('v_xor_b32', v(V_U0), tt, v(V_U2)))
        E(valu('v_lshl_add_u32', v(V_TA + tt), v(V_U0), 5, v(V_U3)))
        E(valu('v_add_u32', v(V_TA + 4 + tt), HIOFF, v(V_TA + tt)))
    E(salu('s_lshl_b32', s(S_T0), s(S_CH), 13))
    for tt in range(8):
        E(valu('v_add_u32', v(V_TAC + tt), s(S_T0), v(V_TA + tt)))
    E(salu('s_lshl_b32', s(S_T0), s(S_CH), 1))
    for ti in range(2):
        E(salu('s_add_u32', s(S_T1), s(S_T0), ti))
        E(valu('v_xor_b32', v(V_U0), s(S_T1), v(V_U2)))
        E(valu('v_lshl_add_u32', v(V_TS + ti), v(V_U0), 5, v(V_U3)))
        E(valu('v_add_u32', v(V_TS + 2 + ti), HIOFF, v(V_TS + ti)))
    E(salu('s_lshl_b32', s(S_T0), s(S_PAR), 1)); E(salu('s_add_u32', s(S_T1), s(S_T0), s(S_CH)))
    E(valu('v_xor_b32', v(V_U0), s(S_T1), v(V_U2)))
    E(valu('v_lshl_add_u32', v(V_TH), v(V_U0), 5, v(V_U3)))
    E(valu('v_add_u32', v(V_TH + 1), HIOFF, v(V_TH)))
    for i in range(4):
        E(valu('v_add_u32', v(V_U0), 4 * i, v(V_GQ))); E(valu('v_xor_b32', v(V_U0), v(V_U0), v(V_N16)))
        E(valu('v_lshlrev_b32', v(V_U0), 4, v(V_U0)))
        E(valu('v_lshl_add_u32', v(V_KA + i), v(V_N16), 9, v(V_U0)))
        E(valu('v_add_u32', v(V_KA + 4 + i), HIOFF, v(V_KA + i)))
    E(salu('s_lshl_b32', s(S_T0), s(S_RH), 11)); E(salu('s_add_u32', s(S_T0), s(S_T0), XA))
    E(valu('v_add_u32', v(V_HR), s(S_T0), v(V_L16)))
    E(salu('s_lshl_b32', s(S_T0), s(S_W), 13)); E(salu('s_add_u32', s(S_T0), s(S_T0), XA))
    E(valu('v_add_u32', v(V_XW), s(S_T0), v(V_L16)))
    E(salu('s_xor_b32', s(S_T0), s(S_W), 2)); E(salu('s_lshl_b32', s(S_T0), s(S_T0), 13)); E(salu('s_add_u32', s(S_T0), s(S_T0), XA))
    E(valu('v_add_u32', v(V_XR), s(S_T0), v(V_L16)))
    E(valu('v_mov_b32', v(V_C1), lit(C_GELU1)))
    E(salu('s_lshl_b32', s(S_T0), s(S_W), 10)); E(salu('s_add_u32', s(S_T0), s(S_T0), XA + 28672))
    E(valu('v_lshlrev_b32', v(V_U0), 6, v(V_N16))); E(valu('v_add_u32', v(V_U0), s(S_T0), v(V_U0)))
    E(valu('v_lshl_add_u32', v(V_QW), v(V_GQ), 3, v(V_U0))); E(valu('v_lshl_add_u32', v(V_QR), v(V_GQ), 4, v(V_U0)))
    return P

def layernorm(late, wl):
    P = []; E = P.append
    late = list(late); wl = list(wl)
    def drip(q, n=1):
        while q and n > 0:
            x = q.pop(0); E(x)
            if x.kind in ('dma', 'vload'): n -= 1
    ACC = 64
    for p in range(2):
        b = ACC + 4 * p
        for k in range(4): E(valu('v_mov_b32', v(b + k), 0))
        for n in range(28):
            d = p * 28 + n
            E(valu('v_dot2_f32_bf16', v(b + (n & 1)), v(d), s(S_ONES), v(b + (n & 1))))
            E(valu('v_dot2_f32_bf16', v(b + 2 + (n & 1)), v(d), v(d), v(b + 2 + (n & 1))))
            if n % 7 == 3: drip(late)
        E(valu('v_add_f32', v(b), v(b), v(b + 1))); E(valu('v_add_f32', v(b + 2), v(b + 2), v(b + 3)))
    for mods in ("quad_perm:[1,0,3,2] row_mask:0xf bank_mask:0xf", "quad_perm:[2,3,0,1] row_mask:0xf bank_mask:0xf", "row_half_mirror row_mask:0xf bank_mask:0xf"):
        for p in range(2):
            for k in (0, 2):
                r = ACC + 4 * p + k
                E(valu('v_add_f32_dpp', v(r), v(r), v(r), mods=mods))
    for p in range(2):
        b = ACC + 4 * p
        E(valu('v_mul_f32', v(b), lit(1.0 / 448), v(b)))
        E(valu('v_mul_f32', v(b + 2), lit(1.0 / 448), v(b + 2)))
        E(valu('v_fma_f32', v(b + 2), '-' + v(b), v(b), v(b + 2)))
        E(valu('v_max_f32', v(b + 2), 0, v(b + 2)))
        E(valu('v_add_f32', v(b + 2), lit(1e-5), v(b + 2)))
        E(valu('v_rsq_f32', v(b + 2), v(b + 2)))
        E(valu('v_mul_f32', v(b), v(b), v(b + 2)))
        E(valu('v_sub_f32', v(b + 1), 0, v(b)))
    E(valu('v_and_b32', v(V_U0), 7, v(V_LANE)))
    E(valu('v_and_b32', v(V_U1), 3, v(V_U0)))
    E(valu('v_lshrrev_b32', v(V_U0), 2, v(V_U0))); E(valu('v_lshlrev_b32', v(V_U0), 6, v(V_U0)))
    E(valu('v_and_b32', v(V_U2), 1, v(V_U1))); E(valu('v_lshl_add_u32', v(V_U0), v(V_U2), 5, v(V_U0)))
    E(valu('v_lshrrev_b32', v(V_U1), 1, v(V_U1))); E(valu('v_lshl_add_u32', v(V_U0), v(V_U1), 3, v(V_U0)))
    E(salu('s_mov_b32', s(S_T0), XROW)); E(valu('v_mad_u32_u24', v(V_U0), v(V_R8), s(S_T0), v(V_U0)))
    E(salu('s_mul_i32', s(S_T1), s(S_W), 16 * XROW)); E(salu('s_add_u32', s(S_T1), s(S_T1), XSTAGE))
    E(valu('v_add_u32', v(V_U0), s(S_T1), v(V_U0)))
    E(valu('v_add_u32', v(V_U1), 8 * XROW, v(V_U0)))
    E(salu('s_mov_b32', s(S_T2), '0xffff0000'))
    T = 72
    for p in range(2):
        b = ACC + 4 * p
        for i in range(7):
            d0 = (p * 7 + i) * 4
            for k in range(4):
                t = T + 2 * k
                E(valu('v_lshlrev_b32', v(t), 16, v(d0 + k))); E(valu('v_and_b32', v(t + 1), s(S_T2), v(d0 + k)))
            for k in range(4):
                t = T + 2 * k
                if CFG.pkln:
                    x = I(f"v_pk_fma_f32 v[{t}:{t+1}], v[{t}:{t+1}], v[{b+2}:{b+3}], v[{b}:{b+1}] op_sel:[0,0,1] op_sel_hi:[1,0,1]", 'valu',
                          regs(v(t, 2)) + regs(v(b, 4)), regs(v(t, 2)))
                    E(x)
                else:
                    E(valu('v_fma_f32', v(t), v(t), v(b + 2), '-' + v(b))); E(valu('v_fma_f32', v(t + 1), v(t + 1), v(b + 2), '-' + v(b)))
            for k in range(4):
                t = T + 2 * k
                E(valu('v_cvt_pk_bf16_f32', v(d0 + k), v(t), v(t + 1)))
            E(ds_write2_b64(v(V_U0 + p), v(d0, 2), v(d0 + 2, 2), 16 * i, 16 * i + 2, tag='xw'))
            drip(wl)
    drip(late, 99); drip(wl, 99)
    E(wait_lgkm_tag('xw')); E(barrier())
    E(salu('s_lshl_b32', s(S_T0), s(S_RH), 5)); E(valu('v_add_u32', v(V_U0), s(S_T0), v(V_N16)))
    E(salu('s_mov_b32', s(S_T0), XROW)); E(valu('v_lshlrev_b32', v(V_U1), 4, v(V_GQ)))
    E(valu('v_mad_u32_u24', v(V_U0), v(V_U0), s(S_T0), v(V_U1))); E(valu('v_add_u32', v(V_U0), XSTAGE, v(V_U0)))
    for ks in range(14):
        for ct in range(2):
            E(ds_read('ds_read_b128', a(A_XB + (ks * 2 + ct) * 4, 4), v(V_U0), ks * 64 + ct * 16 * XROW, tag='xb'))
    return P

def interleave(*lists):
    out = []; its = [list(l) for l in lists]
    while any(its):
        for l in its:
            if l: out.append(l.pop(0))
    return out

def geglu(st):
    base = accset(st) if (st < 3 or not CFG.f1mix) else V_F1H
    out = []
    tis = range(2) if st < 3 else range(1)
    TT = 64; HP = 80
    out.append(valu('v_add_u32', v(V_HW), s(S_HI + st), v(V_HR)))
    for ct in range(2):
        for ti in tis:
            G = base + ((0 * 2 + ti) * 2 + ct) * 4; U = base + ((1 * 2 + ti) * 2 + ct) * 4
            t = [TT + k for k in range(4)]; e = [TT + 4 + k for k in range(4)]
            for k in range(4): out.append(valu('v_mul_f32', v(t[k]), v(G + k), v(G + k)))
            for k in range(4): out.append(valu('v_fmaak_f32', v(t[k]), v(t[k]), v(V_C1), lit(C_GELU0)))
            for k in range(4): out.append(valu('v_mul_f32', v(t[k]), v(G + k), v(t[k])))
            for k in range(4): out.append(valu('v_exp_f32', v(e[k]), v(t[k])))
            for k in range(4): out.append(valu('v_mul_f32', v(t[k]), v(G + k), v(U + k)))
            for k in range(4): out.append(valu('v_add_f32', v(e[k]), '1.0', v(e[k])))
            for k in range(4): out.append(valu('v_rcp_f32', v(e[k]), v(e[k])))
            hp = HP + ct * 4 + ti * 2
            for k in range(4): out.append(valu('v_mul_f32', v(t[k]), v(t[k]), v(e[k])))
            out.append(valu('v_cvt_pk_bf16_f32', v(hp), v(t[0]), v(t[1]))); out.append(valu('v_cvt_pk_bf16_f32', v(hp + 1), v(t[2]), v(t[3])))
        if st < 3: out.append(ds_write('ds_write_b128', v(V_HW), v(HP + ct * 4, 4), ct * 1024, tag='hw'))
        else: out.append(ds_write('ds_write_b64', v(V_HW), v(HP + ct * 4, 2), ct * 1024, tag='hw'))
    return out

def qconv(st):
    base = accset(4 + st); out = []
    for pp in range(2):
        for ct in range(2):
            X0 = base + ((2 * pp) * 2 + ct) * 4; X1 = base + ((2 * pp + 1) * 2 + ct) * 4
            t = 64 + 8 * ct; h = 80 + 4 * ct
            for k in range(4): out.append(valu('v_mul_f32', v(t + k), lit(C_QS), v(X0 + k)))
            for k in range(4): out.append(valu('v_mul_f32', v(t + 4 + k), lit(C_QS), v(X1 + k)))
            for k in range(4): out.append(valu('v_cvt_pk_bf16_f32', v(h + k), v(t + 2 * k), v(t + 2 * k + 1)))
            if CFG.qlds:
                ks = 2 * st + pp
                out.append(ds_write2_b64(v(V_QW), v(h, 2), v(h + 2, 2), 0, 4, tag='qw'))
                out.append(ds_read('ds_read_b128', a(A_Q + (ks * 2 + ct) * 4, 4), v(V_QR), 0, tag='qr'))
                continue
            out.append(valu('v_permlane32_swap_b32', v(h), v(h + 2))); out.append(valu('v_permlane32_swap_b32', v(h + 1), v(h + 3)))
            out.append(nop(0))
            out.append(valu('v_permlane16_swap_b32', v(h), v(h + 2))); out.append(valu('v_permlane16_swap_b32', v(h + 1), v(h + 3)))
            ks = 2 * st + pp
            for k in range(4): out.append(valu('v_accvgpr_write_b32', a(A_Q + (ks * 2 + ct) * 4 + k), v(h + k)))
    return out

def gconv(st):
    base = accset(8 + st); out = []
    pps = range(2) if st < 3 else range(1)
    for pp in pps:
        for ct in range(2):
            if st < 3: X0 = base + ((2 * pp) * 2 + ct) * 4; X1 = base + ((2 * pp + 1) * 2 + ct) * 4
            else: X0 = base + (0 * 2 + ct) * 4; X1 = base + (1 * 2 + ct) * 4
            h = 80 + 4 * ct
            out.append(valu('v_cvt_pk_bf16_f32', v(h), v(X0), v(X0 + 1))); out.append(valu('v_cvt_pk_bf16_f32', v(h + 1), v(X0 + 2), v(X0 + 3)))
            out.append(valu('v_cvt_pk_bf16_f32', v(h + 2), v(X1), v(X1 + 1))); out.append(valu('v_cvt_pk_bf16_f32', v(h + 3), v(X1 + 2), v(X1 + 3)))
            li = st * 2 + pp
            for k in range(4): out.append(valu('v_accvgpr_write_b32', a(A_G + (li * 2 + ct) * 4 + k), v(h + k)))
    return out
def gstore(li, ct):
    st, pp = li // 2, li % 2
    return [salu('s_add_u32', s(S_T0), s(S_GB), s(S_CB + st)),
            vstore('buffer_store_dwordx4', a(A_G + (li * 2 + ct) * 4, 4), v(V_L16), s(S_WS, 4), s(S_T0), pp * 2048 + ct * 1024, (CFG.gstore_flags if CFG.gstore_flags is not None else CFG.store_flags).replace('_', ' ').strip(), tag='gst')]

def sconv(st):
    base = 128 + 32 * (st & 1); out = []
    pps = range(2) if st < 3 else range(1)
    out.append(salu('s_add_u32', s(S_T1), s(S_PB), s(S_CB + st)))
    n = 0
    for pp in pps:
        for ct in range(2):
            if st < 3: X0 = base + ((2 * pp) * 2 + ct) * 4; X1 = base + ((2 * pp + 1) * 2 + ct) * 4
            else: X0 = 160 + (0 * 2 + ct) * 4; X1 = 160 + (1 * 2 + ct) * 4
            h = 192 + 4 * (n & 1); n += 1
            out.append(valu('v_cvt_pk_bf16_f32', v(h), v(X0), v(X0 + 1))); out.append(valu('v_cvt_pk_bf16_f32', v(h + 1), v(X0 + 2), v(X0 + 3)))
            out.append(valu('v_cvt_pk_bf16_f32', v(h + 2), v(X1), v(X1 + 1))); out.append(valu('v_cvt_pk_bf16_f32', v(h + 3), v(X1 + 2), v(X1 + 3)))
            out.append(vstore('buffer_store_dwordx4', v(h, 4), v(V_L16), s(S_WS, 4), s(S_T1), pp * 2048 + ct * 1024, CFG.store_flags.replace('_', ' ').strip(), tag='sst'))
    return out

def xlane_reduce(op, reg, tmp):
    return [valu('v_mov_b32', v(tmp), v(reg)), nop(0), valu('v_permlane16_swap_b32', v(reg), v(tmp)), nop(0), valu(op, v(reg), v(reg), v(tmp)),
            valu('v_mov_b32', v(tmp), v(reg)), nop(0), valu('v_permlane32_swap_b32', v(reg), v(tmp)), nop(0), valu(op, v(reg), v(reg), v(tmp))]

def Sreg(t, T, ct): return V_S + 16 * (t & 1) + (ct * 2 + T) * 4
def Preg(t, ct): return V_P + 8 * (t & 1) + ct * 4

def softmax_first():
    out = []
    for ct in range(2):
        r = [Sreg(0, 0, ct) + k for k in range(4)] + [Sreg(0, 1, ct) + k for k in range(4)]
        m = V_T + ct
        out.append(valu('v_max3_f32', v(m), v(r[0]), v(r[1]), v(r[2])))
        out.append(valu('v_max3_f32', v(m), v(m), v(r[3]), v(r[4])))
        out.append(valu('v_max3_f32', v(m), v(m), v(r[5]), v(r[6])))
        out.append(valu('v_max_f32', v(m), v(m), v(r[7])))
    a0 = xlane_reduce('v_max_f32', V_T, V_T + 2); a1 = xlane_reduce('v_max_f32', V_T + 1, V_T + 3)
    out += interleave(a0, a1)
    for ct in range(2):
        for k in range(4): out.append(valu('v_sub_f32', v(V_NEGM + 4 * ct + k), 0, v(V_T + ct)))
    for ct in range(2):
        for T in range(2):
            for k in range(4): out.append(valu('v_add_f32', v(Sreg(0, T, ct) + k), v(V_NEGM + 4 * ct), v(Sreg(0, T, ct) + k)))
    out.append(valu('v_mov_b32', v(V_L0), 0)); out.append(valu('v_mov_b32', v(V_L1), 0))
    return out
def s1_fix():
    out = []
    for ct in range(2):
        for T in range(2):
            for k in range(4): out.append(valu('v_add_f32', v(Sreg(1, T, ct) + k), v(V_NEGM + 4 * ct), v(Sreg(1, T, ct) + k)))
    return out
def softmax_body(t):
    out = []
    for ct in range(2):
        ts = V_TS0 + ct
        for T in range(2):
            S = Sreg(t, T, ct); e = V_T + 4 * T
            for k in range(4): out.append(valu('v_exp_f32', v(e + k), v(S + k)))
            if T == 0:
                out.append(valu('v_add_f32', v(ts), v(e), v(e + 1)))
            else:
                out.append(valu('v_add_f32', v(ts), v(ts), v(e)));
            out.append(valu('v_cvt_pk_bf16_f32', v(Preg(t, ct) + 2 * T), v(e), v(e + 1)))
            if T == 1: out.append(valu('v_add_f32', v(ts), v(ts), v(e + 1)))
            out.append(valu('v_add_f32', v(ts), v(ts), v(e + 2)))
            out.append(valu('v_cvt_pk_bf16_f32', v(Preg(t, ct) + 2 * T + 1), v(e + 2), v(e + 3)))
            out.append(valu('v_add_f32', v(ts), v(ts), v(e + 3)))
    return out
def softmax_check(t):
    return [valu('v_max_f32', v(V_TM), v(V_TS0), v(V_TS1)),
            valu('v_cmp_lt_f32', 'vcc', s(S_THR), v(V_TM)),
            raw(f"s_cbranch_vccnz L_slow_{t}", 'branch', ['vcc']),
            label(f"L_back_{t}"),
            valu('v_add_f32', v(V_L0), v(V_L0), v(V_TS0)), valu('v_add_f32', v(V_L1), v(V_L1), v(V_TS1))]

def slow_path(par):
    t = par
    o = []
    o.append(label(f"L_slowsub_{par}"))
    o.append(nop(15))
    for ct in range(2):
        r = [Sreg(t, 0, ct) + k for k in range(4)] + [Sreg(t, 1, ct) + k for k in range(4)]
        m = V_T + ct
        o += [valu('v_max3_f32', v(m), v(r[0]), v(r[1]), v(r[2])), valu('v_max3_f32', v(m), v(m), v(r[3]), v(r[4])),
              valu('v_max3_f32', v(m), v(m), v(r[5]), v(r[6])), valu('v_max_f32', v(m), v(m), v(r[7]))]
        o += xlane_reduce('v_max_f32', m, V_T + 2)
        o.append(valu('v_max_f32', v(m), 0, v(m)))
    for ct in range(2):
        d = V_T + ct; f = V_T + 2 + ct
        o.append(valu('v_sub_f32', v(f), 0, v(d))); o.append(valu('v_exp_f32', v(f), v(f)))
        for k in range(4): o.append(valu('v_sub_f32', v(V_NEGM + 4 * ct + k), v(V_NEGM + 4 * ct + k), v(d)))
        for tt in (t, t + 1):
            for T in range(2):
                for k in range(4): o.append(valu('v_sub_f32', v(Sreg(tt, T, ct) + k), v(Sreg(tt, T, ct) + k), v(d)))
        o.append(valu('v_mul_f32', v(V_L0 + ct), v(V_L0 + ct), v(f)))
        for dt in range(16):
            b = ((dt >> 1) * 2 + ct) * 8 + (dt & 1) * 4
            for k in range(4): o.append(valu('v_mul_f32', v(b + k), v(b + k), v(f)))
    o += softmax_body(t)
    o.append(nop(3))
    o.append(raw(f"s_setpc_b64 s[{S_RET}:{S_RET+1}]", 'branch', [s(S_RET, 2)]))
    return o

def onorm(i):
    ct = i & 1; b = 8 * i; rl = V_RL0 + ct; t = V_T
    out = []
    for k in range(8): out.append(valu('v_mul_f32', v(t + k), v(b + k), v(rl)))
    for k in range(4): out.append(valu('v_cvt_pk_bf16_f32', v(b + k), v(t + 2 * k), v(t + 2 * k + 1)))
    if i < 8: out.append(ds_write('ds_write_b128', v(V_XW), v(b, 4), i * 1024, tag='ow1'))
    return out

def units(x):
    if x.kind == 'trans': return 2
    if x.kind == 'nop': return x.tag + 1
    if x.kind == 'label': return 0
    return 1

def build():
    _last_base.clear()
    chunks, groups, marks = build_main()
    nchunks = len(chunks)
    fcount = 0
    for g in groups:
        g.bufs = []
        for _ in g.frs:
            g.bufs.append(A_FB + 4 * (fcount % CFG.nb)); fcount += 1
        g.f0 = fcount - len(g.frs)
        g.mf = g.mk(g.bufs)
    merged = set()
    if CFG.merge_waits:
        gi = 0
        while gi + 1 < len(groups):
            g, h = groups[gi], groups[gi + 1]
            nm = chunks[g.chunk].name
            on = (CFG.merge_waits == 'all') or (CFG.merge_waits == 'att' and nm[0] in 'KV') or (CFG.merge_waits == 'atto' and nm[0] in 'KVO') or (CFG.merge_waits == 'k' and nm[0] == 'K')
            if on:
                for b in h.bufs: g.mf[0].extra_need |= set(regs(a(b, 4)))
                merged.add(gi)
            gi += 2
    mstart = []; m = 0
    for g in groups:
        mstart.append(m); m += len(g.mf)
    mstart.append(m); NM = m
    M = {k: mstart[i] for k, i in marks.items()}
    chunk_first_m = {}
    for gi, g in enumerate(groups): chunk_first_m.setdefault(g.chunk, mstart[gi])
    chunk_first_m[nchunks] = NM
    def first_chunk(name):
        return min(i for i, c in enumerate(chunks) if c.name.startswith(name))
    forced = {first_chunk("O s0 j0"), first_chunk("O s0 j2"), first_chunk("O s0 j4"), first_chunk("O s0 j6")}
    bars = []; b = 0
    while b < nchunks:
        bars.append(b)
        b += 1 if (CFG.bar_every == 1 or (b + 1) in forced) else 2
    barset = set(bars)
    nextbar = {bb: (bars[i + 1] if i + 1 < len(bars) else nchunks) for i, bb in enumerate(bars)}
    def bar_at_or_after(c):
        return min(bb for bb in bars if bb >= c)

    side = []
    seq = [0]
    def spread(ins, m0, m1, early=True):
        n = len(ins)
        for k, x in enumerate(ins):
            side.append([m0 + (m1 - m0) * k / max(n, 1), seq[0], m0 if early else None, x]); seq[0] += 1
    def at(ins, m0):
        for x in ins:
            side.append([m0, seq[0], None, x]); seq[0] += 1
    LAT = 6
    if CFG.f1mix:
        spread(geglu(0), M["F1_1"] + LAT, M["F1_2"] - 2)
        spread(geglu(1), M["F1_2"] + LAT, M["Q_0"] - 2)
        spread(geglu(2), M["Q_0"] + LAT, M["Q_0"] + 76)
        spread(geglu(3), M["Q_0"] + 78, M["Q_1"] - 6)
    else:
        spread(geglu(0), M["F1_1"] + LAT, M["F1_2"] + 20)
        spread(geglu(1), M["F1_2"] + 24, M["F1_3"] + 10)
        spread(geglu(2), M["F1_3"] + 14, M["Q_0"] + 50)
        spread(geglu(3), M["Q_0"] + 54, M["Q_1"] - 8)
    pre_dma = {}
    pre_dma[first_chunk("Q ")] = dv_setup(V_DVB, 8192)
    pre_dma[first_chunk("F2")] = dv_setup(V_DVA, 896)
    pre_dma[first_chunk("K0")] = dv_setup_K(V_DVB)
    pre_dma[first_chunk("V0")] = dv_setup(V_DVA, 512)
    pre_dma[first_chunk("O ")] = dv_setup(V_DVB, 896)
    qn = ["Q_1", "Q_2", "Q_3", "F2_0"]; qe = ["Q_2", "Q_3", "F2_0", "F2_1"]
    for st in range(4):
        spread(qconv(st), M[qn[st]] + LAT, M[qe[st]] - 8)
    hc = bar_at_or_after(first_chunk("Q s2 j0"))
    fence = {hc: ['hw']}; fence_count = {'hw': 8, 'ow1': 8, 'ow2': 8, 'pr1': 8}
    q3 = first_chunk("Q s3 j0")
    for i in range(7):
        m0 = chunk_first_m[q3 + i // 2 + 1] + 1
        at([ds_read('ds_read_b128', a(A_H + (i * 2 + ct) * 4, 4), v(V_HR), i * 4096 + ct * 1024, tag='hr') for ct in range(2)], m0 + 2 * (i & 1))
    spread(gconv(0), M["F2_1"] + LAT, M["F2_2"] - 8)
    spread(gconv(1), M["F2_2"] + LAT, M["F2_3"] - 8)
    spread(gconv(2), M["F2_3"] + LAT, M["S_0"] + 8)
    spread(gconv(3), M["S_0"] + 12, M["S_1"] - 2)
    spread(softmax_first() + softmax_body(0), M["S_1"] + LAT, M["S_2"] - 2)
    at([valu('v_add_f32', v(V_L0), v(V_L0), v(V_TS0)), valu('v_add_f32', v(V_L1), v(V_L1), v(V_TS1))], M["S_2"] - 1)
    for t in range(1, 16):
        if t < 15: m0, m1 = M[f"S_{t+1}"], (M[f"S_{t+2}"] if t < 14 else M["PV_14"])
        else: m0, m1 = M["PV_14"], M["PV_15"]
        body = softmax_body(t)
        if t == 1: body = s1_fix() + body
        spread(body, m0 + (LAT if t == 1 else 1), m1 - 3)
        at(softmax_check(t), m1 - 1)
    k = 0
    for li in range(7):
        for ct in range(2):
            t = 1 + k
            at(gstore(li, ct), M[f"PV_{t-1}"] + 8); k += 1
    fin = interleave(xlane_reduce('v_add_f32', V_L0, V_T), xlane_reduce('v_add_f32', V_L1, V_T + 1))
    fin += [valu('v_rcp_f32', v(V_RL0), v(V_L0)), valu('v_rcp_f32', v(V_RL1), v(V_L1))]
    spread(fin, M["PV_15"], M["PV_15"] + 10, early=False)
    allnorm = []
    for ks in range(8): allnorm += onorm(2 * ks) + onorm(2 * ks + 1)
    spread(allnorm, M["PV_15"] + 12, M["O_0"] + 28, early=False)
    oj2, oj4, oj6 = first_chunk("O s0 j2"), first_chunk("O s0 j4"), first_chunk("O s0 j6")
    fence[oj2] = ['ow1']; fence[oj4] = ['pr1']; fence[oj6] = ['ow2']
    after_bar = {}
    after_bar[oj2] = [ds_read('ds_read_b128', a(A_PART + i * 4, 4), v(V_XR), i * 1024, tag='pr1') for i in range(8)]
    after_bar[oj4] = [ds_write('ds_write_b128', v(V_XW), v(8 * i, 4), (i - 8) * 1024, tag='ow2') for i in range(8, 16)]
    after_bar[oj6] = [ds_read('ds_read_b128', a(A_PART + i * 4, 4), v(V_XR), (i - 8) * 1024, tag='pr2') for i in range(8, 16)]
    o3 = [salu('s_lshl_b32', s(S_T0), s(S_CH), 13), salu('s_xor_b32', s(S_T2), s(S_T0), 8192)]
    for k in range(4): o3.append(valu('v_add_u32', v(V_TS + 4 + k), s(S_T2), v(V_TS + k)))
    for k in range(4): o3.append(valu('v_add_u32', v(V_TS + k), s(S_T0), v(V_TS + k)))
    spread(o3, M["O_1"] + 8, M["O_1"] + 30, early=False)
    spread(sconv(0), M["O_1"] + LAT, M["O_1"] + 60)
    spread(sconv(1), M["O_2"] + LAT, M["O_2"] + 60)
    spread(sconv(2), M["O_3"] + LAT, M["O_3"] + 40)
    tail = sconv(3)

    if CFG.warm_w:
        w_f1, w_setup, w_issue = warm_weights()
        for item in CFG.warm_main.split('+'):
            if not item: continue
            k, where, off = item.split(':')
            at(w_issue[k], M[where] + int(off))
    STAMP = ["F1_0", "Q_0", "F2_0", "S_0", "S_2", "PV_14", "O_0"]
    if CFG.stamps == 'pro': STAMP = ["F1_0", "F1_1", "F1_2", "F1_3"]
    if CFG.stamps == 'p2': STAMP = ["F1_0"]
    if CFG.stamps == 'f1': STAMP = ["F1_0", "F1_1", "F1_2", "F1_3", "Q_0", "Q_1", "Q_2"]
    if CFG.stamps == 'o': STAMP = ["PV_14", "PV_15", "O_0", "O_part", "O_1", "O_2", "O_3"]
    if CFG.stamps == 'q': STAMP = ["Q_0", "Q_1", "Q_2", "Q_3", "F2_0", "F2_2", "S_0"]
    if CFG.stamps == 'a': STAMP = ["S_2", "PV_0", "S_3", "PV_1", "S_4", "S_8", "S_12"]
    sbase = 3 if CFG.stamps == 'pro' else (6 if CFG.stamps == 'p2' else 0)
    if CFG.stamps:
        for k0, nm in enumerate(STAMP):
            k = k0 + sbase
            at([raw(f"s_memrealtime s[{74+2*k}:{75+2*k}]", 'salu')], M[nm])
    side.sort(key=lambda x: (x[0], x[1]))

    P = prologue()
    if CFG.warm_first and CFG.warm_w:
        xl = [x for x in P if x.kind == 'vload' and x.tag == 'x']
        P = [x for x in P if not (x.kind == 'vload' and x.tag == 'x')]
        k = [i for i, x in enumerate(P) if x.text.startswith('s_mov_b32 s11,')][0] + 1
        P = P[:k] + (w_f1 + xl if CFG.warm_first == 1 else xl + w_f1) + P[k:]
    if CFG.stamps:
        P.insert(2, raw("s_memrealtime s[88:89]", 'salu'))
        P.append(raw("s_mov_b32 s67, s88", 'salu'))
    pro_v = []
    if CFG.stamps == 'p2': P.append(raw("s_memrealtime s[74:75]", 'salu'))
    wc = warm_code() if CFG.warm_code else []
    P += wc
    if CFG.warm_w: P += w_setup
    P += prologue2()
    late = chunk_dma(0, chunks[0]) + chunk_dma(1, chunks[1])
    wl_b = chunk_dma(2, chunks[2]) + chunk_dma(3, chunks[3])
    if CFG.stamps == 'p2': P.append(raw("s_memrealtime s[76:77]", 'salu'))
    if CFG.stamps == 'p2': P.append(raw("s_memrealtime s[78:79]", 'salu'))
    LN = layernorm(late, wl_b)
    if CFG.stamps == 'p2':
        kb = [i for i, x in enumerate(LN) if x.kind == 'barrier'][0]
        LN.insert(kb, raw("s_memrealtime s[84:85]", 'salu'))
        kd = [i for i, x in enumerate(LN) if x.text.startswith('v_add_f32_dpp')][0]
        LN.insert(kd, raw("s_memrealtime s[82:83]", 'salu'))
        LN.insert(10, raw("s_memrealtime s[80:81]", 'salu'))
    if CFG.stamps == 'pro':
        LN.insert(8, raw("s_memrealtime s[76:77]", 'salu'))
        LN.insert(0, raw("s_memrealtime s[74:75]", 'salu'))
        kb = [i for i, x in enumerate(LN) if x.kind == 'barrier'][0]
        LN.insert(kb, raw("s_memrealtime s[78:79]", 'salu'))
    P += LN

    for gi, g in enumerate(groups):
        g.reads = []
        for fi, fr in enumerate(g.frs):
            g.reads += fr(g.bufs[fi], g.chunk % NSLOT, g.chunk)
    st8 = dict(opened=-1, issued=3, rg=0, ri=0, sp=0, prevbar=None)
    dq = []
    xq = []
    gap = [0]
    def emit(x):
        P.append(x); gap[0] += units(x)
    def open_bar(c, mi):
        while dq: emit(dq.pop(0)[1])
        if c in fence:
            for tg in fence[c]:
                have = sum(1 for x in P if x.tag == tg); want = fence_count[tg]
                assert have == want, (tg, have, want)
            P.append(wait_lgkm_tag(fence[c]))
        cover = list(range(c, nextbar[c]))
        P.append(wait_vm_tag([('dma', cc) for cc in cover])); gap[0] += 1
        emit(barrier())
        st8['opened'] = nextbar[c] - 1
        pb = st8['prevbar']
        lim = 5 if pb is None else pb + NSLOT - 1
        st8['prevbar'] = c
        todo = []
        while st8['issued'] < min(lim, nchunks - 1):
            n = st8['issued'] + 1
            if n in pre_dma: todo += pre_dma[n]
            todo += chunk_dma(n, chunks[n]); st8['issued'] = n
        nd = sum(1 for x in todo if x.kind == 'dma')
        if nd:
            L = max(4, chunk_first_m[nextbar[c]] - chunk_first_m[c] - 2)
            step = L / nd
            k = 0; pend = []
            for x in todo:
                if x.kind == 'dma':
                    pos = mi + 1 + k * step
                    for j, y in enumerate(pend): dq.append([pos - step * (len(pend) - j) / (len(pend) + 1) if k > 0 else mi, y])
                    pend = []
                    dq.append([pos, x]); k += 1
                else: pend.append(x)
        if c in after_bar: xq.extend(after_bar[c])
    def can_read(gidx, cur):
        g = groups[gidx]
        prevf = g.f0 + len(g.frs) - 1 - CFG.nb
        return prevf < 0 or groups[cur].f0 > prevf
    def issue_reads(cur, maxn, mi):
        n = 0
        while st8['rg'] < len(groups) and n < maxn and can_read(st8['rg'], cur):
            g = groups[st8['rg']]
            if g.chunk > st8['opened']:
                assert g.chunk in barset, g.chunk
                open_bar(g.chunk, mi)
            r = g.reads[st8['ri']]
            emit(r); st8['ri'] += 1; n += 1
            if st8['ri'] == len(g.reads): st8['rg'] += 1; st8['ri'] = 0
        return n
    while st8['rg'] < len(groups) and groups[st8['rg']].f0 + len(groups[st8['rg']].frs) <= CFG.nb: issue_reads(0, 1, 0)
    mi = 0
    for gi, g in enumerate(groups):
        while st8['rg'] <= gi:
            if not issue_reads(gi, 8, mi): raise Exception("cannot issue reads")
        for k, mf in enumerate(g.mf):
            P.append(mf); gap[0] = 0
            last = (k == len(g.mf) - 1)
            if last and gi not in merged: gap[0] += 1
            cur = gi + 1 if (last and gi + 1 < len(groups)) else gi
            nrd = len(groups[min(st8['rg'], len(groups) - 1)].reads)
            issue_reads(cur, 1 if len(g.mf) >= 4 else 2, mi)
            while xq and gap[0] < 2: emit(xq.pop(0))
            while dq and dq[0][0] <= mi: emit(dq.pop(0)[1])
            while st8['sp'] < len(side):
                dl, _, early, x = side[st8['sp']]
                if dl <= mi or (CFG.fill and early is not None and early <= mi and gap[0] + units(x) <= 2):
                    emit(x); st8['sp'] += 1
                else: break
            mi += 1
    while xq: emit(xq.pop(0))
    while st8['sp'] < len(side):
        P.append(side[st8['sp']][3]); st8['sp'] += 1
    P += tail
    if CFG.stamps: P.append(raw("s_memrealtime s[44:45]", 'salu'))
    P.append(raw("s_waitcnt vmcnt(0)", 'wait_raw'))
    if CFG.stamps:
        P.append(raw("s_memrealtime s[46:47]", 'salu'))
        P.append(raw("s_waitcnt lgkmcnt(0)", 'wait_raw'))
        P.append(salu('s_lshl_b32', s(S_T0), s(2), 2)); P.append(salu('s_add_u32', s(S_T0), s(S_T0), s(S_W))); P.append(salu('s_lshl_b32', s(S_T0), s(S_T0), 6))
        P.append(salu('s_add_u32', s(S_T0), s(S_T0), 30 << 20)); P.append(salu('s_mov_b32', s(S_WS + 2), 40 << 20))
        order = [67] + [74 + 2 * k for k in range(7)] + [44, 46, 46, 46]
        for k, r in enumerate(order): P.append(valu('v_mov_b32', v(k), s(r)))
        P.append(valu('v_mov_b32', v(16), 0))
        P.append(raw("s_mov_b64 exec, 1", 'salu'))
        for k in range(3): P.append(vstore('buffer_store_dwordx4', v(4 * k, 4), v(16), s(S_WS, 4), s(S_T0), 16 * k))
        P.append(raw("s_waitcnt vmcnt(0)", 'wait_raw'))
    P.append(label("L_main_end")); P.append(raw("s_endpgm", 'branch'))
    for t in range(1, 16):
        P.append(label(f"L_slow_{t}"))
        P.append(raw(f"s_call_b64 s[{S_RET}:{S_RET+1}], L_slowsub_{t & 1}", 'branch', [], [s(S_RET, 2)]))
        P.append(raw(f"s_branch L_back_{t}", 'branch'))
    P += slow_path(0); P += slow_path(1)
    P.append(label("L_main_code_end"))
    if CFG.stampop != 's_memrealtime':
        for x in P:
            if x.text.startswith('s_memrealtime'): x.text = x.text.replace('s_memrealtime', CFG.stampop)
    Pf, stats = finalize(P)
    if 'nodma' in CFG.abl: Pf = [x for x in Pf if x.kind != 'dma']
    if 'nobar' in CFG.abl: Pf = [x for x in Pf if x.kind != 'barrier']
    if 'novm' in CFG.abl: Pf = [x for x in Pf if not (x.kind == 'wait' and 'vmcnt' in x.text)]
    if 'nolgkm' in CFG.abl:
        k0 = [i for i, x in enumerate(Pf) if x.kind == 'mfma'][0]
        Pf = [x for i, x in enumerate(Pf) if i < k0 or not (x.kind == 'wait' and 'lgkm' in x.text)]
    if 'nostore' in CFG.abl: Pf = [x for x in Pf if not (x.kind == 'vstore' and x.tag in ('gst', 'sst'))]
    return Pf, stats, M, NM

def reduce_kernel():
    P = []; E = P.append
    E(salu('s_cmp_ge_u32', s(2), 448)); E(raw("s_cbranch_scc1 L_red_end", 'branch'))
    if CFG.stamps: E(raw("s_memrealtime s[34:35]", 'salu'))
    E(raw("s_load_dwordx2 s[4:5], s[0:1], 0")); E(raw("s_load_dwordx2 s[6:7], s[0:1], 72")); E(raw("s_load_dwordx2 s[8:9], s[0:1], 88"))
    E(valu('v_and_b32', v(1), 63, v(0))); E(valu('v_lshrrev_b32', v(2), 6, v(0)))
    E(valu('v_lshlrev_b32', v(3), 4, v(1)))
    E(valu('v_readfirstlane_b32', s(20), v(2)))
    E(salu('s_lshl_b32', s(21), s(2), 2)); E(salu('s_add_u32', s(21), s(21), s(20)))
    E(salu('s_mul_hi_u32', s(22), s(21), (2 ** 32 + 55) // 56))
    E(salu('s_mul_i32', s(23), s(22), 56)); E(salu('s_sub_u32', s(23), s(21), s(23)))
    E(raw("s_waitcnt lgkmcnt(0)", 'wait_raw'))
    E(salu('s_mov_b32', s(12), s(8))); E(salu('s_mov_b32', s(13), s(9))); E(salu('s_mov_b32', s(14), 2 * 256 * 57344)); E(salu('s_mov_b32', s(15), '0x00020000'))
    E(salu('s_mul_i32', s(24), s(22), 8 * 57344)); E(salu('s_lshl_b32', s(25), s(23), 10)); E(salu('s_add_u32', s(24), s(24), s(25)))
    for which in range(2):
        for k in range(8):
            E(salu('s_add_u32', s(26), s(24), which * 256 * 57344 + k * 57344))
            E(vload('buffer_load_dwordx4', v(16 + (which * 8 + k) * 4, 4), v(3), s(12, 4), s(26), 0, tag='p'))
    E(salu('s_and_b32', s(27), s(23), 1))
    E(salu('s_lshr_b32', s(28), s(23), 1))
    E(salu('s_cmp_ge_u32', s(28), 14)); E(salu('s_cselect_b32', s(29), 1, 0))
    E(salu('s_mul_i32', s(30), s(29), 14)); E(salu('s_sub_u32', s(28), s(28), s(30)))
    E(salu('s_lshl_b32', s(30), s(22), 6)); E(salu('s_lshl_b32', s(31), s(29), 5)); E(salu('s_add_u32', s(30), s(30), s(31)))
    E(salu('s_lshl_b32', s(31), s(27), 4)); E(salu('s_add_u32', s(30), s(30), s(31)))
    E(salu('s_mul_i32', s(30), s(30), 896)); E(salu('s_lshl_b32', s(31), s(28), 6)); E(salu('s_add_u32', s(30), s(30), s(31)))
    E(valu('v_and_b32', v(4), 15, v(1))); E(valu('v_lshrrev_b32', v(5), 4, v(1)))
    E(salu('s_mov_b32', s(32), 896)); E(valu('v_lshlrev_b32', v(5), 4, v(5))); E(valu('v_mad_u32_u24', v(4), v(4), s(32), v(5)))
    E(salu('s_mov_b32', s(16), s(4))); E(salu('s_mov_b32', s(17), s(5))); E(salu('s_mov_b32', s(18), 2048 * 896)); E(salu('s_mov_b32', s(19), '0x00020000'))
    E(vload('buffer_load_dwordx4', v(8, 4), v(4), s(16, 4), s(30), 0, tag='x'))
    E(salu('s_mov_b32', s(33), '0xffff0000'))
    for which in range(2):
        acc = 80 + 8 * which
        for k in range(8):
            src = 16 + (which * 8 + k) * 4
            for d in range(4):
                E(valu('v_lshlrev_b32', v(96), 16, v(src + d))); E(valu('v_and_b32', v(97), s(33), v(src + d)))
                if k == 0:
                    E(valu('v_mov_b32', v(acc + 2 * d), v(96))); E(valu('v_mov_b32', v(acc + 2 * d + 1), v(97)))
                else:
                    E(valu('v_add_f32', v(acc + 2 * d), v(acc + 2 * d), v(96))); E(valu('v_add_f32', v(acc + 2 * d + 1), v(acc + 2 * d + 1), v(97)))
    for k in range(8): E(valu('v_mul_f32', v(100 + k), lit(-math.log2(math.e)), v(88 + k)))
    for k in range(8): E(valu('v_exp_f32', v(100 + k), v(100 + k)))
    for k in range(8): E(valu('v_add_f32', v(100 + k), '1.0', v(100 + k)))
    for k in range(8): E(valu('v_rcp_f32', v(100 + k), v(100 + k)))
    for k in range(8): E(valu('v_mul_f32', v(88 + k), v(88 + k), v(100 + k)))
    for k in range(8): E(valu('v_mul_f32', v(80 + k), v(80 + k), v(88 + k)))
    for k in range(4): E(valu('v_cvt_pk_bf16_f32', v(108 + k), v(80 + 2 * k), v(81 + 2 * k)))
    E(valu('v_permlane32_swap_b32', v(108), v(110))); E(valu('v_permlane32_swap_b32', v(109), v(111)))
    E(valu('v_permlane16_swap_b32', v(108), v(110))); E(valu('v_permlane16_swap_b32', v(109), v(111)))
    for d in range(4):
        E(valu('v_lshlrev_b32', v(80 + 2 * d), 16, v(108 + d))); E(valu('v_and_b32', v(81 + 2 * d), s(33), v(108 + d)))
        E(valu('v_lshlrev_b32', v(88 + 2 * d), 16, v(8 + d))); E(valu('v_and_b32', v(89 + 2 * d), s(33), v(8 + d)))
    for k in range(8): E(valu('v_add_f32', v(80 + k), v(80 + k), v(88 + k)))
    for k in range(4): E(valu('v_cvt_pk_bf16_f32', v(108 + k), v(80 + 2 * k), v(81 + 2 * k)))
    E(salu('s_mov_b32', s(16), s(6))); E(salu('s_mov_b32', s(17), s(7)))
    E(vstore('buffer_store_dwordx4', v(108, 4), v(4), s(16, 4), s(30), 0))
    E(raw("s_waitcnt vmcnt(0)", 'wait_raw'))
    if CFG.stamps:
        E(raw("s_memrealtime s[36:37]", 'salu')); E(raw("s_waitcnt lgkmcnt(0)", 'wait_raw'))
        E(salu('s_lshl_b32', s(21), s(21), 3)); E(salu('s_add_u32', s(21), s(21), 31 << 20)); E(salu('s_mov_b32', s(14), 40 << 20))
        E(valu('v_mov_b32', v(8), s(34))); E(valu('v_mov_b32', v(9), s(36))); E(valu('v_mov_b32', v(10), 0))
        E(raw("s_mov_b64 exec, 1", 'salu'))
        E(vstore('buffer_store_dwordx2', v(8, 2), v(10), s(12, 4), s(21), 0)); E(raw("s_waitcnt vmcnt(0)", 'wait_raw'))
    E(label("L_red_end")); E(raw("s_endpgm", 'branch'))
    Pf, _ = finalize(P)
    return Pf

HEADER = """; Kernarg layout (96 bytes, ptrs only, base s[0:1]):
; Generated by gen/gen.py (hand-written generator).  Two launches:
;  1. fused_main_kernel: workgroup = (64 rows, kv head): LayerNorm, GEGLU FFN slice, q projection, attention, output projection
;     -> bf16 partial sums of s and g in d_ws
; @launch kernel=fused_main_kernel grid=(256,1,1) block=(256,1,1) lds=163840
; @launch kernel=fused_reduce_kernel grid=(448,1,1) block=(256,1,1) lds=0
.amdgcn_target "amdgcn-amd-amdhsa--gfx950"
.text
"""
def kd(name, nv, acc, ns):
    return f""".section .rodata,"a"
.p2align 6
.amdhsa_kernel {name}
  .amdhsa_next_free_vgpr {nv}
  .amdhsa_next_free_sgpr {ns}
  .amdhsa_accum_offset {acc}
  .amdhsa_group_segment_fixed_size 0
  .amdhsa_kernarg_size 96
  .amdhsa_user_sgpr_count 2
  .amdhsa_user_sgpr_kernarg_segment_ptr 1
  .amdhsa_system_sgpr_workgroup_id_x 1
  .amdhsa_float_denorm_mode_32 3
.end_amdhsa_kernel
"""
def generate():
    Pm, stats, M, NM = build()
    Pr = reduce_kernel()
    t = HEADER
    t += f".globl {MAIN}\n.p2align 8\n.type {MAIN},@function\n{MAIN}:\n" + text(Pm) + "\n"
    t += f".globl {RED}\n.p2align 8\n.type {RED},@function\n{RED}:\n" + text(Pr) + "\n"
    t += kd(MAIN, 512, 256, 102) + kd(RED, 112, 112, 40)
    return t, Pm, stats, M, NM

if __name__ == "__main__":
    for arg in sys.argv[2:]:
        k, val = arg.split("=")
        setattr(CFG, k, {"True": True, "False": False}.get(val, int(val) if val.lstrip('-').isdigit() else val))
    t, Pm, stats, M, NM = generate()
    out = sys.argv[1] if len(sys.argv) > 1 else f"cdna_kernels/{KNAME}.s"
    open(out, "w").write(t)
    from collections import Counter
    cn = Counter(i.kind for i in Pm)
    print("instrs:", len(Pm), dict(cn)); print(stats, "NM", NM)
```

```python
import sys, math
from asmlib import *

KNAME = "recurrent_scan__sliding_block_cached__glu_gated_geglu__prompt"
MAIN = "fused_main_kernel"
RED = "fused_reduce_kernel"

class Cfg:
    merge_waits = 'all'
    qlds = False
    f1mix = False
    warm_first = 2
    warm_pro = 'f1'
    warm_main = 'wq:F1_2:2+wd:Q_2:2+k:F2_0:2+v:F2_0:9+wo:S_8:2'
    pro_order = 1
    warm_gran = 128
    warm_early = 2
    bar_every = 2
    fill = True
    pkln = True
    warm_code = True
    warm_w = True
    code_bytes = 72 * 1024
    gdma = True
    dma_gap = 4
    abl = ''
    stampop = 's_memrealtime'
    stamps = False
    store_flags = "sc1"
    gstore_flags = None
    debug = None
    nb = 12
CFG = Cfg()

SLOT = 16384; NSLOT = 8; XA = 131072; XSTAGE = 98304; LDS_BYTES = 163840
XROW = 912
AHEAD = 4

S_X, S_F1, S_WQ, S_WD, S_K, S_V, S_WO, S_WS = 4, 8, 12, 16, 20, 24, 28, 32
S_WG, S_WU = 56, 60
S_KVH, S_RB, S_W, S_CH, S_RH, S_PAR, S_WLDS, S_SOFF = 36, 37, 38, 39, 40, 41, 42, 43
S_F1B = 44
S_QB = 48
S_F2B = 49
S_F2C3, S_F2C10, S_F2C11, S_F2C12 = 52, 53, 54, 55
S_KB, S_VB = 56, 57
S_OOWN = 58
S_OPAR = 61
S_KA = 64
S_O3 = 88
S_PB = 89
S_CB = 90
S_HI = 94
S_T0, S_T1, S_T2 = 98, 99, 100
S_THR = 101
S_ONES = 3
S_RET = 64
S_GB = 66

V_S = 128; V_P = 160; V_NEGM = 176; V_T = 184
V_L0, V_L1, V_TS0, V_TS1, V_TM, V_C1 = 192, 193, 194, 195, 196, 197
V_TAC = 200; V_TS = 208; V_TH = 212; V_KA = 216; V_TA = 224
V_DVA = 232; V_DVB = 236
V_L16, V_HW, V_HR, V_R8, V_SC16, V_XW, V_XR = 240, 241, 242, 243, 244, 245, 246
V_RL0, V_RL1 = 247, 248
V_F1H = 128
V_QW, V_QR = 92, 93
V_LANE, V_N16, V_GQ = 249, 250, 251
V_U0, V_U1, V_U2, V_U3 = 252, 253, 254, 255
HIOFF = 65536
SETS = [0, 32, 96]
def accset(gstep): return SETS[gstep % 3]
A_XB = 0; A_H = 0; A_FB = 112; A_Q = 192; A_G = 56; A_PART = 192

C_GELU0 = -2.0 * math.sqrt(2.0 / math.pi) * math.log2(math.e)
C_GELU1 = C_GELU0 * 0.044715
C_QS = math.log2(math.e) / 16.0
import struct
def f2u(x): return struct.unpack("<I", struct.pack("<f", x))[0]
def lit(x): return f"0x{f2u(x):08x}"

class Group:
    def __init__(self, chunk, frs, mk):
        self.chunk = chunk; self.frs = frs; self.mk = mk
class Chunk:
    def __init__(self, name, srd, dv, soff, imm):
        self.name = name; self.srd = srd; self.dv = dv; self.soff = soff; self.imm = imm; self.pair = dv

def tr_reads(addr_lo, off):
    lo, hi = addr_lo
    def f(buf, slot, c):
        ar = lo if slot < 4 else hi
        o = (slot % 4) * SLOT + off
        return [ds_read("ds_read_b64_tr_b16", a(buf, 2), v(ar), o, tag=('rd', c)),
                ds_read("ds_read_b64_tr_b16", a(buf + 2, 2), v(ar), o + 2048, tag=('rd', c))]
    return f
def b128_read(addr_lo, off):
    lo, hi = addr_lo
    def f(buf, slot, c):
        ar = lo if slot < 4 else hi
        o = (slot % 4) * SLOT + off
        return [ds_read("ds_read_b128", a(buf, 4), v(ar), o, tag=('rd', c))]
    return f

def build_main():
    chunks = []; groups = []
    marks = {}
    def mark(n): marks[n] = len(groups)
    def newchunk(*args):
        chunks.append(Chunk(*args)); return len(chunks) - 1
    TAC = lambda tt: (V_TAC + tt, V_TAC + 4 + tt)
    TS = lambda ti: (V_TS + ti, V_TS + 2 + ti)
    TH = (V_TH, V_TH + 1)
    KA = lambda i: (V_KA + i, V_KA + 4 + i)
    TA = lambda tt: (V_TA + tt, V_TA + 4 + tt)
    XB = lambda ks, ct: a(A_XB + (ks * 2 + ct) * 4, 4)

    def pair_mk(accf, Bf, first):
        def mk(fr):
            out = []
            for ct in range(2):
                for i, f in enumerate(fr):
                    d = v(accf(ct), 4)
                    C = '0' if (first and i == 0) else d
                    out.append(mfma(d, a(f, 4), Bf(i, ct), C, need=[a(x, 4) for x in fr] if (ct == 0 and i == 0) else ()))
            return out
        return mk

    def f1_chunk(st, j):
        base = accset(st) if (st < 3 or not CFG.f1mix) else V_F1H
        c = newchunk(f"F1 s{st} j{j}", S_F1, V_DVA, S_F1B + st, j * 64 * 3584)
        if st == 3 and CFG.f1mix: chunks[c].pair = V_DVB
        tis = range(2) if st < 3 else range(1)
        for ti in tis:
            for mat in range(2):
                ad = TS(ti) if st < 3 else TH
                frs = [tr_reads(ad, (ksl * 2 + mat) * 4096) for ksl in range(2)]
                accf = (lambda ct, mat=mat, ti=ti, base=base: base + ((mat * 2 + ti) * 2 + ct) * 4)
                Bf = (lambda i, ct, j=j: XB(2 * j + i, ct))
                groups.append(Group(c, frs, pair_mk(accf, Bf, j == 0)))
    if CFG.f1mix:
        n = 0
        for st in range(3):
            mark(f"F1_{st}")
            for j in range(7):
                f1_chunk(st, j); n += 1
                if n % 3 == 1: f1_chunk(3, n // 3)
        mark("F1_3")
    else:
        for st in range(4):
            mark(f"F1_{st}")
            for j in range(7): f1_chunk(st, j)
    for st in range(4):
        mark(f"Q_{st}")
        base = accset(4 + st)
        for j in range(7):
            c = newchunk(f"Q s{st} j{j}", S_WQ, V_DVB, S_QB, j * 64 * 8192 + st * 128)
            for tt in range(4):
                frs = [tr_reads(TAC(tt), ksl * 4096) for ksl in range(2)]
                accf = (lambda ct, tt=tt, base=base: base + (tt * 2 + ct) * 4)
                Bf = (lambda i, ct, j=j: XB(2 * j + i, ct))
                groups.append(Group(c, frs, pair_mk(accf, Bf, j == 0)))
    HB = lambda ks, ct: a(A_H + (ks * 2 + ct) * 4, 4)
    KR = 32 * 896
    def f2_pair(c, st, ks0, first):
        base = accset(8 + st)
        for tt in range(4):
            frs = [tr_reads(TAC(tt), ksl * 4096) for ksl in range(2)]
            accf = (lambda ct, tt=tt, base=base: base + (tt * 2 + ct) * 4)
            groups.append(Group(c, frs, pair_mk(accf, (lambda i, ct, ks0=ks0: HB(ks0 + i, ct)), first)))
    def f2_single(c, st, ks, item, first):
        base = accset(8 + st)
        for tt in range(4):
            frs = [tr_reads(TAC(tt), item * 4096)]
            accf = (lambda ct, tt=tt, base=base: base + (tt * 2 + ct) * 4)
            groups.append(Group(c, frs, pair_mk(accf, (lambda i, ct, ks=ks: HB(ks, ct)), first)))
    def f2_shared(c, kss, items, first):
        for ti in range(2):
            frs = [tr_reads(TS(ti), it * 4096) for it in items]
            accf = (lambda ct, ti=ti: accset(11) + (ti * 2 + ct) * 4)
            groups.append(Group(c, frs, pair_mk(accf, (lambda i, ct, kss=kss: HB(kss[i], ct)), first)))
    mark("F2_0")
    for i in range(3):
        c = newchunk(f"F2 s0 p{i}", S_WD, V_DVA, S_F2B + 0, 2 * i * KR); f2_pair(c, 0, 2 * i, i == 0)
    c = newchunk("F2 c3", S_WD, V_DVA, S_F2C3, 6 * KR)
    f2_single(c, 0, 6, 0, False)
    mark("F2_1")
    f2_single(c, 1, 6, 1, True)
    for i in range(3):
        c = newchunk(f"F2 s1 p{i}", S_WD, V_DVA, S_F2B + 1, 2 * i * KR); f2_pair(c, 1, 2 * i, False)
    mark("F2_2")
    for i in range(3):
        c = newchunk(f"F2 s2 p{i}", S_WD, V_DVA, S_F2B + 2, 2 * i * KR); f2_pair(c, 2, 2 * i, i == 0)
    c = newchunk("F2 c10", S_WD, V_DVA, S_F2C10, 0)
    f2_single(c, 2, 6, 0, False)
    mark("F2_3")
    f2_shared(c, [0, 1], [1, 3], True)
    c = newchunk("F2 c11", S_WD, V_DVA, S_F2C11, 2 * KR)
    f2_shared(c, [2, 3], [0, 1], False)
    f2_shared(c, [4, 5], [2, 3], False)
    c = newchunk("F2 c12", S_WD, V_DVA, S_F2C12, 0)
    f2_shared(c, [6], [0], False)
    QB = lambda ks, ct: a(A_Q + (ks * 2 + ct) * 4, 4)
    Sreg = lambda t, T, ct: V_S + 16 * (t & 1) + (ct * 2 + T) * 4
    Preg = lambda t, ct: V_P + 8 * (t & 1) + ct * 4
    Oacc = lambda dt, ct: ((dt >> 1) * 2 + ct) * 8 + (dt & 1) * 4
    def S_phase(t):
        mark(f"S_{t}")
        c = newchunk(f"K{t}", S_K, V_DVB, S_KB, t * 16384)
        for T in range(2):
            for kp in range(4):
                frs = [b128_read(KA((2 * kp + i) & 3), T * 8192 + ((2 * kp + i) >> 2) * 256) for i in range(2)]
                def mk(fr, T=T, kp=kp, t=t):
                    out = []
                    for ct in range(2):
                        for i, f in enumerate(fr):
                            d = v(Sreg(t, T, ct), 4)
                            if kp == 0 and i == 0:
                                C = '0' if t < 2 else v(V_NEGM + 4 * ct, 4)
                            else: C = d
                            out.append(mfma(d, a(f, 4), QB(2 * kp + i, ct), C, need=[a(x, 4) for x in fr] if (ct == 0 and i == 0) else ()))
                    return out
                groups.append(Group(c, frs, mk))
    def PV_phase(t):
        mark(f"PV_{t}")
        c = newchunk(f"V{t}", S_V, V_DVA, S_VB, t * 16384)
        for dp in range(8):
            frs = [tr_reads(TA((2 * dp + i) & 3), ((2 * dp + i) >> 2) * 4096) for i in range(2)]
            def mk(fr, dp=dp, t=t):
                out = []
                for i, f in enumerate(fr):
                    for ct in range(2):
                        d = v(Oacc(2 * dp + i, ct), 4)
                        C = '0' if t == 0 else d
                        out.append(mfma(d, a(f, 4), v(Preg(t, ct), 4), C, need=[a(x, 4) for x in fr] if (ct == 0 and i == 0) else ()))
                return out
            groups.append(Group(c, frs, mk))
    S_phase(0); S_phase(1)
    for t in range(1, 15):
        S_phase(t + 1); PV_phase(t - 1)
    PV_phase(14); PV_phase(15)
    OWN = lambda ks, ct: v((ks * 2 + ct) * 8, 4)
    PART = lambda ks, ct: a(A_PART + (ks * 2 + ct) * 4, 4)
    OB = lambda kk, ct: OWN(kk, ct) if kk < 8 else PART(kk - 8, ct)
    OR = 64 * 896
    for st in range(3):
        mark(f"O_{st}")
        base = 128 + 32 * (st & 1)
        for j in range(8):
            if j < 4: c = newchunk(f"O s{st} j{j}", S_WO, V_DVB, S_OOWN + st, j * OR)
            else: c = newchunk(f"O s{st} j{j}", S_WO, V_DVB, S_OPAR + st, (j - 4) * OR)
            if st == 0 and j == 4: mark("O_part")
            for tt in range(4):
                frs = [tr_reads(TAC(tt), ksl * 4096) for ksl in range(2)]
                accf = (lambda ct, tt=tt, base=base: base + (tt * 2 + ct) * 4)
                groups.append(Group(c, frs, pair_mk(accf, (lambda i, ct, j=j: OB(2 * j + i, ct)), j == 0)))
    mark("O_3")
    for j in range(4):
        c = newchunk(f"O s3 j{j}", S_WO, V_DVB, S_O3, j * OR)
        for who in range(2):
            for ti in range(2):
                ad = (V_TS + who * 4 + ti, V_TS + who * 4 + 2 + ti)
                frs = [tr_reads(ad, ksl * 4096) for ksl in range(2)]
                accf = (lambda ct, ti=ti: 160 + (ti * 2 + ct) * 4)
                groups.append(Group(c, frs, pair_mk(accf, (lambda i, ct, j=j, who=who: OB(8 * who + 2 * j + i, ct)), j == 0 and who == 0)))
    mark("END")
    return chunks, groups, marks

def prologue():
    P = []
    E = P.append
    E(salu('s_cmp_ge_u32', s(2), 256)); E(raw("s_cbranch_scc1 L_main_end", 'branch'))
    E(raw(f"s_load_dwordx16 s[{S_KA}:{S_KA+15}], s[0:1], 0"))
    E(raw(f"s_load_dwordx8 s[{S_KA+16}:{S_KA+23}], s[0:1], 64"))
    if CFG.warm_code: P += warm_code()
    E(valu('v_and_b32', v(V_LANE), 63, v(0)))
    E(valu('v_lshrrev_b32', v(V_U0), 6, v(0)))
    E(valu('v_and_b32', v(V_N16), 15, v(V_LANE)))
    E(valu('v_readfirstlane_b32', s(S_W), v(V_U0)))
    E(valu('v_lshrrev_b32', v(V_GQ), 4, v(V_LANE)))
    E(valu('v_lshrrev_b32', v(V_R8), 3, v(V_LANE)))
    E(valu('v_lshlrev_b32', v(V_L16), 4, v(V_LANE)))
    E(salu('s_and_b32', s(S_KVH), s(2), 7)); E(salu('s_lshr_b32', s(S_RB), s(2), 3))
    E(salu('s_and_b32', s(S_PAR), s(S_KVH), 1))
    E(salu('s_and_b32', s(S_RH), s(S_W), 1)); E(salu('s_lshr_b32', s(S_CH), s(S_W), 1))
    E(salu('s_lshl_b32', s(S_WLDS), s(S_W), 12))
    E(valu('v_and_b32', v(V_U1), 7, v(V_LANE)))
    E(valu('v_lshlrev_b32', v(V_U2), 4, v(V_U1)))
    E(salu('s_mov_b32', s(S_T0), 896))
    E(valu('v_mad_u32_u24', v(V_U0), v(V_R8), s(S_T0), v(V_U2)))
    E(raw("s_waitcnt lgkmcnt(0)", 'wait_raw'))
    kx, kk, kv, kwq, kwo, kwg, kwu, kwd, kws = [S_KA + o for o in (0, 2, 4, 6, 8, 12, 14, 16, 22)]
    def srd(dst, ptr, nbytes):
        E(salu('s_mov_b32', s(dst), s(ptr))); E(salu('s_mov_b32', s(dst + 1), s(ptr + 1)))
        E(salu('s_mov_b32', s(dst + 2), nbytes)); E(salu('s_mov_b32', s(dst + 3), '0x00020000'))
    srd(S_X, kx, 2048 * 896)
    E(salu('s_mul_i32', s(S_T0), s(S_RB), 57344)); E(salu('s_mul_i32', s(S_T1), s(S_W), 14336))
    E(salu('s_add_u32', s(S_T0), s(S_T0), s(S_T1))); E(salu('s_add_u32', s(S_T1), s(S_T0), 7168))
    for p in range(2):
        for i in range(7):
            E(vload('buffer_load_dwordx4', v((p * 7 + i) * 4, 4), v(V_U0), s(S_X, 4), s(S_T0 + p), i * 128, tag='x'))
    E(salu('s_cmp_eq_u32', s(S_RH), 0))
    E(salu('s_cselect_b32', s(S_F1), s(kwg), s(kwu))); E(salu('s_cselect_b32', s(S_F1 + 1), s(kwg + 1), s(kwu + 1)))
    E(salu('s_mov_b32', s(S_F1 + 2), 448 * 3584)); E(salu('s_mov_b32', s(S_F1 + 3), '0x00020000'))
    srd(S_WQ, kwq, 448 * 8192); srd(S_WD, kwd, 1792 * 896); srd(S_WO, kwo, 4096 * 896)
    srd(S_WS, kws, 2 * 256 * 57344)
    for (dst, ptr) in ((S_K, kk), (S_V, kv)):
        E(salu('s_lshl_b32', s(S_T2), s(S_KVH), 20)); E(salu('s_add_u32', s(S_T2), s(S_T2), 1536 * 512))
        E(salu('s_add_u32', s(dst), s(ptr), s(S_T2))); E(salu('s_addc_u32', s(dst + 1), s(ptr + 1), 0))
        E(salu('s_mov_b32', s(dst + 2), 512 * 512)); E(salu('s_mov_b32', s(dst + 3), '0x00020000'))
    E(valu('v_lshrrev_b32', v(V_U2), 1, v(V_R8))); E(valu('v_and_b32', v(V_U2), 3, v(V_U2)))
    E(valu('v_lshlrev_b32', v(V_U2), 1, v(V_U2))); E(valu('v_xor_b32', v(V_U2), v(V_U2), v(V_U1)))
    E(valu('v_lshlrev_b32', v(V_SC16), 4, v(V_U2)))
    P += dv_setup(V_DVA, 3584)
    E(salu('s_mul_i32', s(S_T0), s(S_KVH), 7)); E(salu('s_lshr_b32', s(S_T0), s(S_T0), 1)); E(salu('s_lshl_b32', s(S_T0), s(S_T0), 7))
    E(salu('s_mul_i32', s(S_T1), s(S_CH), 32 * 3584)); E(salu('s_add_u32', s(S_T0), s(S_T0), s(S_T1)))
    for st in range(4):
        P += sel(S_T1, S_PAR, st * 128, (3 - st) * 128)
        E(salu('s_add_u32', s(S_F1B + st), s(S_T0), s(S_T1)))
    return P

def sel(dst, cond, v0, v1):
    d = (v1 - v0) & 0xffffffff
    return [salu('s_mul_i32', s(dst), s(cond), f"0x{d:x}"), salu('s_add_u32', s(dst), s(dst), v0)]

def dv_setup(dst, stride):
    out = [salu('s_mov_b32', s(S_T2), stride),
           valu('v_mad_u32_u24', v(dst), v(V_R8), s(S_T2), v(V_SC16))]
    for j in range(1, 4):
        out.append(valu('v_add_u32', v(dst + j), j * (8 * stride - 1024), v(dst)))
    return out
def dv_setup_K(dst):
    out = [valu('v_lshrrev_b32', v(V_U0), 5, v(V_LANE)), valu('v_and_b32', v(V_U1), 31, v(V_LANE)),
           salu('s_lshl_b32', s(S_T2), s(S_RH), 3),
           valu('v_xor_b32', v(V_U1), v(V_U1), v(V_U0)),
           valu('v_xor_b32', v(V_U1), s(S_T2), v(V_U1)),
           valu('v_lshlrev_b32', v(V_U0), 9, v(V_U0))]
    for j in range(4):
        out.append(valu('v_xor_b32', v(V_U2), 2 * j, v(V_U1)))
        out.append(valu('v_lshl_add_u32', v(dst + j), v(V_U2), 4, v(V_U0)))
    return out

S_GA = {V_DVA: 68, V_DVB: 70}
S_GC = 72
_last_base = {}
def chunk_dma(c, ch):
    slot = c % NSLOT
    if CFG.gdma:
        out = []
        ga = S_GA[ch.pair]
        if _last_base.get(ch.pair) != (ch.srd, ch.soff):
            _last_base[ch.pair] = (ch.srd, ch.soff)
            out += [salu('s_add_u32', s(ga), s(ch.srd), s(ch.soff)), salu('s_addc_u32', s(ga + 1), s(ch.srd + 1), 0)]
        out += [salu('s_add_u32', 'm0', s(S_WLDS), slot * SLOT),
                salu('s_add_u32', s(S_GC), s(ga), ch.imm), salu('s_addc_u32', s(S_GC + 1), s(ga + 1), 0)]
        for j in range(4): out.append(gdma(v(ch.dv + j), s(S_GC, 2), j * 1024, tag=('dma', c)))
        return out
    out = [salu('s_add_u32', 'm0', s(S_WLDS), slot * SLOT),
           salu('s_add_u32', s(S_SOFF), s(ch.soff), ch.imm)]
    for j in range(4):
        imm = j * 1024
        out.append(dma(v(ch.dv + j), s(ch.srd, 4), s(S_SOFF), imm, tag=('dma', c)))
    return out

V_DUM = 198
def warm_code():
    return [raw("s_getpc_b64 s[92:93]", 'salu', [], [s(92, 2)]), label("L_pc_here"),
            salu('s_and_b32', s(93), s(93), '0xffff'),
            raw("s_mov_b32 s94, L_all_code_end-L_pc_here", 'salu', [], [s(94)]), salu('s_mov_b32', s(95), '0x00020000'),
            salu('s_lshr_b32', s(96), s(2), 3), salu('s_and_b32', s(96), s(96), 3), salu('s_lshl_b32', s(96), s(96), 15),
            valu('v_lshlrev_b32', v(V_U3), 7, v(0)),
            vload('buffer_load_dword', v(198), v(V_U3), s(92, 4), s(96), 0, tag='warm')]
WARM_V = {'wq': 132, 'wd': 133, 'k': 134, 'v': 135, 'wo': 199}
WARM_S = {'wq': 4, 'wd': 5, 'k': 6, 'v': 7, 'wo': 43}
def warm_weights():
    W0, W1, W2 = 88, 89, 90
    T0, T2 = 64, 65
    G = CFG.warm_gran; lg = {64: 6, 128: 7}[G]
    head = [valu('v_mov_b32', v(W2), '0x7ffffff0')]
    setup = {}; issue = {}
    def lin(key, srd, nbytes, base):
        V, T1 = WARM_V[key], WARM_S[key]
        per = -(-nbytes // G // 128)
        o = [base(T1), salu('s_mul_i32', s(T2), s(T0), per * G), salu('s_add_u32', s(T1), s(T1), s(T2)),
             valu('v_lshlrev_b32', v(V), lg, v(V_LANE)),
             valu('v_cmp_gt_u32', 'vcc', per, v(V_LANE)), nop(0), valu('v_cndmask_b32', v(V), v(W2), v(V), 'vcc')]
        setup[key] = o; issue[key] = [vload('buffer_load_dword', v(198), v(V), s(srd, 4), s(T1), 0, tag='warm')]
    def strided(key, V, T1, srd, rowbytes, stride, nwaves, colbase):
        npr = rowbytes // G; lgr = npr.bit_length() - 1
        per = 448 * npr // nwaves
        o = list(colbase)
        o += [salu('s_mul_i32', s(T2), s(T0), per),
              valu('v_add_u32', v(W0), s(T2), v(V_LANE)),
              valu('v_lshrrev_b32', v(W1), lgr, v(W0)), valu('v_and_b32', v(W0), npr - 1, v(W0)),
              salu('s_mov_b32', s(T2), stride), valu('v_lshlrev_b32', v(W0), lg, v(W0)),
              valu('v_mad_u32_u24', v(V), v(W1), s(T2), v(W0)),
              valu('v_cmp_gt_u32', 'vcc', per, v(V_LANE)), nop(0), valu('v_cndmask_b32', v(V), v(W2), v(V), 'vcc')]
        setup[key] = o; issue[key] = [vload('buffer_load_dword', v(198), v(V), s(srd, 4), s(T1), 0, tag='warm')]
    strided('f1', 91, 43, S_F1, 512, 3584, 64,
            [salu('s_mul_i32', s(43), s(S_KVH), 7), salu('s_lshr_b32', s(43), s(43), 1), salu('s_lshl_b32', s(43), s(43), 7)])
    f1 = head + [salu('s_lshl_b32', s(T0), s(S_RB), 1), salu('s_add_u32', s(T0), s(T0), s(S_CH))] + setup.pop('f1') + issue.pop('f1')
    strided('wq', WARM_V['wq'], WARM_S['wq'], S_WQ, 1024, 8192, 128, [salu('s_lshl_b32', s(WARM_S['wq']), s(S_KVH), 10)])
    lin('wd', S_WD, 224 * 896, lambda r: salu('s_mul_i32', s(r), s(S_KVH), 224 * 896))
    lin('k', S_K, 262144, lambda r: salu('s_mov_b32', s(r), 0)); lin('v', S_V, 262144, lambda r: salu('s_mov_b32', s(r), 0))
    lin('wo', S_WO, 512 * 896, lambda r: salu('s_mul_i32', s(r), s(S_KVH), 512 * 896))
    allsetup = head + [salu('s_lshl_b32', s(T0), s(S_RB), 2), salu('s_add_u32', s(T0), s(T0), s(S_W))]
    for k in ('wq', 'wd', 'k', 'v', 'wo'): allsetup += setup[k]
    return f1, allsetup, issue

def prologue2():
    P = []; E = P.append
    E(salu('s_lshl_b32', s(S_T0), s(S_KVH), 1)); E(salu('s_add_u32', s(S_T0), s(S_T0), s(S_CH))); E(salu('s_lshl_b32', s(S_T0), s(S_T0), 9))
    E(salu('s_lshl_b32', s(S_T1), s(S_RH), 18)); E(salu('s_add_u32', s(S_QB), s(S_T0), s(S_T1)))
    KR = 32 * 896
    E(salu('s_mul_i32', s(S_T0), s(S_KVH), 224 * 896))
    E(salu('s_mul_i32', s(S_T1), s(S_RH), KR))
    for st in range(3):
        P += sel(S_T2, S_CH, st * 128, (6 - st) * 128)
        E(salu('s_add_u32', s(S_F2B + st), s(S_T0), s(S_T2))); E(salu('s_add_u32', s(S_F2B + st), s(S_F2B + st), s(S_T1)))
    P += sel(S_T2, S_CH, 0, 6 * 128); P += sel(S_F2C3, S_CH, 128, 5 * 128)
    E(salu('s_cmp_eq_u32', s(S_RH), 0)); E(salu('s_cselect_b32', s(S_T2), s(S_T2), s(S_F2C3)))
    E(salu('s_add_u32', s(S_F2C3), s(S_T0), s(S_T2)))
    P += sel(S_T2, S_CH, 6 * KR + 2 * 128, 6 * KR + 4 * 128); P += sel(S_F2C10, S_CH, 384, KR + 384)
    E(salu('s_cmp_eq_u32', s(S_RH), 0)); E(salu('s_cselect_b32', s(S_T2), s(S_T2), s(S_F2C10)))
    E(salu('s_add_u32', s(S_F2C10), s(S_T0), s(S_T2)))
    E(salu('s_mul_i32', s(S_T2), s(S_W), KR)); E(salu('s_add_u32', s(S_F2C11), s(S_T0), s(S_T2))); E(salu('s_add_u32', s(S_F2C11), s(S_F2C11), 384))
    E(salu('s_add_u32', s(S_F2C12), s(S_T0), 6 * KR + 384))
    E(salu('s_lshl_b32', s(S_KB), s(S_W), 12)); E(salu('s_lshl_b32', s(S_VB), s(S_W), 7))
    E(salu('s_lshl_b32', s(S_T0), s(S_KVH), 9)); E(salu('s_lshl_b32', s(S_T1), s(S_RH), 5)); E(salu('s_add_u32', s(S_T0), s(S_T0), s(S_T1)))
    E(salu('s_lshl_b32', s(S_T1), s(S_CH), 8)); E(salu('s_add_u32', s(S_T1), s(S_T0), s(S_T1))); E(salu('s_mul_i32', s(S_T1), s(S_T1), 896))
    E(salu('s_xor_b32', s(S_T2), s(S_CH), 1)); E(salu('s_lshl_b32', s(S_T2), s(S_T2), 8)); E(salu('s_add_u32', s(S_T0), s(S_T0), s(S_T2))); E(salu('s_mul_i32', s(S_T0), s(S_T0), 896))
    for st in range(3):
        P += sel(S_T2, S_CH, st * 128, (6 - st) * 128)
        E(salu('s_add_u32', s(S_OOWN + st), s(S_T1), s(S_T2))); E(salu('s_add_u32', s(S_OPAR + st), s(S_T0), s(S_T2)))
    E(salu('s_add_u32', s(S_O3), s(S_T1), 384))
    E(salu('s_mul_i32', s(S_T0), s(2), 57344))
    E(salu('s_mul_i32', s(S_T1), s(S_RH), 28672)); E(salu('s_add_u32', s(S_PB), s(S_T0), s(S_T1)))
    E(salu('s_add_u32', s(S_GB), s(S_PB), 256 * 57344))
    for st in range(3):
        P += sel(S_CB + st, S_CH, 2 * st * 2048, (12 - 2 * st) * 2048)
    P += sel(S_CB + 3, S_CH, 6 * 2048, 7 * 2048)
    for st in range(3):
        P += sel(S_T0, S_PAR, 2 * st, 2 * (3 - st) - 1)
        E(salu('s_add_u32', s(S_T0), s(S_T0), s(S_CH))); E(salu('s_lshl_b32', s(S_HI + st), s(S_T0), 12))
    P += sel(S_T0, S_PAR, 6 * 4096, 0)
    E(salu('s_lshl_b32', s(S_T1), s(S_CH), 3)); E(salu('s_add_u32', s(S_HI + 3), s(S_T0), s(S_T1)))
    E(salu('s_mov_b32', s(S_THR), lit(65536.0)))
    E(salu('s_mov_b32', s(S_ONES), '0x3f803f80'))
    E(valu('v_bfe_u32', v(V_U0), v(V_LANE), 2, 2))
    E(valu('v_lshl_add_u32', v(V_U1), v(V_GQ), 2, v(V_U0)))
    E(valu('v_lshrrev_b32', v(V_U2), 1, v(V_U1))); E(valu('v_and_b32', v(V_U2), 3, v(V_U2)))
    E(valu('v_and_b32', v(V_U3), 3, v(V_LANE))); E(valu('v_lshlrev_b32', v(V_U3), 3, v(V_U3)))
    E(valu('v_lshl_add_u32', v(V_U3), v(V_U1), 7, v(V_U3)))
    for tt in range(4):
        E(valu('v_xor_b32', v(V_U0), tt, v(V_U2)))
        E(valu('v_lshl_add_u32', v(V_TA + tt), v(V_U0), 5, v(V_U3)))
        E(valu('v_add_u32', v(V_TA + 4 + tt), HIOFF, v(V_TA + tt)))
    E(salu('s_lshl_b32', s(S_T0), s(S_CH), 13))
    for tt in range(8):
        E(valu('v_add_u32', v(V_TAC + tt), s(S_T0), v(V_TA + tt)))
    E(salu('s_lshl_b32', s(S_T0), s(S_CH), 1))
    for ti in range(2):
        E(salu('s_add_u32', s(S_T1), s(S_T0), ti))
        E(valu('v_xor_b32', v(V_U0), s(S_T1), v(V_U2)))
        E(valu('v_lshl_add_u32', v(V_TS + ti), v(V_U0), 5, v(V_U3)))
        E(valu('v_add_u32', v(V_TS + 2 + ti), HIOFF, v(V_TS + ti)))
    E(salu('s_lshl_b32', s(S_T0), s(S_PAR), 1)); E(salu('s_add_u32', s(S_T1), s(S_T0), s(S_CH)))
    E(valu('v_xor_b32', v(V_U0), s(S_T1), v(V_U2)))
    E(valu('v_lshl_add_u32', v(V_TH), v(V_U0), 5, v(V_U3)))
    E(valu('v_add_u32', v(V_TH + 1), HIOFF, v(V_TH)))
    for i in range(4):
        E(valu('v_add_u32', v(V_U0), 4 * i, v(V_GQ))); E(valu('v_xor_b32', v(V_U0), v(V_U0), v(V_N16)))
        E(valu('v_lshlrev_b32', v(V_U0), 4, v(V_U0)))
        E(valu('v_lshl_add_u32', v(V_KA + i), v(V_N16), 9, v(V_U0)))
        E(valu('v_add_u32', v(V_KA + 4 + i), HIOFF, v(V_KA + i)))
    E(salu('s_lshl_b32', s(S_T0), s(S_RH), 11)); E(salu('s_add_u32', s(S_T0), s(S_T0), XA))
    E(valu('v_add_u32', v(V_HR), s(S_T0), v(V_L16)))
    E(salu('s_lshl_b32', s(S_T0), s(S_W), 13)); E(salu('s_add_u32', s(S_T0), s(S_T0), XA))
    E(valu('v_add_u32', v(V_XW), s(S_T0), v(V_L16)))
    E(salu('s_xor_b32', s(S_T0), s(S_W), 2)); E(salu('s_lshl_b32', s(S_T0), s(S_T0), 13)); E(salu('s_add_u32', s(S_T0), s(S_T0), XA))
    E(valu('v_add_u32', v(V_XR), s(S_T0), v(V_L16)))
    E(valu('v_mov_b32', v(V_C1), lit(C_GELU1)))
    E(salu('s_lshl_b32', s(S_T0), s(S_W), 10)); E(salu('s_add_u32', s(S_T0), s(S_T0), XA + 28672))
    E(valu('v_lshlrev_b32', v(V_U0), 6, v(V_N16))); E(valu('v_add_u32', v(V_U0), s(S_T0), v(V_U0)))
    E(valu('v_lshl_add_u32', v(V_QW), v(V_GQ), 3, v(V_U0))); E(valu('v_lshl_add_u32', v(V_QR), v(V_GQ), 4, v(V_U0)))
    return P

def layernorm(late, wl):
    P = []; E = P.append
    late = list(late); wl = list(wl)
    def drip(q, n=1):
        while q and n > 0:
            x = q.pop(0); E(x)
            if x.kind in ('dma', 'vload'): n -= 1
    ACC = 64
    for p in range(2):
        b = ACC + 4 * p
        for k in range(4): E(valu('v_mov_b32', v(b + k), 0))
        for n in range(28):
            d = p * 28 + n
            E(valu('v_dot2_f32_bf16', v(b + (n & 1)), v(d), s(S_ONES), v(b + (n & 1))))
            E(valu('v_dot2_f32_bf16', v(b + 2 + (n & 1)), v(d), v(d), v(b + 2 + (n & 1))))
            if n % 7 == 3: drip(late)
        E(valu('v_add_f32', v(b), v(b), v(b + 1))); E(valu('v_add_f32', v(b + 2), v(b + 2), v(b + 3)))
    for mods in ("quad_perm:[1,0,3,2] row_mask:0xf bank_mask:0xf", "quad_perm:[2,3,0,1] row_mask:0xf bank_mask:0xf", "row_half_mirror row_mask:0xf bank_mask:0xf"):
        for p in range(2):
            for k in (0, 2):
                r = ACC + 4 * p + k
                E(valu('v_add_f32_dpp', v(r), v(r), v(r), mods=mods))
    for p in range(2):
        b = ACC + 4 * p
        E(valu('v_mul_f32', v(b), lit(1.0 / 448), v(b)))
        E(valu('v_mul_f32', v(b + 2), lit(1.0 / 448), v(b + 2)))
        E(valu('v_fma_f32', v(b + 2), '-' + v(b), v(b), v(b + 2)))
        E(valu('v_max_f32', v(b + 2), 0, v(b + 2)))
        E(valu('v_add_f32', v(b + 2), lit(1e-5), v(b + 2)))
        E(valu('v_rsq_f32', v(b + 2), v(b + 2)))
        E(valu('v_mul_f32', v(b), v(b), v(b + 2)))
        E(valu('v_sub_f32', v(b + 1), 0, v(b)))
    E(valu('v_and_b32', v(V_U0), 7, v(V_LANE)))
    E(valu('v_and_b32', v(V_U1), 3, v(V_U0)))
    E(valu('v_lshrrev_b32', v(V_U0), 2, v(V_U0))); E(valu('v_lshlrev_b32', v(V_U0), 6, v(V_U0)))
    E(valu('v_and_b32', v(V_U2), 1, v(V_U1))); E(valu('v_lshl_add_u32', v(V_U0), v(V_U2), 5, v(V_U0)))
    E(valu('v_lshrrev_b32', v(V_U1), 1, v(V_U1))); E(valu('v_lshl_add_u32', v(V_U0), v(V_U1), 3, v(V_U0)))
    E(salu('s_mov_b32', s(S_T0), XROW)); E(valu('v_mad_u32_u24', v(V_U0), v(V_R8), s(S_T0), v(V_U0)))
    E(salu('s_mul_i32', s(S_T1), s(S_W), 16 * XROW)); E(salu('s_add_u32', s(S_T1), s(S_T1), XSTAGE))
    E(valu('v_add_u32', v(V_U0), s(S_T1), v(V_U0)))
    E(valu('v_add_u32', v(V_U1), 8 * XROW, v(V_U0)))
    E(salu('s_mov_b32', s(S_T2), '0xffff0000'))
    T = 72
    for p in range(2):
        b = ACC + 4 * p
        for i in range(7):
            d0 = (p * 7 + i) * 4
            for k in range(4):
                t = T + 2 * k
                E(valu('v_lshlrev_b32', v(t), 16, v(d0 + k))); E(valu('v_and_b32', v(t + 1), s(S_T2), v(d0 + k)))
            for k in range(4):
                t = T + 2 * k
                if CFG.pkln:
                    x = I(f"v_pk_fma_f32 v[{t}:{t+1}], v[{t}:{t+1}], v[{b+2}:{b+3}], v[{b}:{b+1}] op_sel:[0,0,1] op_sel_hi:[1,0,1]", 'valu',
                          regs(v(t, 2)) + regs(v(b, 4)), regs(v(t, 2)))
                    E(x)
                else:
                    E(valu('v_fma_f32', v(t), v(t), v(b + 2), '-' + v(b))); E(valu('v_fma_f32', v(t + 1), v(t + 1), v(b + 2), '-' + v(b)))
            for k in range(4):
                t = T + 2 * k
                E(valu('v_cvt_pk_bf16_f32', v(d0 + k), v(t), v(t + 1)))
            E(ds_write2_b64(v(V_U0 + p), v(d0, 2), v(d0 + 2, 2), 16 * i, 16 * i + 2, tag='xw'))
            drip(wl)
    drip(late, 99); drip(wl, 99)
    E(wait_lgkm_tag('xw')); E(barrier())
    E(salu('s_lshl_b32', s(S_T0), s(S_RH), 5)); E(valu('v_add_u32', v(V_U0), s(S_T0), v(V_N16)))
    E(salu('s_mov_b32', s(S_T0), XROW)); E(valu('v_lshlrev_b32', v(V_U1), 4, v(V_GQ)))
    E(valu('v_mad_u32_u24', v(V_U0), v(V_U0), s(S_T0), v(V_U1))); E(valu('v_add_u32', v(V_U0), XSTAGE, v(V_U0)))
    for ks in range(14):
        for ct in range(2):
            E(ds_read('ds_read_b128', a(A_XB + (ks * 2 + ct) * 4, 4), v(V_U0), ks * 64 + ct * 16 * XROW, tag='xb'))
    return P

def interleave(*lists):
    out = []; its = [list(l) for l in lists]
    while any(its):
        for l in its:
            if l: out.append(l.pop(0))
    return out

def geglu(st):
    base = accset(st) if (st < 3 or not CFG.f1mix) else V_F1H
    out = []
    tis = range(2) if st < 3 else range(1)
    TT = 64; HP = 80
    out.append(valu('v_add_u32', v(V_HW), s(S_HI + st), v(V_HR)))
    for ct in range(2):
        for ti in tis:
            G = base + ((0 * 2 + ti) * 2 + ct) * 4; U = base + ((1 * 2 + ti) * 2 + ct) * 4
            t = [TT + k for k in range(4)]; e = [TT + 4 + k for k in range(4)]
            for k in range(4): out.append(valu('v_mul_f32', v(t[k]), v(G + k), v(G + k)))
            for k in range(4): out.append(valu('v_fmaak_f32', v(t[k]), v(t[k]), v(V_C1), lit(C_GELU0)))
            for k in range(4): out.append(valu('v_mul_f32', v(t[k]), v(G + k), v(t[k])))
            for k in range(4): out.append(valu('v_exp_f32', v(e[k]), v(t[k])))
            for k in range(4): out.append(valu('v_mul_f32', v(t[k]), v(G + k), v(U + k)))
            for k in range(4): out.append(valu('v_add_f32', v(e[k]), '1.0', v(e[k])))
            for k in range(4): out.append(valu('v_rcp_f32', v(e[k]), v(e[k])))
            hp = HP + ct * 4 + ti * 2
            for k in range(4): out.append(valu('v_mul_f32', v(t[k]), v(t[k]), v(e[k])))
            out.append(valu('v_cvt_pk_bf16_f32', v(hp), v(t[0]), v(t[1]))); out.append(valu('v_cvt_pk_bf16_f32', v(hp + 1), v(t[2]), v(t[3])))
        if st < 3: out.append(ds_write('ds_write_b128', v(V_HW), v(HP + ct * 4, 4), ct * 1024, tag='hw'))
        else: out.append(ds_write('ds_write_b64', v(V_HW), v(HP + ct * 4, 2), ct * 1024, tag='hw'))
    return out

def qconv(st):
    base = accset(4 + st); out = []
    for pp in range(2):
        for ct in range(2):
            X0 = base + ((2 * pp) * 2 + ct) * 4; X1 = base + ((2 * pp + 1) * 2 + ct) * 4
            t = 64 + 8 * ct; h = 80 + 4 * ct
            for k in range(4): out.append(valu('v_mul_f32', v(t + k), lit(C_QS), v(X0 + k)))
            for k in range(4): out.append(valu('v_mul_f32', v(t + 4 + k), lit(C_QS), v(X1 + k)))
            for k in range(4): out.append(valu('v_cvt_pk_bf16_f32', v(h + k), v(t + 2 * k), v(t + 2 * k + 1)))
            if CFG.qlds:
                ks = 2 * st + pp
                out.append(ds_write2_b64(v(V_QW), v(h, 2), v(h + 2, 2), 0, 4, tag='qw'))
                out.append(ds_read('ds_read_b128', a(A_Q + (ks * 2 + ct) * 4, 4), v(V_QR), 0, tag='qr'))
                continue
            out.append(valu('v_permlane32_swap_b32', v(h), v(h + 2))); out.append(valu('v_permlane32_swap_b32', v(h + 1), v(h + 3)))
            out.append(nop(0))
            out.append(valu('v_permlane16_swap_b32', v(h), v(h + 2))); out.append(valu('v_permlane16_swap_b32', v(h + 1), v(h + 3)))
            ks = 2 * st + pp
            for k in range(4): out.append(valu('v_accvgpr_write_b32', a(A_Q + (ks * 2 + ct) * 4 + k), v(h + k)))
    return out

def gconv(st):
    base = accset(8 + st); out = []
    pps = range(2) if st < 3 else range(1)
    for pp in pps:
        for ct in range(2):
            if st < 3: X0 = base + ((2 * pp) * 2 + ct) * 4; X1 = base + ((2 * pp + 1) * 2 + ct) * 4
            else: X0 = base + (0 * 2 + ct) * 4; X1 = base + (1 * 2 + ct) * 4
            h = 80 + 4 * ct
            out.append(valu('v_cvt_pk_bf16_f32', v(h), v(X0), v(X0 + 1))); out.append(valu('v_cvt_pk_bf16_f32', v(h + 1), v(X0 + 2), v(X0 + 3)))
            out.append(valu('v_cvt_pk_bf16_f32', v(h + 2), v(X1), v(X1 + 1))); out.append(valu('v_cvt_pk_bf16_f32', v(h + 3), v(X1 + 2), v(X1 + 3)))
            li = st * 2 + pp
            for k in range(4): out.append(valu('v_accvgpr_write_b32', a(A_G + (li * 2 + ct) * 4 + k), v(h + k)))
    return out
def gstore(li, ct):
    st, pp = li // 2, li % 2
    return [salu('s_add_u32', s(S_T0), s(S_GB), s(S_CB + st)),
            vstore('buffer_store_dwordx4', a(A_G + (li * 2 + ct) * 4, 4), v(V_L16), s(S_WS, 4), s(S_T0), pp * 2048 + ct * 1024, (CFG.gstore_flags if CFG.gstore_flags is not None else CFG.store_flags).replace('_', ' ').strip(), tag='gst')]

def sconv(st):
    base = 128 + 32 * (st & 1); out = []
    pps = range(2) if st < 3 else range(1)
    out.append(salu('s_add_u32', s(S_T1), s(S_PB), s(S_CB + st)))
    n = 0
    for pp in pps:
        for ct in range(2):
            if st < 3: X0 = base + ((2 * pp) * 2 + ct) * 4; X1 = base + ((2 * pp + 1) * 2 + ct) * 4
            else: X0 = 160 + (0 * 2 + ct) * 4; X1 = 160 + (1 * 2 + ct) * 4
            h = 192 + 4 * (n & 1); n += 1
            out.append(valu('v_cvt_pk_bf16_f32', v(h), v(X0), v(X0 + 1))); out.append(valu('v_cvt_pk_bf16_f32', v(h + 1), v(X0 + 2), v(X0 + 3)))
            out.append(valu('v_cvt_pk_bf16_f32', v(h + 2), v(X1), v(X1 + 1))); out.append(valu('v_cvt_pk_bf16_f32', v(h + 3), v(X1 + 2), v(X1 + 3)))
            out.append(vstore('buffer_store_dwordx4', v(h, 4), v(V_L16), s(S_WS, 4), s(S_T1), pp * 2048 + ct * 1024, CFG.store_flags.replace('_', ' ').strip(), tag='sst'))
    return out

def xlane_reduce(op, reg, tmp):
    return [valu('v_mov_b32', v(tmp), v(reg)), nop(0), valu('v_permlane16_swap_b32', v(reg), v(tmp)), nop(0), valu(op, v(reg), v(reg), v(tmp)),
            valu('v_mov_b32', v(tmp), v(reg)), nop(0), valu('v_permlane32_swap_b32', v(reg), v(tmp)), nop(0), valu(op, v(reg), v(reg), v(tmp))]

def Sreg(t, T, ct): return V_S + 16 * (t & 1) + (ct * 2 + T) * 4
def Preg(t, ct): return V_P + 8 * (t & 1) + ct * 4

def softmax_first():
    out = []
    for ct in range(2):
        r = [Sreg(0, 0, ct) + k for k in range(4)] + [Sreg(0, 1, ct) + k for k in range(4)]
        m = V_T + ct
        out.append(valu('v_max3_f32', v(m), v(r[0]), v(r[1]), v(r[2])))
        out.append(valu('v_max3_f32', v(m), v(m), v(r[3]), v(r[4])))
        out.append(valu('v_max3_f32', v(m), v(m), v(r[5]), v(r[6])))
        out.append(valu('v_max_f32', v(m), v(m), v(r[7])))
    a0 = xlane_reduce('v_max_f32', V_T, V_T + 2); a1 = xlane_reduce('v_max_f32', V_T + 1, V_T + 3)
    out += interleave(a0, a1)
    for ct in range(2):
        for k in range(4): out.append(valu('v_sub_f32', v(V_NEGM + 4 * ct + k), 0, v(V_T + ct)))
    for ct in range(2):
        for T in range(2):
            for k in range(4): out.append(valu('v_add_f32', v(Sreg(0, T, ct) + k), v(V_NEGM + 4 * ct), v(Sreg(0, T, ct) + k)))
    out.append(valu('v_mov_b32', v(V_L0), 0)); out.append(valu('v_mov_b32', v(V_L1), 0))
    return out
def s1_fix():
    out = []
    for ct in range(2):
        for T in range(2):
            for k in range(4): out.append(valu('v_add_f32', v(Sreg(1, T, ct) + k), v(V_NEGM + 4 * ct), v(Sreg(1, T, ct) + k)))
    return out
def softmax_body(t):
    out = []
    for ct in range(2):
        ts = V_TS0 + ct
        for T in range(2):
            S = Sreg(t, T, ct); e = V_T + 4 * T
            for k in range(4): out.append(valu('v_exp_f32', v(e + k), v(S + k)))
            if T == 0:
                out.append(valu('v_add_f32', v(ts), v(e), v(e + 1)))
            else:
                out.append(valu('v_add_f32', v(ts), v(ts), v(e)));
            out.append(valu('v_cvt_pk_bf16_f32', v(Preg(t, ct) + 2 * T), v(e), v(e + 1)))
            if T == 1: out.append(valu('v_add_f32', v(ts), v(ts), v(e + 1)))
            out.append(valu('v_add_f32', v(ts), v(ts), v(e + 2)))
            out.append(valu('v_cvt_pk_bf16_f32', v(Preg(t, ct) + 2 * T + 1), v(e + 2), v(e + 3)))
            out.append(valu('v_add_f32', v(ts), v(ts), v(e + 3)))
    return out
def softmax_check(t):
    return [valu('v_max_f32', v(V_TM), v(V_TS0), v(V_TS1)),
            valu('v_cmp_lt_f32', 'vcc', s(S_THR), v(V_TM)),
            raw(f"s_cbranch_vccnz L_slow_{t}", 'branch', ['vcc']),
            label(f"L_back_{t}"),
            valu('v_add_f32', v(V_L0), v(V_L0), v(V_TS0)), valu('v_add_f32', v(V_L1), v(V_L1), v(V_TS1))]

def slow_path(par):
    t = par
    o = []
    o.append(label(f"L_slowsub_{par}"))
    o.append(nop(15))
    for ct in range(2):
        r = [Sreg(t, 0, ct) + k for k in range(4)] + [Sreg(t, 1, ct) + k for k in range(4)]
        m = V_T + ct
        o += [valu('v_max3_f32', v(m), v(r[0]), v(r[1]), v(r[2])), valu('v_max3_f32', v(m), v(m), v(r[3]), v(r[4])),
              valu('v_max3_f32', v(m), v(m), v(r[5]), v(r[6])), valu('v_max_f32', v(m), v(m), v(r[7]))]
        o += xlane_reduce('v_max_f32', m, V_T + 2)
        o.append(valu('v_max_f32', v(m), 0, v(m)))
    for ct in range(2):
        d = V_T + ct; f = V_T + 2 + ct
        o.append(valu('v_sub_f32', v(f), 0, v(d))); o.append(valu('v_exp_f32', v(f), v(f)))
        for k in range(4): o.append(valu('v_sub_f32', v(V_NEGM + 4 * ct + k), v(V_NEGM + 4 * ct + k), v(d)))
        for tt in (t, t + 1):
            for T in range(2):
                for k in range(4): o.append(valu('v_sub_f32', v(Sreg(tt, T, ct) + k), v(Sreg(tt, T, ct) + k), v(d)))
        o.append(valu('v_mul_f32', v(V_L0 + ct), v(V_L0 + ct), v(f)))
        for dt in range(16):
            b = ((dt >> 1) * 2 + ct) * 8 + (dt & 1) * 4
            for k in range(4): o.append(valu('v_mul_f32', v(b + k), v(b + k), v(f)))
    o += softmax_body(t)
    o.append(nop(3))
    o.append(raw(f"s_setpc_b64 s[{S_RET}:{S_RET+1}]", 'branch', [s(S_RET, 2)]))
    return o

def onorm(i):
    ct = i & 1; b = 8 * i; rl = V_RL0 + ct; t = V_T
    out = []
    for k in range(8): out.append(valu('v_mul_f32', v(t + k), v(b + k), v(rl)))
    for k in range(4): out.append(valu('v_cvt_pk_bf16_f32', v(b + k), v(t + 2 * k), v(t + 2 * k + 1)))
    if i < 8: out.append(ds_write('ds_write_b128', v(V_XW), v(b, 4), i * 1024, tag='ow1'))
    return out

def units(x):
    if x.kind == 'trans': return 2
    if x.kind == 'nop': return x.tag + 1
    if x.kind == 'label': return 0
    return 1

def build():
    _last_base.clear()
    chunks, groups, marks = build_main()
    nchunks = len(chunks)
    fcount = 0
    for g in groups:
        g.bufs = []
        for _ in g.frs:
            g.bufs.append(A_FB + 4 * (fcount % CFG.nb)); fcount += 1
        g.f0 = fcount - len(g.frs)
        g.mf = g.mk(g.bufs)
    merged = set()
    if CFG.merge_waits:
        gi = 0
        while gi + 1 < len(groups):
            g, h = groups[gi], groups[gi + 1]
            nm = chunks[g.chunk].name
            on = (CFG.merge_waits == 'all') or (CFG.merge_waits == 'att' and nm[0] in 'KV') or (CFG.merge_waits == 'atto' and nm[0] in 'KVO') or (CFG.merge_waits == 'k' and nm[0] == 'K')
            if on:
                for b in h.bufs: g.mf[0].extra_need |= set(regs(a(b, 4)))
                merged.add(gi)
            gi += 2
    mstart = []; m = 0
    for g in groups:
        mstart.append(m); m += len(g.mf)
    mstart.append(m); NM = m
    M = {k: mstart[i] for k, i in marks.items()}
    chunk_first_m = {}
    for gi, g in enumerate(groups): chunk_first_m.setdefault(g.chunk, mstart[gi])
    chunk_first_m[nchunks] = NM
    def first_chunk(name):
        return min(i for i, c in enumerate(chunks) if c.name.startswith(name))
    forced = {first_chunk("O s0 j0"), first_chunk("O s0 j2"), first_chunk("O s0 j4"), first_chunk("O s0 j6")}
    bars = []; b = 0
    while b < nchunks:
        bars.append(b)
        b += 1 if (CFG.bar_every == 1 or (b + 1) in forced) else 2
    barset = set(bars)
    nextbar = {bb: (bars[i + 1] if i + 1 < len(bars) else nchunks) for i, bb in enumerate(bars)}
    def bar_at_or_after(c):
        return min(bb for bb in bars if bb >= c)

    side = []
    seq = [0]
    def spread(ins, m0, m1, early=True):
        n = len(ins)
        for k, x in enumerate(ins):
            side.append([m0 + (m1 - m0) * k / max(n, 1), seq[0], m0 if early else None, x]); seq[0] += 1
    def at(ins, m0):
        for x in ins:
            side.append([m0, seq[0], None, x]); seq[0] += 1
    LAT = 6
    if CFG.f1mix:
        spread(geglu(0), M["F1_1"] + LAT, M["F1_2"] - 2)
        spread(geglu(1), M["F1_2"] + LAT, M["Q_0"] - 2)
        spread(geglu(2), M["Q_0"] + LAT, M["Q_0"] + 76)
        spread(geglu(3), M["Q_0"] + 78, M["Q_1"] - 6)
    else:
        spread(geglu(0), M["F1_1"] + LAT, M["F1_2"] + 20)
        spread(geglu(1), M["F1_2"] + 24, M["F1_3"] + 10)
        spread(geglu(2), M["F1_3"] + 14, M["Q_0"] + 50)
        spread(geglu(3), M["Q_0"] + 54, M["Q_1"] - 8)
    pre_dma = {}
    pre_dma[first_chunk("Q ")] = dv_setup(V_DVB, 8192)
    pre_dma[first_chunk("F2")] = dv_setup(V_DVA, 896)
    pre_dma[first_chunk("K0")] = dv_setup_K(V_DVB)
    pre_dma[first_chunk("V0")] = dv_setup(V_DVA, 512)
    pre_dma[first_chunk("O ")] = dv_setup(V_DVB, 896)
    qn = ["Q_1", "Q_2", "Q_3", "F2_0"]; qe = ["Q_2", "Q_3", "F2_0", "F2_1"]
    for st in range(4):
        spread(qconv(st), M[qn[st]] + LAT, M[qe[st]] - 8)
    hc = bar_at_or_after(first_chunk("Q s2 j0"))
    fence = {hc: ['hw']}; fence_count = {'hw': 8, 'ow1': 8, 'ow2': 8, 'pr1': 8}
    q3 = first_chunk("Q s3 j0")
    for i in range(7):
        m0 = chunk_first_m[q3 + i // 2 + 1] + 1
        at([ds_read('ds_read_b128', a(A_H + (i * 2 + ct) * 4, 4), v(V_HR), i * 4096 + ct * 1024, tag='hr') for ct in range(2)], m0 + 2 * (i & 1))
    spread(gconv(0), M["F2_1"] + LAT, M["F2_2"] - 8)
    spread(gconv(1), M["F2_2"] + LAT, M["F2_3"] - 8)
    spread(gconv(2), M["F2_3"] + LAT, M["S_0"] + 8)
    spread(gconv(3), M["S_0"] + 12, M["S_1"] - 2)
    spread(softmax_first() + softmax_body(0), M["S_1"] + LAT, M["S_2"] - 2)
    at([valu('v_add_f32', v(V_L0), v(V_L0), v(V_TS0)), valu('v_add_f32', v(V_L1), v(V_L1), v(V_TS1))], M["S_2"] - 1)
    for t in range(1, 16):
        if t < 15: m0, m1 = M[f"S_{t+1}"], (M[f"S_{t+2}"] if t < 14 else M["PV_14"])
        else: m0, m1 = M["PV_14"], M["PV_15"]
        body = softmax_body(t)
        if t == 1: body = s1_fix() + body
        spread(body, m0 + (LAT if t == 1 else 1), m1 - 3)
        at(softmax_check(t), m1 - 1)
    k = 0
    for li in range(7):
        for ct in range(2):
            t = 1 + k
            at(gstore(li, ct), M[f"PV_{t-1}"] + 8); k += 1
    fin = interleave(xlane_reduce('v_add_f32', V_L0, V_T), xlane_reduce('v_add_f32', V_L1, V_T + 1))
    fin += [valu('v_rcp_f32', v(V_RL0), v(V_L0)), valu('v_rcp_f32', v(V_RL1), v(V_L1))]
    spread(fin, M["PV_15"], M["PV_15"] + 10, early=False)
    allnorm = []
    for ks in range(8): allnorm += onorm(2 * ks) + onorm(2 * ks + 1)
    spread(allnorm, M["PV_15"] + 12, M["O_0"] + 28, early=False)
    oj2, oj4, oj6 = first_chunk("O s0 j2"), first_chunk("O s0 j4"), first_chunk("O s0 j6")
    fence[oj2] = ['ow1']; fence[oj4] = ['pr1']; fence[oj6] = ['ow2']
    after_bar = {}
    after_bar[oj2] = [ds_read('ds_read_b128', a(A_PART + i * 4, 4), v(V_XR), i * 1024, tag='pr1') for i in range(8)]
    after_bar[oj4] = [ds_write('ds_write_b128', v(V_XW), v(8 * i, 4), (i - 8) * 1024, tag='ow2') for i in range(8, 16)]
    after_bar[oj6] = [ds_read('ds_read_b128', a(A_PART + i * 4, 4), v(V_XR), (i - 8) * 1024, tag='pr2') for i in range(8, 16)]
    o3 = [salu('s_lshl_b32', s(S_T0), s(S_CH), 13), salu('s_xor_b32', s(S_T2), s(S_T0), 8192)]
    for k in range(4): o3.append(valu('v_add_u32', v(V_TS + 4 + k), s(S_T2), v(V_TS + k)))
    for k in range(4): o3.append(valu('v_add_u32', v(V_TS + k), s(S_T0), v(V_TS + k)))
    spread(o3, M["O_1"] + 8, M["O_1"] + 30, early=False)
    spread(sconv(0), M["O_1"] + LAT, M["O_1"] + 60)
    spread(sconv(1), M["O_2"] + LAT, M["O_2"] + 60)
    spread(sconv(2), M["O_3"] + LAT, M["O_3"] + 40)
    tail = sconv(3)

    if CFG.warm_w:
        w_f1, w_setup, w_issue = warm_weights()
        for item in CFG.warm_main.split('+'):
            if not item: continue
            k, where, off = item.split(':')
            at(w_issue[k], M[where] + int(off))
    STAMP = ["F1_0", "Q_0", "F2_0", "S_0", "S_2", "PV_14", "O_0"]
    if CFG.stamps == 'pro': STAMP = ["F1_0", "F1_1", "F1_2", "F1_3"]
    if CFG.stamps == 'p2': STAMP = ["F1_0"]
    if CFG.stamps == 'f1': STAMP = ["F1_0", "F1_1", "F1_2", "F1_3", "Q_0", "Q_1", "Q_2"]
    if CFG.stamps == 'o': STAMP = ["PV_14", "PV_15", "O_0", "O_part", "O_1", "O_2", "O_3"]
    if CFG.stamps == 'q': STAMP = ["Q_0", "Q_1", "Q_2", "Q_3", "F2_0", "F2_2", "S_0"]
    if CFG.stamps == 'a': STAMP = ["S_2", "PV_0", "S_3", "PV_1", "S_4", "S_8", "S_12"]
    sbase = 3 if CFG.stamps == 'pro' else (6 if CFG.stamps == 'p2' else 0)
    if CFG.stamps:
        for k0, nm in enumerate(STAMP):
            k = k0 + sbase
            at([raw(f"s_memrealtime s[{74+2*k}:{75+2*k}]", 'salu')], M[nm])
    side.sort(key=lambda x: (x[0], x[1]))

    P = prologue()
    if CFG.warm_first and CFG.warm_w:
        xl = [x for x in P if x.kind == 'vload' and x.tag == 'x']
        P = [x for x in P if not (x.kind == 'vload' and x.tag == 'x')]
        k = [i for i, x in enumerate(P) if x.text.startswith('s_mov_b32 s11,')][0] + 1
        P = P[:k] + (w_f1 + xl if CFG.warm_first == 1 else xl + w_f1) + P[k:]
    if CFG.stamps:
        P.insert(2, raw("s_memrealtime s[88:89]", 'salu'))
        P.append(raw("s_mov_b32 s67, s88", 'salu'))
    pro_v = []
    if CFG.stamps == 'p2': P.append(raw("s_memrealtime s[74:75]", 'salu'))
    wc = []
    P += wc
    if CFG.warm_w: P += w_setup
    P += prologue2()
    late = chunk_dma(0, chunks[0]) + chunk_dma(1, chunks[1])
    wl_b = chunk_dma(2, chunks[2]) + chunk_dma(3, chunks[3])
    if CFG.stamps == 'p2': P.append(raw("s_memrealtime s[76:77]", 'salu'))
    if CFG.stamps == 'p2': P.append(raw("s_memrealtime s[78:79]", 'salu'))
    LN = layernorm(late, wl_b)
    if CFG.stamps == 'p2':
        kb = [i for i, x in enumerate(LN) if x.kind == 'barrier'][0]
        LN.insert(kb, raw("s_memrealtime s[84:85]", 'salu'))
        kd = [i for i, x in enumerate(LN) if x.text.startswith('v_add_f32_dpp')][0]
        LN.insert(kd, raw("s_memrealtime s[82:83]", 'salu'))
        LN.insert(10, raw("s_memrealtime s[80:81]", 'salu'))
    if CFG.stamps == 'pro':
        LN.insert(8, raw("s_memrealtime s[76:77]", 'salu'))
        LN.insert(0, raw("s_memrealtime s[74:75]", 'salu'))
        kb = [i for i, x in enumerate(LN) if x.kind == 'barrier'][0]
        LN.insert(kb, raw("s_memrealtime s[78:79]", 'salu'))
    P += LN

    for gi, g in enumerate(groups):
        g.reads = []
        for fi, fr in enumerate(g.frs):
            g.reads += fr(g.bufs[fi], g.chunk % NSLOT, g.chunk)
    st8 = dict(opened=-1, issued=3, rg=0, ri=0, sp=0, prevbar=None)
    dq = []
    xq = []
    gap = [0]
    def emit(x):
        P.append(x); gap[0] += units(x)
    def open_bar(c, mi):
        while dq: emit(dq.pop(0)[1])
        if c in fence:
            for tg in fence[c]:
                have = sum(1 for x in P if x.tag == tg); want = fence_count[tg]
                assert have == want, (tg, have, want)
            P.append(wait_lgkm_tag(fence[c]))
        cover = list(range(c, nextbar[c]))
        P.append(wait_vm_tag([('dma', cc) for cc in cover])); gap[0] += 1
        emit(barrier())
        st8['opened'] = nextbar[c] - 1
        pb = st8['prevbar']
        lim = 5 if pb is None else pb + NSLOT - 1
        st8['prevbar'] = c
        todo = []
        while st8['issued'] < min(lim, nchunks - 1):
            n = st8['issued'] + 1
            if n in pre_dma: todo += pre_dma[n]
            todo += chunk_dma(n, chunks[n]); st8['issued'] = n
        nd = sum(1 for x in todo if x.kind == 'dma')
        if nd:
            L = max(4, chunk_first_m[nextbar[c]] - chunk_first_m[c] - 2)
            step = L / nd
            k = 0; pend = []
            for x in todo:
                if x.kind == 'dma':
                    pos = mi + 1 + k * step
                    for j, y in enumerate(pend): dq.append([pos - step * (len(pend) - j) / (len(pend) + 1) if k > 0 else mi, y])
                    pend = []
                    dq.append([pos, x]); k += 1
                else: pend.append(x)
        if c in after_bar: xq.extend(after_bar[c])
    def can_read(gidx, cur):
        g = groups[gidx]
        prevf = g.f0 + len(g.frs) - 1 - CFG.nb
        return prevf < 0 or groups[cur].f0 > prevf
    def issue_reads(cur, maxn, mi):
        n = 0
        while st8['rg'] < len(groups) and n < maxn and can_read(st8['rg'], cur):
            g = groups[st8['rg']]
            if g.chunk > st8['opened']:
                assert g.chunk in barset, g.chunk
                open_bar(g.chunk, mi)
            r = g.reads[st8['ri']]
            emit(r); st8['ri'] += 1; n += 1
            if st8['ri'] == len(g.reads): st8['rg'] += 1; st8['ri'] = 0
        return n
    while st8['rg'] < len(groups) and groups[st8['rg']].f0 + len(groups[st8['rg']].frs) <= CFG.nb: issue_reads(0, 1, 0)
    mi = 0
    for gi, g in enumerate(groups):
        while st8['rg'] <= gi:
            if not issue_reads(gi, 8, mi): raise Exception("cannot issue reads")
        for k, mf in enumerate(g.mf):
            P.append(mf); gap[0] = 0
            last = (k == len(g.mf) - 1)
            if last and gi not in merged: gap[0] += 1
            cur = gi + 1 if (last and gi + 1 < len(groups)) else gi
            nrd = len(groups[min(st8['rg'], len(groups) - 1)].reads)
            issue_reads(cur, 1 if len(g.mf) >= 4 else 2, mi)
            while xq and gap[0] < 2: emit(xq.pop(0))
            while dq and dq[0][0] <= mi: emit(dq.pop(0)[1])
            while st8['sp'] < len(side):
                dl, _, early, x = side[st8['sp']]
                if dl <= mi or (CFG.fill and early is not None and early <= mi and gap[0] + units(x) <= 2):
                    emit(x); st8['sp'] += 1
                else: break
            mi += 1
    while xq: emit(xq.pop(0))
    while st8['sp'] < len(side):
        P.append(side[st8['sp']][3]); st8['sp'] += 1
    P += tail
    if CFG.stamps: P.append(raw("s_memrealtime s[44:45]", 'salu'))
    P.append(raw("s_waitcnt vmcnt(0)", 'wait_raw'))
    if CFG.stamps:
        P.append(raw("s_memrealtime s[46:47]", 'salu'))
        P.append(raw("s_waitcnt lgkmcnt(0)", 'wait_raw'))
        P.append(salu('s_lshl_b32', s(S_T0), s(2), 2)); P.append(salu('s_add_u32', s(S_T0), s(S_T0), s(S_W))); P.append(salu('s_lshl_b32', s(S_T0), s(S_T0), 6))
        P.append(salu('s_add_u32', s(S_T0), s(S_T0), 30 << 20)); P.append(salu('s_mov_b32', s(S_WS + 2), 40 << 20))
        order = [67] + [74 + 2 * k for k in range(7)] + [44, 46, 46, 46]
        for k, r in enumerate(order): P.append(valu('v_mov_b32', v(k), s(r)))
        P.append(valu('v_mov_b32', v(16), 0))
        P.append(raw("s_mov_b64 exec, 1", 'salu'))
        for k in range(3): P.append(vstore('buffer_store_dwordx4', v(4 * k, 4), v(16), s(S_WS, 4), s(S_T0), 16 * k))
        P.append(raw("s_waitcnt vmcnt(0)", 'wait_raw'))
    P.append(label("L_main_end")); P.append(raw("s_endpgm", 'branch'))
    for t in range(1, 16):
        P.append(label(f"L_slow_{t}"))
        P.append(raw(f"s_call_b64 s[{S_RET}:{S_RET+1}], L_slowsub_{t & 1}", 'branch', [], [s(S_RET, 2)]))
        P.append(raw(f"s_branch L_back_{t}", 'branch'))
    P += slow_path(0); P += slow_path(1)
    P.append(label("L_main_code_end"))
    if CFG.stampop != 's_memrealtime':
        for x in P:
            if x.text.startswith('s_memrealtime'): x.text = x.text.replace('s_memrealtime', CFG.stampop)
    Pf, stats = finalize(P)
    if 'nodma' in CFG.abl: Pf = [x for x in Pf if x.kind != 'dma']
    if 'nobar' in CFG.abl: Pf = [x for x in Pf if x.kind != 'barrier']
    if 'novm' in CFG.abl: Pf = [x for x in Pf if not (x.kind == 'wait' and 'vmcnt' in x.text)]
    if 'nolgkm' in CFG.abl:
        k0 = [i for i, x in enumerate(Pf) if x.kind == 'mfma'][0]
        Pf = [x for i, x in enumerate(Pf) if i < k0 or not (x.kind == 'wait' and 'lgkm' in x.text)]
    if 'nostore' in CFG.abl: Pf = [x for x in Pf if not (x.kind == 'vstore' and x.tag in ('gst', 'sst'))]
    return Pf, stats, M, NM

def reduce_kernel():
    P = []; E = P.append
    E(salu('s_cmp_ge_u32', s(2), 448)); E(raw("s_cbranch_scc1 L_red_end", 'branch'))
    if CFG.stamps: E(raw("s_memrealtime s[34:35]", 'salu'))
    E(raw("s_load_dwordx2 s[4:5], s[0:1], 0")); E(raw("s_load_dwordx2 s[6:7], s[0:1], 72")); E(raw("s_load_dwordx2 s[8:9], s[0:1], 88"))
    E(valu('v_and_b32', v(1), 63, v(0))); E(valu('v_lshrrev_b32', v(2), 6, v(0)))
    E(valu('v_lshlrev_b32', v(3), 4, v(1)))
    E(valu('v_readfirstlane_b32', s(20), v(2)))
    E(salu('s_lshl_b32', s(21), s(2), 2)); E(salu('s_add_u32', s(21), s(21), s(20)))
    E(salu('s_mul_hi_u32', s(22), s(21), (2 ** 32 + 55) // 56))
    E(salu('s_mul_i32', s(23), s(22), 56)); E(salu('s_sub_u32', s(23), s(21), s(23)))
    E(raw("s_waitcnt lgkmcnt(0)", 'wait_raw'))
    E(salu('s_mov_b32', s(12), s(8))); E(salu('s_mov_b32', s(13), s(9))); E(salu('s_mov_b32', s(14), 2 * 256 * 57344)); E(salu('s_mov_b32', s(15), '0x00020000'))
    E(salu('s_mul_i32', s(24), s(22), 8 * 57344)); E(salu('s_lshl_b32', s(25), s(23), 10)); E(salu('s_add_u32', s(24), s(24), s(25)))
    for which in range(2):
        for k in range(8):
            E(salu('s_add_u32', s(26), s(24), which * 256 * 57344 + k * 57344))
            E(vload('buffer_load_dwordx4', v(16 + (which * 8 + k) * 4, 4), v(3), s(12, 4), s(26), 0, tag='p'))
    E(salu('s_and_b32', s(27), s(23), 1))
    E(salu('s_lshr_b32', s(28), s(23), 1))
    E(salu('s_cmp_ge_u32', s(28), 14)); E(salu('s_cselect_b32', s(29), 1, 0))
    E(salu('s_mul_i32', s(30), s(29), 14)); E(salu('s_sub_u32', s(28), s(28), s(30)))
    E(salu('s_lshl_b32', s(30), s(22), 6)); E(salu('s_lshl_b32', s(31), s(29), 5)); E(salu('s_add_u32', s(30), s(30), s(31)))
    E(salu('s_lshl_b32', s(31), s(27), 4)); E(salu('s_add_u32', s(30), s(30), s(31)))
    E(salu('s_mul_i32', s(30), s(30), 896)); E(salu('s_lshl_b32', s(31), s(28), 6)); E(salu('s_add_u32', s(30), s(30), s(31)))
    E(valu('v_and_b32', v(4), 15, v(1))); E(valu('v_lshrrev_b32', v(5), 4, v(1)))
    E(salu('s_mov_b32', s(32), 896)); E(valu('v_lshlrev_b32', v(5), 4, v(5))); E(valu('v_mad_u32_u24', v(4), v(4), s(32), v(5)))
    E(salu('s_mov_b32', s(16), s(4))); E(salu('s_mov_b32', s(17), s(5))); E(salu('s_mov_b32', s(18), 2048 * 896)); E(salu('s_mov_b32', s(19), '0x00020000'))
    E(vload('buffer_load_dwordx4', v(8, 4), v(4), s(16, 4), s(30), 0, tag='x'))
    E(salu('s_mov_b32', s(33), '0xffff0000'))
    for which in range(2):
        acc = 80 + 8 * which
        for k in range(8):
            src = 16 + (which * 8 + k) * 4
            for d in range(4):
                E(valu('v_lshlrev_b32', v(96), 16, v(src + d))); E(valu('v_and_b32', v(97), s(33), v(src + d)))
                if k == 0:
                    E(valu('v_mov_b32', v(acc + 2 * d), v(96))); E(valu('v_mov_b32', v(acc + 2 * d + 1), v(97)))
                else:
                    E(valu('v_add_f32', v(acc + 2 * d), v(acc + 2 * d), v(96))); E(valu('v_add_f32', v(acc + 2 * d + 1), v(acc + 2 * d + 1), v(97)))
    for k in range(8): E(valu('v_mul_f32', v(100 + k), lit(-math.log2(math.e)), v(88 + k)))
    for k in range(8): E(valu('v_exp_f32', v(100 + k), v(100 + k)))
    for k in range(8): E(valu('v_add_f32', v(100 + k), '1.0', v(100 + k)))
    for k in range(8): E(valu('v_rcp_f32', v(100 + k), v(100 + k)))
    for k in range(8): E(valu('v_mul_f32', v(88 + k), v(88 + k), v(100 + k)))
    for k in range(8): E(valu('v_mul_f32', v(80 + k), v(80 + k), v(88 + k)))
    for k in range(4): E(valu('v_cvt_pk_bf16_f32', v(108 + k), v(80 + 2 * k), v(81 + 2 * k)))
    E(valu('v_permlane32_swap_b32', v(108), v(110))); E(valu('v_permlane32_swap_b32', v(109), v(111)))
    E(valu('v_permlane16_swap_b32', v(108), v(110))); E(valu('v_permlane16_swap_b32', v(109), v(111)))
    for d in range(4):
        E(valu('v_lshlrev_b32', v(80 + 2 * d), 16, v(108 + d))); E(valu('v_and_b32', v(81 + 2 * d), s(33), v(108 + d)))
        E(valu('v_lshlrev_b32', v(88 + 2 * d), 16, v(8 + d))); E(valu('v_and_b32', v(89 + 2 * d), s(33), v(8 + d)))
    for k in range(8): E(valu('v_add_f32', v(80 + k), v(80 + k), v(88 + k)))
    for k in range(4): E(valu('v_cvt_pk_bf16_f32', v(108 + k), v(80 + 2 * k), v(81 + 2 * k)))
    E(salu('s_mov_b32', s(16), s(6))); E(salu('s_mov_b32', s(17), s(7)))
    E(vstore('buffer_store_dwordx4', v(108, 4), v(4), s(16, 4), s(30), 0))
    E(raw("s_waitcnt vmcnt(0)", 'wait_raw'))
    if CFG.stamps:
        E(raw("s_memrealtime s[36:37]", 'salu')); E(raw("s_waitcnt lgkmcnt(0)", 'wait_raw'))
        E(salu('s_lshl_b32', s(21), s(21), 3)); E(salu('s_add_u32', s(21), s(21), 31 << 20)); E(salu('s_mov_b32', s(14), 40 << 20))
        E(valu('v_mov_b32', v(8), s(34))); E(valu('v_mov_b32', v(9), s(36))); E(valu('v_mov_b32', v(10), 0))
        E(raw("s_mov_b64 exec, 1", 'salu'))
        E(vstore('buffer_store_dwordx2', v(8, 2), v(10), s(12, 4), s(21), 0)); E(raw("s_waitcnt vmcnt(0)", 'wait_raw'))
    E(label("L_red_end")); E(raw("s_endpgm", 'branch'))
    Pf, _ = finalize(P)
    return Pf

HEADER = """; Kernarg layout (96 bytes, ptrs only, base s[0:1]):
; Generated by gen/gen.py (hand-written generator).  Two launches:
;  1. fused_main_kernel: workgroup = (64 rows, kv head): LayerNorm, GEGLU FFN slice, q projection, attention, output projection
;     -> bf16 partial sums of s and g in d_ws
; @launch kernel=fused_main_kernel grid=(256,1,1) block=(256,1,1) lds=163840
; @launch kernel=fused_reduce_kernel grid=(448,1,1) block=(256,1,1) lds=0
.amdgcn_target "amdgcn-amd-amdhsa--gfx950"
.text
"""
def kd(name, nv, acc, ns):
    return f""".section .rodata,"a"
.p2align 6
.amdhsa_kernel {name}
  .amdhsa_next_free_vgpr {nv}
  .amdhsa_next_free_sgpr {ns}
  .amdhsa_accum_offset {acc}
  .amdhsa_group_segment_fixed_size 0
  .amdhsa_kernarg_size 96
  .amdhsa_user_sgpr_count 2
  .amdhsa_user_sgpr_kernarg_segment_ptr 1
  .amdhsa_system_sgpr_workgroup_id_x 1
  .amdhsa_float_denorm_mode_32 3
.end_amdhsa_kernel
"""
def generate():
    Pm, stats, M, NM = build()
    Pr = reduce_kernel()
    t = HEADER
    t += f".globl {MAIN}\n.p2align 8\n.type {MAIN},@function\n{MAIN}:\n" + text(Pm) + "\n"
    t += f".globl {RED}\n.p2align 8\n.type {RED},@function\n{RED}:\n" + text(Pr) + "\nL_all_code_end:\n"
    t += kd(MAIN, 512, 256, 102) + kd(RED, 112, 112, 40)
    return t, Pm, stats, M, NM

if __name__ == "__main__":
    for arg in sys.argv[2:]:
        k, val = arg.split("=")
        setattr(CFG, k, {"True": True, "False": False}.get(val, int(val) if val.lstrip('-').isdigit() else val))
    t, Pm, stats, M, NM = generate()
    out = sys.argv[1] if len(sys.argv) > 1 else f"cdna_kernels/{KNAME}.s"
    open(out, "w").write(t)
    from collections import Counter
    cn = Counter(i.kind for i in Pm)
    print("instrs:", len(Pm), dict(cn)); print(stats, "NM", NM)
```

```python
import sys, math
from asmlib import *

KNAME = "recurrent_scan__sliding_block_cached__glu_gated_geglu__prompt"
MAIN = "fused_main_kernel"
RED = "fused_reduce_kernel"

class Cfg:
    dbgstamps = False
    merge_waits = 'all'
    qlds = False
    f1mix = False
    warm_first = 2
    warm_pro = 'f1'
    warm_main = 'wq:F1_2:2+wd:Q_2:2+k:F2_0:2+v:F2_0:9+wo:S_8:2'
    pro_order = 1
    warm_gran = 128
    warm_early = 2
    bar_every = 2
    fill = True
    pkln = True
    warm_code = True
    warm_w = True
    code_bytes = 72 * 1024
    gdma = True
    dma_gap = 4
    abl = ''
    stampop = 's_memrealtime'
    stamps = False
    store_flags = "sc1"
    gstore_flags = None
    debug = None
    nb = 12
CFG = Cfg()

SLOT = 16384; NSLOT = 8; XA = 131072; XSTAGE = 98304; LDS_BYTES = 163840
XROW = 912
AHEAD = 4

S_X, S_F1, S_WQ, S_WD, S_K, S_V, S_WO, S_WS = 4, 8, 12, 16, 20, 24, 28, 32
S_WG, S_WU = 56, 60
S_KVH, S_RB, S_W, S_CH, S_RH, S_PAR, S_WLDS, S_SOFF = 36, 37, 38, 39, 40, 41, 42, 43
S_F1B = 44
S_QB = 48
S_F2B = 49
S_F2C3, S_F2C10, S_F2C11, S_F2C12 = 52, 53, 54, 55
S_KB, S_VB = 56, 57
S_OOWN = 58
S_OPAR = 61
S_KA = 64
S_O3 = 88
S_PB = 89
S_CB = 90
S_HI = 94
S_T0, S_T1, S_T2 = 98, 99, 100
S_THR = 101
S_ONES = 3
S_RET = 64
S_GB = 66

V_S = 128; V_P = 160; V_NEGM = 176; V_T = 184
V_L0, V_L1, V_TS0, V_TS1, V_TM, V_C1 = 192, 193, 194, 195, 196, 197
V_TAC = 200; V_TS = 208; V_TH = 212; V_KA = 216; V_TA = 224
V_DVA = 232; V_DVB = 236
V_L16, V_HW, V_HR, V_R8, V_SC16, V_XW, V_XR = 240, 241, 242, 243, 244, 245, 246
V_RL0, V_RL1 = 247, 248
V_F1H = 128
V_QW, V_QR = 92, 93
V_LANE, V_N16, V_GQ = 249, 250, 251
V_U0, V_U1, V_U2, V_U3 = 252, 253, 254, 255
HIOFF = 65536
SETS = [0, 32, 96]
def accset(gstep): return SETS[gstep % 3]
A_XB = 0; A_H = 0; A_FB = 112; A_Q = 192; A_G = 56; A_PART = 192

C_GELU0 = -2.0 * math.sqrt(2.0 / math.pi) * math.log2(math.e)
C_GELU1 = C_GELU0 * 0.044715
C_QS = math.log2(math.e) / 16.0
import struct
def f2u(x): return struct.unpack("<I", struct.pack("<f", x))[0]
def lit(x): return f"0x{f2u(x):08x}"

class Group:
    def __init__(self, chunk, frs, mk):
        self.chunk = chunk; self.frs = frs; self.mk = mk
class Chunk:
    def __init__(self, name, srd, dv, soff, imm):
        self.name = name; self.srd = srd; self.dv = dv; self.soff = soff; self.imm = imm; self.pair = dv

def tr_reads(addr_lo, off):
    lo, hi = addr_lo
    def f(buf, slot, c):
        ar = lo if slot < 4 else hi
        o = (slot % 4) * SLOT + off
        return [ds_read("ds_read_b64_tr_b16", a(buf, 2), v(ar), o, tag=('rd', c)),
                ds_read("ds_read_b64_tr_b16", a(buf + 2, 2), v(ar), o + 2048, tag=('rd', c))]
    return f
def b128_read(addr_lo, off):
    lo, hi = addr_lo
    def f(buf, slot, c):
        ar = lo if slot < 4 else hi
        o = (slot % 4) * SLOT + off
        return [ds_read("ds_read_b128", a(buf, 4), v(ar), o, tag=('rd', c))]
    return f

def build_main():
    chunks = []; groups = []
    marks = {}
    def mark(n): marks[n] = len(groups)
    def newchunk(*args):
        chunks.append(Chunk(*args)); return len(chunks) - 1
    TAC = lambda tt: (V_TAC + tt, V_TAC + 4 + tt)
    TS = lambda ti: (V_TS + ti, V_TS + 2 + ti)
    TH = (V_TH, V_TH + 1)
    KA = lambda i: (V_KA + i, V_KA + 4 + i)
    TA = lambda tt: (V_TA + tt, V_TA + 4 + tt)
    XB = lambda ks, ct: a(A_XB + (ks * 2 + ct) * 4, 4)

    def pair_mk(accf, Bf, first):
        def mk(fr):
            out = []
            for ct in range(2):
                for i, f in enumerate(fr):
                    d = v(accf(ct), 4)
                    C = '0' if (first and i == 0) else d
                    out.append(mfma(d, a(f, 4), Bf(i, ct), C, need=[a(x, 4) for x in fr] if (ct == 0 and i == 0) else ()))
            return out
        return mk

    def f1_chunk(st, j):
        base = accset(st) if (st < 3 or not CFG.f1mix) else V_F1H
        c = newchunk(f"F1 s{st} j{j}", S_F1, V_DVA, S_F1B + st, j * 64 * 3584)
        if st == 3 and CFG.f1mix: chunks[c].pair = V_DVB
        tis = range(2) if st < 3 else range(1)
        for ti in tis:
            for mat in range(2):
                ad = TS(ti) if st < 3 else TH
                frs = [tr_reads(ad, (ksl * 2 + mat) * 4096) for ksl in range(2)]
                accf = (lambda ct, mat=mat, ti=ti, base=base: base + ((mat * 2 + ti) * 2 + ct) * 4)
                Bf = (lambda i, ct, j=j: XB(2 * j + i, ct))
                groups.append(Group(c, frs, pair_mk(accf, Bf, j == 0)))
    if CFG.f1mix:
        n = 0
        for st in range(3):
            mark(f"F1_{st}")
            for j in range(7):
                f1_chunk(st, j); n += 1
                if n % 3 == 1: f1_chunk(3, n // 3)
        mark("F1_3")
    else:
        for st in range(4):
            mark(f"F1_{st}")
            for j in range(7): f1_chunk(st, j)
    for st in range(4):
        mark(f"Q_{st}")
        base = accset(4 + st)
        for j in range(7):
            c = newchunk(f"Q s{st} j{j}", S_WQ, V_DVB, S_QB, j * 64 * 8192 + st * 128)
            for tt in range(4):
                frs = [tr_reads(TAC(tt), ksl * 4096) for ksl in range(2)]
                accf = (lambda ct, tt=tt, base=base: base + (tt * 2 + ct) * 4)
                Bf = (lambda i, ct, j=j: XB(2 * j + i, ct))
                groups.append(Group(c, frs, pair_mk(accf, Bf, j == 0)))
    HB = lambda ks, ct: a(A_H + (ks * 2 + ct) * 4, 4)
    KR = 32 * 896
    def f2_pair(c, st, ks0, first):
        base = accset(8 + st)
        for tt in range(4):
            frs = [tr_reads(TAC(tt), ksl * 4096) for ksl in range(2)]
            accf = (lambda ct, tt=tt, base=base: base + (tt * 2 + ct) * 4)
            groups.append(Group(c, frs, pair_mk(accf, (lambda i, ct, ks0=ks0: HB(ks0 + i, ct)), first)))
    def f2_single(c, st, ks, item, first):
        base = accset(8 + st)
        for tt in range(4):
            frs = [tr_reads(TAC(tt), item * 4096)]
            accf = (lambda ct, tt=tt, base=base: base + (tt * 2 + ct) * 4)
            groups.append(Group(c, frs, pair_mk(accf, (lambda i, ct, ks=ks: HB(ks, ct)), first)))
    def f2_shared(c, kss, items, first):
        for ti in range(2):
            frs = [tr_reads(TS(ti), it * 4096) for it in items]
            accf = (lambda ct, ti=ti: accset(11) + (ti * 2 + ct) * 4)
            groups.append(Group(c, frs, pair_mk(accf, (lambda i, ct, kss=kss: HB(kss[i], ct)), first)))
    mark("F2_0")
    for i in range(3):
        c = newchunk(f"F2 s0 p{i}", S_WD, V_DVA, S_F2B + 0, 2 * i * KR); f2_pair(c, 0, 2 * i, i == 0)
    c = newchunk("F2 c3", S_WD, V_DVA, S_F2C3, 6 * KR)
    f2_single(c, 0, 6, 0, False)
    mark("F2_1")
    f2_single(c, 1, 6, 1, True)
    for i in range(3):
        c = newchunk(f"F2 s1 p{i}", S_WD, V_DVA, S_F2B + 1, 2 * i * KR); f2_pair(c, 1, 2 * i, False)
    mark("F2_2")
    for i in range(3):
        c = newchunk(f"F2 s2 p{i}", S_WD, V_DVA, S_F2B + 2, 2 * i * KR); f2_pair(c, 2, 2 * i, i == 0)
    c = newchunk("F2 c10", S_WD, V_DVA, S_F2C10, 0)
    f2_single(c, 2, 6, 0, False)
    mark("F2_3")
    f2_shared(c, [0, 1], [1, 3], True)
    c = newchunk("F2 c11", S_WD, V_DVA, S_F2C11, 2 * KR)
    f2_shared(c, [2, 3], [0, 1], False)
    f2_shared(c, [4, 5], [2, 3], False)
    c = newchunk("F2 c12", S_WD, V_DVA, S_F2C12, 0)
    f2_shared(c, [6], [0], False)
    QB = lambda ks, ct: a(A_Q + (ks * 2 + ct) * 4, 4)
    Sreg = lambda t, T, ct: V_S + 16 * (t & 1) + (ct * 2 + T) * 4
    Preg = lambda t, ct: V_P + 8 * (t & 1) + ct * 4
    Oacc = lambda dt, ct: ((dt >> 1) * 2 + ct) * 8 + (dt & 1) * 4
    def S_phase(t):
        mark(f"S_{t}")
        c = newchunk(f"K{t}", S_K, V_DVB, S_KB, t * 16384)
        for T in range(2):
            for kp in range(4):
                frs = [b128_read(KA((2 * kp + i) & 3), T * 8192 + ((2 * kp + i) >> 2) * 256) for i in range(2)]
                def mk(fr, T=T, kp=kp, t=t):
                    out = []
                    for ct in range(2):
                        for i, f in enumerate(fr):
                            d = v(Sreg(t, T, ct), 4)
                            if kp == 0 and i == 0:
                                C = '0' if t < 2 else v(V_NEGM + 4 * ct, 4)
                            else: C = d
                            out.append(mfma(d, a(f, 4), QB(2 * kp + i, ct), C, need=[a(x, 4) for x in fr] if (ct == 0 and i == 0) else ()))
                    return out
                groups.append(Group(c, frs, mk))
    def PV_phase(t):
        mark(f"PV_{t}")
        c = newchunk(f"V{t}", S_V, V_DVA, S_VB, t * 16384)
        for dp in range(8):
            frs = [tr_reads(TA((2 * dp + i) & 3), ((2 * dp + i) >> 2) * 4096) for i in range(2)]
            def mk(fr, dp=dp, t=t):
                out = []
                for i, f in enumerate(fr):
                    for ct in range(2):
                        d = v(Oacc(2 * dp + i, ct), 4)
                        C = '0' if t == 0 else d
                        out.append(mfma(d, a(f, 4), v(Preg(t, ct), 4), C, need=[a(x, 4) for x in fr] if (ct == 0 and i == 0) else ()))
                return out
            groups.append(Group(c, frs, mk))
    S_phase(0); S_phase(1)
    for t in range(1, 15):
        S_phase(t + 1); PV_phase(t - 1)
    PV_phase(14); PV_phase(15)
    OWN = lambda ks, ct: v((ks * 2 + ct) * 8, 4)
    PART = lambda ks, ct: a(A_PART + (ks * 2 + ct) * 4, 4)
    OB = lambda kk, ct: OWN(kk, ct) if kk < 8 else PART(kk - 8, ct)
    OR = 64 * 896
    for st in range(3):
        mark(f"O_{st}")
        base = 128 + 32 * (st & 1)
        for j in range(8):
            if j < 4: c = newchunk(f"O s{st} j{j}", S_WO, V_DVB, S_OOWN + st, j * OR)
            else: c = newchunk(f"O s{st} j{j}", S_WO, V_DVB, S_OPAR + st, (j - 4) * OR)
            if st == 0 and j == 4: mark("O_part")
            for tt in range(4):
                frs = [tr_reads(TAC(tt), ksl * 4096) for ksl in range(2)]
                accf = (lambda ct, tt=tt, base=base: base + (tt * 2 + ct) * 4)
                groups.append(Group(c, frs, pair_mk(accf, (lambda i, ct, j=j: OB(2 * j + i, ct)), j == 0)))
    mark("O_3")
    for j in range(4):
        c = newchunk(f"O s3 j{j}", S_WO, V_DVB, S_O3, j * OR)
        for who in range(2):
            for ti in range(2):
                ad = (V_TS + who * 4 + ti, V_TS + who * 4 + 2 + ti)
                frs = [tr_reads(ad, ksl * 4096) for ksl in range(2)]
                accf = (lambda ct, ti=ti: 160 + (ti * 2 + ct) * 4)
                groups.append(Group(c, frs, pair_mk(accf, (lambda i, ct, j=j, who=who: OB(8 * who + 2 * j + i, ct)), j == 0 and who == 0)))
    mark("END")
    return chunks, groups, marks

def prologue():
    P = []
    E = P.append
    E(salu('s_cmp_ge_u32', s(2), 256)); E(raw("s_cbranch_scc1 L_main_end", 'branch'))
    E(raw(f"s_load_dwordx16 s[{S_KA}:{S_KA+15}], s[0:1], 0"))
    E(raw(f"s_load_dwordx8 s[{S_KA+16}:{S_KA+23}], s[0:1], 64"))
    if CFG.warm_code: P += warm_code()
    E(valu('v_and_b32', v(V_LANE), 63, v(0)))
    E(valu('v_lshrrev_b32', v(V_U0), 6, v(0)))
    E(valu('v_and_b32', v(V_N16), 15, v(V_LANE)))
    E(valu('v_readfirstlane_b32', s(S_W), v(V_U0)))
    E(valu('v_lshrrev_b32', v(V_GQ), 4, v(V_LANE)))
    E(valu('v_lshrrev_b32', v(V_R8), 3, v(V_LANE)))
    E(valu('v_lshlrev_b32', v(V_L16), 4, v(V_LANE)))
    E(salu('s_and_b32', s(S_KVH), s(2), 7)); E(salu('s_lshr_b32', s(S_RB), s(2), 3))
    E(salu('s_and_b32', s(S_PAR), s(S_KVH), 1))
    E(salu('s_and_b32', s(S_RH), s(S_W), 1)); E(salu('s_lshr_b32', s(S_CH), s(S_W), 1))
    E(salu('s_lshl_b32', s(S_WLDS), s(S_W), 12))
    E(valu('v_and_b32', v(V_U1), 7, v(V_LANE)))
    E(valu('v_lshlrev_b32', v(V_U2), 4, v(V_U1)))
    E(salu('s_mov_b32', s(S_T0), 896))
    E(valu('v_mad_u32_u24', v(V_U0), v(V_R8), s(S_T0), v(V_U2)))
    E(raw("s_waitcnt lgkmcnt(0)", 'wait_raw'))
    kx, kk, kv, kwq, kwo, kwg, kwu, kwd, kws = [S_KA + o for o in (0, 2, 4, 6, 8, 12, 14, 16, 22)]
    def srd(dst, ptr, nbytes):
        E(salu('s_mov_b32', s(dst), s(ptr))); E(salu('s_mov_b32', s(dst + 1), s(ptr + 1)))
        E(salu('s_mov_b32', s(dst + 2), nbytes)); E(salu('s_mov_b32', s(dst + 3), '0x00020000'))
    srd(S_X, kx, 2048 * 896)
    E(salu('s_mul_i32', s(S_T0), s(S_RB), 57344)); E(salu('s_mul_i32', s(S_T1), s(S_W), 14336))
    E(salu('s_add_u32', s(S_T0), s(S_T0), s(S_T1))); E(salu('s_add_u32', s(S_T1), s(S_T0), 7168))
    for p in range(2):
        for i in range(7):
            E(vload('buffer_load_dwordx4', v((p * 7 + i) * 4, 4), v(V_U0), s(S_X, 4), s(S_T0 + p), i * 128, tag='x'))
    E(salu('s_cmp_eq_u32', s(S_RH), 0))
    E(salu('s_cselect_b32', s(S_F1), s(kwg), s(kwu))); E(salu('s_cselect_b32', s(S_F1 + 1), s(kwg + 1), s(kwu + 1)))
    E(salu('s_mov_b32', s(S_F1 + 2), 448 * 3584)); E(salu('s_mov_b32', s(S_F1 + 3), '0x00020000'))
    srd(S_WQ, kwq, 448 * 8192); srd(S_WD, kwd, 1792 * 896); srd(S_WO, kwo, 4096 * 896)
    srd(S_WS, kws, 2 * 256 * 57344)
    for (dst, ptr) in ((S_K, kk), (S_V, kv)):
        E(salu('s_lshl_b32', s(S_T2), s(S_KVH), 20)); E(salu('s_add_u32', s(S_T2), s(S_T2), 1536 * 512))
        E(salu('s_add_u32', s(dst), s(ptr), s(S_T2))); E(salu('s_addc_u32', s(dst + 1), s(ptr + 1), 0))
        E(salu('s_mov_b32', s(dst + 2), 512 * 512)); E(salu('s_mov_b32', s(dst + 3), '0x00020000'))
    E(valu('v_lshrrev_b32', v(V_U2), 1, v(V_R8))); E(valu('v_and_b32', v(V_U2), 3, v(V_U2)))
    E(valu('v_lshlrev_b32', v(V_U2), 1, v(V_U2))); E(valu('v_xor_b32', v(V_U2), v(V_U2), v(V_U1)))
    E(valu('v_lshlrev_b32', v(V_SC16), 4, v(V_U2)))
    P += dv_setup(V_DVA, 3584)
    E(salu('s_mul_i32', s(S_T0), s(S_KVH), 7)); E(salu('s_lshr_b32', s(S_T0), s(S_T0), 1)); E(salu('s_lshl_b32', s(S_T0), s(S_T0), 7))
    E(salu('s_mul_i32', s(S_T1), s(S_CH), 32 * 3584)); E(salu('s_add_u32', s(S_T0), s(S_T0), s(S_T1)))
    for st in range(4):
        P += sel(S_T1, S_PAR, st * 128, (3 - st) * 128)
        E(salu('s_add_u32', s(S_F1B + st), s(S_T0), s(S_T1)))
    return P

def sel(dst, cond, v0, v1):
    d = (v1 - v0) & 0xffffffff
    return [salu('s_mul_i32', s(dst), s(cond), f"0x{d:x}"), salu('s_add_u32', s(dst), s(dst), v0)]

def dv_setup(dst, stride):
    out = [salu('s_mov_b32', s(S_T2), stride),
           valu('v_mad_u32_u24', v(dst), v(V_R8), s(S_T2), v(V_SC16))]
    for j in range(1, 4):
        out.append(valu('v_add_u32', v(dst + j), j * (8 * stride - 1024), v(dst)))
    return out
def dv_setup_K(dst):
    out = [valu('v_lshrrev_b32', v(V_U0), 5, v(V_LANE)), valu('v_and_b32', v(V_U1), 31, v(V_LANE)),
           salu('s_lshl_b32', s(S_T2), s(S_RH), 3),
           valu('v_xor_b32', v(V_U1), v(V_U1), v(V_U0)),
           valu('v_xor_b32', v(V_U1), s(S_T2), v(V_U1)),
           valu('v_lshlrev_b32', v(V_U0), 9, v(V_U0))]
    for j in range(4):
        out.append(valu('v_xor_b32', v(V_U2), 2 * j, v(V_U1)))
        out.append(valu('v_lshl_add_u32', v(dst + j), v(V_U2), 4, v(V_U0)))
    return out

S_GA = {V_DVA: 68, V_DVB: 70}
S_GC = 72
_last_base = {}
def chunk_dma(c, ch):
    slot = c % NSLOT
    if CFG.gdma:
        out = []
        ga = S_GA[ch.pair]
        if _last_base.get(ch.pair) != (ch.srd, ch.soff):
            _last_base[ch.pair] = (ch.srd, ch.soff)
            out += [salu('s_add_u32', s(ga), s(ch.srd), s(ch.soff)), salu('s_addc_u32', s(ga + 1), s(ch.srd + 1), 0)]
        out += [salu('s_add_u32', 'm0', s(S_WLDS), slot * SLOT),
                salu('s_add_u32', s(S_GC), s(ga), ch.imm), salu('s_addc_u32', s(S_GC + 1), s(ga + 1), 0)]
        for j in range(4): out.append(gdma(v(ch.dv + j), s(S_GC, 2), j * 1024, tag=('dma', c)))
        return out
    out = [salu('s_add_u32', 'm0', s(S_WLDS), slot * SLOT),
           salu('s_add_u32', s(S_SOFF), s(ch.soff), ch.imm)]
    for j in range(4):
        imm = j * 1024
        out.append(dma(v(ch.dv + j), s(ch.srd, 4), s(S_SOFF), imm, tag=('dma', c)))
    return out

V_DUM = 198
def warm_code():
    return [raw("s_getpc_b64 s[92:93]", 'salu', [], [s(92, 2)]), label("L_pc_here"),
            salu('s_and_b32', s(93), s(93), '0xffff'),
            raw("s_mov_b32 s94, L_all_code_end-L_pc_here", 'salu', [], [s(94)]), salu('s_mov_b32', s(95), '0x00020000'),
            salu('s_lshr_b32', s(96), s(2), 3), salu('s_and_b32', s(96), s(96), 3), salu('s_lshl_b32', s(96), s(96), 15),
            valu('v_lshlrev_b32', v(V_U3), 7, v(0)),
            vload('buffer_load_dword', v(198), v(V_U3), s(92, 4), s(96), 0, tag='warm')]
WARM_V = {'wq': 132, 'wd': 133, 'k': 134, 'v': 135, 'wo': 199}
WARM_S = {'wq': 4, 'wd': 5, 'k': 6, 'v': 7, 'wo': 43}
def warm_weights():
    W0, W1, W2 = 88, 89, 90
    T0, T2 = 64, 65
    G = CFG.warm_gran; lg = {64: 6, 128: 7}[G]
    head = [valu('v_mov_b32', v(W2), '0x7ffffff0')]
    setup = {}; issue = {}
    def lin(key, srd, nbytes, base):
        V, T1 = WARM_V[key], WARM_S[key]
        per = -(-nbytes // G // 128)
        o = [base(T1), salu('s_mul_i32', s(T2), s(T0), per * G), salu('s_add_u32', s(T1), s(T1), s(T2)),
             valu('v_lshlrev_b32', v(V), lg, v(V_LANE)),
             valu('v_cmp_gt_u32', 'vcc', per, v(V_LANE)), nop(0), valu('v_cndmask_b32', v(V), v(W2), v(V), 'vcc')]
        setup[key] = o; issue[key] = [vload('buffer_load_dword', v(198), v(V), s(srd, 4), s(T1), 0, tag='warm')]
    def strided(key, V, T1, srd, rowbytes, stride, nwaves, colbase):
        npr = rowbytes // G; lgr = npr.bit_length() - 1
        per = 448 * npr // nwaves
        o = list(colbase)
        o += [salu('s_mul_i32', s(T2), s(T0), per),
              valu('v_add_u32', v(W0), s(T2), v(V_LANE)),
              valu('v_lshrrev_b32', v(W1), lgr, v(W0)), valu('v_and_b32', v(W0), npr - 1, v(W0)),
              salu('s_mov_b32', s(T2), stride), valu('v_lshlrev_b32', v(W0), lg, v(W0)),
              valu('v_mad_u32_u24', v(V), v(W1), s(T2), v(W0)),
              valu('v_cmp_gt_u32', 'vcc', per, v(V_LANE)), nop(0), valu('v_cndmask_b32', v(V), v(W2), v(V), 'vcc')]
        setup[key] = o; issue[key] = [vload('buffer_load_dword', v(198), v(V), s(srd, 4), s(T1), 0, tag='warm')]
    strided('f1', 91, 43, S_F1, 512, 3584, 64,
            [salu('s_mul_i32', s(43), s(S_KVH), 7), salu('s_lshr_b32', s(43), s(43), 1), salu('s_lshl_b32', s(43), s(43), 7)])
    f1 = head + [salu('s_lshl_b32', s(T0), s(S_RB), 1), salu('s_add_u32', s(T0), s(T0), s(S_CH))] + setup.pop('f1') + issue.pop('f1')
    strided('wq', WARM_V['wq'], WARM_S['wq'], S_WQ, 1024, 8192, 128, [salu('s_lshl_b32', s(WARM_S['wq']), s(S_KVH), 10)])
    lin('wd', S_WD, 224 * 896, lambda r: salu('s_mul_i32', s(r), s(S_KVH), 224 * 896))
    lin('k', S_K, 262144, lambda r: salu('s_mov_b32', s(r), 0)); lin('v', S_V, 262144, lambda r: salu('s_mov_b32', s(r), 0))
    lin('wo', S_WO, 512 * 896, lambda r: salu('s_mul_i32', s(r), s(S_KVH), 512 * 896))
    allsetup = head + [salu('s_lshl_b32', s(T0), s(S_RB), 2), salu('s_add_u32', s(T0), s(T0), s(S_W))]
    for k in ('wq', 'wd', 'k', 'v', 'wo'): allsetup += setup[k]
    return f1, allsetup, issue

def prologue2():
    P = []; E = P.append
    E(salu('s_lshl_b32', s(S_T0), s(S_KVH), 1)); E(salu('s_add_u32', s(S_T0), s(S_T0), s(S_CH))); E(salu('s_lshl_b32', s(S_T0), s(S_T0), 9))
    E(salu('s_lshl_b32', s(S_T1), s(S_RH), 18)); E(salu('s_add_u32', s(S_QB), s(S_T0), s(S_T1)))
    KR = 32 * 896
    E(salu('s_mul_i32', s(S_T0), s(S_KVH), 224 * 896))
    E(salu('s_mul_i32', s(S_T1), s(S_RH), KR))
    for st in range(3):
        P += sel(S_T2, S_CH, st * 128, (6 - st) * 128)
        E(salu('s_add_u32', s(S_F2B + st), s(S_T0), s(S_T2))); E(salu('s_add_u32', s(S_F2B + st), s(S_F2B + st), s(S_T1)))
    P += sel(S_T2, S_CH, 0, 6 * 128); P += sel(S_F2C3, S_CH, 128, 5 * 128)
    E(salu('s_cmp_eq_u32', s(S_RH), 0)); E(salu('s_cselect_b32', s(S_T2), s(S_T2), s(S_F2C3)))
    E(salu('s_add_u32', s(S_F2C3), s(S_T0), s(S_T2)))
    P += sel(S_T2, S_CH, 6 * KR + 2 * 128, 6 * KR + 4 * 128); P += sel(S_F2C10, S_CH, 384, KR + 384)
    E(salu('s_cmp_eq_u32', s(S_RH), 0)); E(salu('s_cselect_b32', s(S_T2), s(S_T2), s(S_F2C10)))
    E(salu('s_add_u32', s(S_F2C10), s(S_T0), s(S_T2)))
    E(salu('s_mul_i32', s(S_T2), s(S_W), KR)); E(salu('s_add_u32', s(S_F2C11), s(S_T0), s(S_T2))); E(salu('s_add_u32', s(S_F2C11), s(S_F2C11), 384))
    E(salu('s_add_u32', s(S_F2C12), s(S_T0), 6 * KR + 384))
    E(salu('s_lshl_b32', s(S_KB), s(S_W), 12)); E(salu('s_lshl_b32', s(S_VB), s(S_W), 7))
    E(salu('s_lshl_b32', s(S_T0), s(S_KVH), 9)); E(salu('s_lshl_b32', s(S_T1), s(S_RH), 5)); E(salu('s_add_u32', s(S_T0), s(S_T0), s(S_T1)))
    E(salu('s_lshl_b32', s(S_T1), s(S_CH), 8)); E(salu('s_add_u32', s(S_T1), s(S_T0), s(S_T1))); E(salu('s_mul_i32', s(S_T1), s(S_T1), 896))
    E(salu('s_xor_b32', s(S_T2), s(S_CH), 1)); E(salu('s_lshl_b32', s(S_T2), s(S_T2), 8)); E(salu('s_add_u32', s(S_T0), s(S_T0), s(S_T2))); E(salu('s_mul_i32', s(S_T0), s(S_T0), 896))
    for st in range(3):
        P += sel(S_T2, S_CH, st * 128, (6 - st) * 128)
        E(salu('s_add_u32', s(S_OOWN + st), s(S_T1), s(S_T2))); E(salu('s_add_u32', s(S_OPAR + st), s(S_T0), s(S_T2)))
    E(salu('s_add_u32', s(S_O3), s(S_T1), 384))
    E(salu('s_mul_i32', s(S_T0), s(2), 57344))
    E(salu('s_mul_i32', s(S_T1), s(S_RH), 28672)); E(salu('s_add_u32', s(S_PB), s(S_T0), s(S_T1)))
    E(salu('s_add_u32', s(S_GB), s(S_PB), 256 * 57344))
    for st in range(3):
        P += sel(S_CB + st, S_CH, 2 * st * 2048, (12 - 2 * st) * 2048)
    P += sel(S_CB + 3, S_CH, 6 * 2048, 7 * 2048)
    for st in range(3):
        P += sel(S_T0, S_PAR, 2 * st, 2 * (3 - st) - 1)
        E(salu('s_add_u32', s(S_T0), s(S_T0), s(S_CH))); E(salu('s_lshl_b32', s(S_HI + st), s(S_T0), 12))
    P += sel(S_T0, S_PAR, 6 * 4096, 0)
    E(salu('s_lshl_b32', s(S_T1), s(S_CH), 3)); E(salu('s_add_u32', s(S_HI + 3), s(S_T0), s(S_T1)))
    E(salu('s_mov_b32', s(S_THR), lit(65536.0)))
    E(salu('s_mov_b32', s(S_ONES), '0x3f803f80'))
    E(valu('v_bfe_u32', v(V_U0), v(V_LANE), 2, 2))
    E(valu('v_lshl_add_u32', v(V_U1), v(V_GQ), 2, v(V_U0)))
    E(valu('v_lshrrev_b32', v(V_U2), 1, v(V_U1))); E(valu('v_and_b32', v(V_U2), 3, v(V_U2)))
    E(valu('v_and_b32', v(V_U3), 3, v(V_LANE))); E(valu('v_lshlrev_b32', v(V_U3), 3, v(V_U3)))
    E(valu('v_lshl_add_u32', v(V_U3), v(V_U1), 7, v(V_U3)))
    for tt in range(4):
        E(valu('v_xor_b32', v(V_U0), tt, v(V_U2)))
        E(valu('v_lshl_add_u32', v(V_TA + tt), v(V_U0), 5, v(V_U3)))
        E(valu('v_add_u32', v(V_TA + 4 + tt), HIOFF, v(V_TA + tt)))
    E(salu('s_lshl_b32', s(S_T0), s(S_CH), 13))
    for tt in range(8):
        E(valu('v_add_u32', v(V_TAC + tt), s(S_T0), v(V_TA + tt)))
    E(salu('s_lshl_b32', s(S_T0), s(S_CH), 1))
    for ti in range(2):
        E(salu('s_add_u32', s(S_T1), s(S_T0), ti))
        E(valu('v_xor_b32', v(V_U0), s(S_T1), v(V_U2)))
        E(valu('v_lshl_add_u32', v(V_TS + ti), v(V_U0), 5, v(V_U3)))
        E(valu('v_add_u32', v(V_TS + 2 + ti), HIOFF, v(V_TS + ti)))
    E(salu('s_lshl_b32', s(S_T0), s(S_PAR), 1)); E(salu('s_add_u32', s(S_T1), s(S_T0), s(S_CH)))
    E(valu('v_xor_b32', v(V_U0), s(S_T1), v(V_U2)))
    E(valu('v_lshl_add_u32', v(V_TH), v(V_U0), 5, v(V_U3)))
    E(valu('v_add_u32', v(V_TH + 1), HIOFF, v(V_TH)))
    for i in range(4):
        E(valu('v_add_u32', v(V_U0), 4 * i, v(V_GQ))); E(valu('v_xor_b32', v(V_U0), v(V_U0), v(V_N16)))
        E(valu('v_lshlrev_b32', v(V_U0), 4, v(V_U0)))
        E(valu('v_lshl_add_u32', v(V_KA + i), v(V_N16), 9, v(V_U0)))
        E(valu('v_add_u32', v(V_KA + 4 + i), HIOFF, v(V_KA + i)))
    E(salu('s_lshl_b32', s(S_T0), s(S_RH), 11)); E(salu('s_add_u32', s(S_T0), s(S_T0), XA))
    E(valu('v_add_u32', v(V_HR), s(S_T0), v(V_L16)))
    E(salu('s_lshl_b32', s(S_T0), s(S_W), 13)); E(salu('s_add_u32', s(S_T0), s(S_T0), XA))
    E(valu('v_add_u32', v(V_XW), s(S_T0), v(V_L16)))
    E(salu('s_xor_b32', s(S_T0), s(S_W), 2)); E(salu('s_lshl_b32', s(S_T0), s(S_T0), 13)); E(salu('s_add_u32', s(S_T0), s(S_T0), XA))
    E(valu('v_add_u32', v(V_XR), s(S_T0), v(V_L16)))
    E(valu('v_mov_b32', v(V_C1), lit(C_GELU1)))
    E(salu('s_lshl_b32', s(S_T0), s(S_W), 10)); E(salu('s_add_u32', s(S_T0), s(S_T0), XA + 28672))
    E(valu('v_lshlrev_b32', v(V_U0), 6, v(V_N16))); E(valu('v_add_u32', v(V_U0), s(S_T0), v(V_U0)))
    E(valu('v_lshl_add_u32', v(V_QW), v(V_GQ), 3, v(V_U0))); E(valu('v_lshl_add_u32', v(V_QR), v(V_GQ), 4, v(V_U0)))
    return P

def layernorm(late, wl):
    P = []; E = P.append
    late = list(late); wl = list(wl)
    def drip(q, n=1):
        while q and n > 0:
            x = q.pop(0); E(x)
            if x.kind in ('dma', 'vload'): n -= 1
    ACC = 64
    for p in range(2):
        b = ACC + 4 * p
        for k in range(4): E(valu('v_mov_b32', v(b + k), 0))
        for n in range(28):
            d = p * 28 + n
            E(valu('v_dot2_f32_bf16', v(b + (n & 1)), v(d), s(S_ONES), v(b + (n & 1))))
            E(valu('v_dot2_f32_bf16', v(b + 2 + (n & 1)), v(d), v(d), v(b + 2 + (n & 1))))
            if n % 7 == 3: drip(late)
        E(valu('v_add_f32', v(b), v(b), v(b + 1))); E(valu('v_add_f32', v(b + 2), v(b + 2), v(b + 3)))
    for mods in ("quad_perm:[1,0,3,2] row_mask:0xf bank_mask:0xf", "quad_perm:[2,3,0,1] row_mask:0xf bank_mask:0xf", "row_half_mirror row_mask:0xf bank_mask:0xf"):
        for p in range(2):
            for k in (0, 2):
                r = ACC + 4 * p + k
                E(valu('v_add_f32_dpp', v(r), v(r), v(r), mods=mods))
    for p in range(2):
        b = ACC + 4 * p
        E(valu('v_mul_f32', v(b), lit(1.0 / 448), v(b)))
        E(valu('v_mul_f32', v(b + 2), lit(1.0 / 448), v(b + 2)))
        E(valu('v_fma_f32', v(b + 2), '-' + v(b), v(b), v(b + 2)))
        E(valu('v_max_f32', v(b + 2), 0, v(b + 2)))
        E(valu('v_add_f32', v(b + 2), lit(1e-5), v(b + 2)))
        E(valu('v_rsq_f32', v(b + 2), v(b + 2)))
        E(valu('v_mul_f32', v(b), v(b), v(b + 2)))
        E(valu('v_sub_f32', v(b + 1), 0, v(b)))
    E(valu('v_and_b32', v(V_U0), 7, v(V_LANE)))
    E(valu('v_and_b32', v(V_U1), 3, v(V_U0)))
    E(valu('v_lshrrev_b32', v(V_U0), 2, v(V_U0))); E(valu('v_lshlrev_b32', v(V_U0), 6, v(V_U0)))
    E(valu('v_and_b32', v(V_U2), 1, v(V_U1))); E(valu('v_lshl_add_u32', v(V_U0), v(V_U2), 5, v(V_U0)))
    E(valu('v_lshrrev_b32', v(V_U1), 1, v(V_U1))); E(valu('v_lshl_add_u32', v(V_U0), v(V_U1), 3, v(V_U0)))
    E(salu('s_mov_b32', s(S_T0), XROW)); E(valu('v_mad_u32_u24', v(V_U0), v(V_R8), s(S_T0), v(V_U0)))
    E(salu('s_mul_i32', s(S_T1), s(S_W), 16 * XROW)); E(salu('s_add_u32', s(S_T1), s(S_T1), XSTAGE))
    E(valu('v_add_u32', v(V_U0), s(S_T1), v(V_U0)))
    E(valu('v_add_u32', v(V_U1), 8 * XROW, v(V_U0)))
    E(salu('s_mov_b32', s(S_T2), '0xffff0000'))
    T = 72
    for p in range(2):
        b = ACC + 4 * p
        for i in range(7):
            d0 = (p * 7 + i) * 4
            for k in range(4):
                t = T + 2 * k
                E(valu('v_lshlrev_b32', v(t), 16, v(d0 + k))); E(valu('v_and_b32', v(t + 1), s(S_T2), v(d0 + k)))
            for k in range(4):
                t = T + 2 * k
                if CFG.pkln:
                    x = I(f"v_pk_fma_f32 v[{t}:{t+1}], v[{t}:{t+1}], v[{b+2}:{b+3}], v[{b}:{b+1}] op_sel:[0,0,1] op_sel_hi:[1,0,1]", 'valu',
                          regs(v(t, 2)) + regs(v(b, 4)), regs(v(t, 2)))
                    E(x)
                else:
                    E(valu('v_fma_f32', v(t), v(t), v(b + 2), '-' + v(b))); E(valu('v_fma_f32', v(t + 1), v(t + 1), v(b + 2), '-' + v(b)))
            for k in range(4):
                t = T + 2 * k
                E(valu('v_cvt_pk_bf16_f32', v(d0 + k), v(t), v(t + 1)))
            E(ds_write2_b64(v(V_U0 + p), v(d0, 2), v(d0 + 2, 2), 16 * i, 16 * i + 2, tag='xw'))
            drip(wl)
    drip(late, 99); drip(wl, 99)
    E(wait_lgkm_tag('xw')); E(barrier())
    E(salu('s_lshl_b32', s(S_T0), s(S_RH), 5)); E(valu('v_add_u32', v(V_U0), s(S_T0), v(V_N16)))
    E(salu('s_mov_b32', s(S_T0), XROW)); E(valu('v_lshlrev_b32', v(V_U1), 4, v(V_GQ)))
    E(valu('v_mad_u32_u24', v(V_U0), v(V_U0), s(S_T0), v(V_U1))); E(valu('v_add_u32', v(V_U0), XSTAGE, v(V_U0)))
    for ks in range(14):
        for ct in range(2):
            E(ds_read('ds_read_b128', a(A_XB + (ks * 2 + ct) * 4, 4), v(V_U0), ks * 64 + ct * 16 * XROW, tag='xb'))
    return P

def interleave(*lists):
    out = []; its = [list(l) for l in lists]
    while any(its):
        for l in its:
            if l: out.append(l.pop(0))
    return out

def geglu(st):
    base = accset(st) if (st < 3 or not CFG.f1mix) else V_F1H
    out = []
    tis = range(2) if st < 3 else range(1)
    TT = 64; HP = 80
    out.append(valu('v_add_u32', v(V_HW), s(S_HI + st), v(V_HR)))
    for ct in range(2):
        for ti in tis:
            G = base + ((0 * 2 + ti) * 2 + ct) * 4; U = base + ((1 * 2 + ti) * 2 + ct) * 4
            t = [TT + k for k in range(4)]; e = [TT + 4 + k for k in range(4)]
            for k in range(4): out.append(valu('v_mul_f32', v(t[k]), v(G + k), v(G + k)))
            for k in range(4): out.append(valu('v_fmaak_f32', v(t[k]), v(t[k]), v(V_C1), lit(C_GELU0)))
            for k in range(4): out.append(valu('v_mul_f32', v(t[k]), v(G + k), v(t[k])))
            for k in range(4): out.append(valu('v_exp_f32', v(e[k]), v(t[k])))
            for k in range(4): out.append(valu('v_mul_f32', v(t[k]), v(G + k), v(U + k)))
            for k in range(4): out.append(valu('v_add_f32', v(e[k]), '1.0', v(e[k])))
            for k in range(4): out.append(valu('v_rcp_f32', v(e[k]), v(e[k])))
            hp = HP + ct * 4 + ti * 2
            for k in range(4): out.append(valu('v_mul_f32', v(t[k]), v(t[k]), v(e[k])))
            out.append(valu('v_cvt_pk_bf16_f32', v(hp), v(t[0]), v(t[1]))); out.append(valu('v_cvt_pk_bf16_f32', v(hp + 1), v(t[2]), v(t[3])))
        if st < 3: out.append(ds_write('ds_write_b128', v(V_HW), v(HP + ct * 4, 4), ct * 1024, tag='hw'))
        else: out.append(ds_write('ds_write_b64', v(V_HW), v(HP + ct * 4, 2), ct * 1024, tag='hw'))
    return out

def qconv(st):
    base = accset(4 + st); out = []
    for pp in range(2):
        for ct in range(2):
            X0 = base + ((2 * pp) * 2 + ct) * 4; X1 = base + ((2 * pp + 1) * 2 + ct) * 4
            t = 64 + 8 * ct; h = 80 + 4 * ct
            for k in range(4): out.append(valu('v_mul_f32', v(t + k), lit(C_QS), v(X0 + k)))
            for k in range(4): out.append(valu('v_mul_f32', v(t + 4 + k), lit(C_QS), v(X1 + k)))
            for k in range(4): out.append(valu('v_cvt_pk_bf16_f32', v(h + k), v(t + 2 * k), v(t + 2 * k + 1)))
            if CFG.qlds:
                ks = 2 * st + pp
                out.append(ds_write2_b64(v(V_QW), v(h, 2), v(h + 2, 2), 0, 4, tag='qw'))
                out.append(ds_read('ds_read_b128', a(A_Q + (ks * 2 + ct) * 4, 4), v(V_QR), 0, tag='qr'))
                continue
            out.append(valu('v_permlane32_swap_b32', v(h), v(h + 2))); out.append(valu('v_permlane32_swap_b32', v(h + 1), v(h + 3)))
            out.append(nop(0))
            out.append(valu('v_permlane16_swap_b32', v(h), v(h + 2))); out.append(valu('v_permlane16_swap_b32', v(h + 1), v(h + 3)))
            ks = 2 * st + pp
            for k in range(4): out.append(valu('v_accvgpr_write_b32', a(A_Q + (ks * 2 + ct) * 4 + k), v(h + k)))
    return out

def gconv(st):
    base = accset(8 + st); out = []
    pps = range(2) if st < 3 else range(1)
    for pp in pps:
        for ct in range(2):
            if st < 3: X0 = base + ((2 * pp) * 2 + ct) * 4; X1 = base + ((2 * pp + 1) * 2 + ct) * 4
            else: X0 = base + (0 * 2 + ct) * 4; X1 = base + (1 * 2 + ct) * 4
            h = 80 + 4 * ct
            out.append(valu('v_cvt_pk_bf16_f32', v(h), v(X0), v(X0 + 1))); out.append(valu('v_cvt_pk_bf16_f32', v(h + 1), v(X0 + 2), v(X0 + 3)))
            out.append(valu('v_cvt_pk_bf16_f32', v(h + 2), v(X1), v(X1 + 1))); out.append(valu('v_cvt_pk_bf16_f32', v(h + 3), v(X1 + 2), v(X1 + 3)))
            li = st * 2 + pp
            for k in range(4): out.append(valu('v_accvgpr_write_b32', a(A_G + (li * 2 + ct) * 4 + k), v(h + k)))
    return out
def gstore(li, ct):
    st, pp = li // 2, li % 2
    return [salu('s_add_u32', s(S_T0), s(S_GB), s(S_CB + st)),
            vstore('buffer_store_dwordx4', a(A_G + (li * 2 + ct) * 4, 4), v(V_L16), s(S_WS, 4), s(S_T0), pp * 2048 + ct * 1024, (CFG.gstore_flags if CFG.gstore_flags is not None else CFG.store_flags).replace('_', ' ').strip(), tag='gst')]

def sconv(st):
    base = 128 + 32 * (st & 1); out = []
    pps = range(2) if st < 3 else range(1)
    out.append(salu('s_add_u32', s(S_T1), s(S_PB), s(S_CB + st)))
    n = 0
    for pp in pps:
        for ct in range(2):
            if st < 3: X0 = base + ((2 * pp) * 2 + ct) * 4; X1 = base + ((2 * pp + 1) * 2 + ct) * 4
            else: X0 = 160 + (0 * 2 + ct) * 4; X1 = 160 + (1 * 2 + ct) * 4
            h = 192 + 4 * (n & 1); n += 1
            out.append(valu('v_cvt_pk_bf16_f32', v(h), v(X0), v(X0 + 1))); out.append(valu('v_cvt_pk_bf16_f32', v(h + 1), v(X0 + 2), v(X0 + 3)))
            out.append(valu('v_cvt_pk_bf16_f32', v(h + 2), v(X1), v(X1 + 1))); out.append(valu('v_cvt_pk_bf16_f32', v(h + 3), v(X1 + 2), v(X1 + 3)))
            out.append(vstore('buffer_store_dwordx4', v(h, 4), v(V_L16), s(S_WS, 4), s(S_T1), pp * 2048 + ct * 1024, CFG.store_flags.replace('_', ' ').strip(), tag='sst'))
    return out

def xlane_reduce(op, reg, tmp):
    return [valu('v_mov_b32', v(tmp), v(reg)), nop(0), valu('v_permlane16_swap_b32', v(reg), v(tmp)), nop(0), valu(op, v(reg), v(reg), v(tmp)),
            valu('v_mov_b32', v(tmp), v(reg)), nop(0), valu('v_permlane32_swap_b32', v(reg), v(tmp)), nop(0), valu(op, v(reg), v(reg), v(tmp))]

def Sreg(t, T, ct): return V_S + 16 * (t & 1) + (ct * 2 + T) * 4
def Preg(t, ct): return V_P + 8 * (t & 1) + ct * 4

def softmax_first():
    out = []
    for ct in range(2):
        r = [Sreg(0, 0, ct) + k for k in range(4)] + [Sreg(0, 1, ct) + k for k in range(4)]
        m = V_T + ct
        out.append(valu('v_max3_f32', v(m), v(r[0]), v(r[1]), v(r[2])))
        out.append(valu('v_max3_f32', v(m), v(m), v(r[3]), v(r[4])))
        out.append(valu('v_max3_f32', v(m), v(m), v(r[5]), v(r[6])))
        out.append(valu('v_max_f32', v(m), v(m), v(r[7])))
    a0 = xlane_reduce('v_max_f32', V_T, V_T + 2); a1 = xlane_reduce('v_max_f32', V_T + 1, V_T + 3)
    out += interleave(a0, a1)
    for ct in range(2):
        for k in range(4): out.append(valu('v_sub_f32', v(V_NEGM + 4 * ct + k), 0, v(V_T + ct)))
    for ct in range(2):
        for T in range(2):
            for k in range(4): out.append(valu('v_add_f32', v(Sreg(0, T, ct) + k), v(V_NEGM + 4 * ct), v(Sreg(0, T, ct) + k)))
    out.append(valu('v_mov_b32', v(V_L0), 0)); out.append(valu('v_mov_b32', v(V_L1), 0))
    return out
def s1_fix():
    out = []
    for ct in range(2):
        for T in range(2):
            for k in range(4): out.append(valu('v_add_f32', v(Sreg(1, T, ct) + k), v(V_NEGM + 4 * ct), v(Sreg(1, T, ct) + k)))
    return out
def softmax_body(t):
    out = []
    for ct in range(2):
        ts = V_TS0 + ct
        for T in range(2):
            S = Sreg(t, T, ct); e = V_T + 4 * T
            for k in range(4): out.append(valu('v_exp_f32', v(e + k), v(S + k)))
            if T == 0:
                out.append(valu('v_add_f32', v(ts), v(e), v(e + 1)))
            else:
                out.append(valu('v_add_f32', v(ts), v(ts), v(e)));
            out.append(valu('v_cvt_pk_bf16_f32', v(Preg(t, ct) + 2 * T), v(e), v(e + 1)))
            if T == 1: out.append(valu('v_add_f32', v(ts), v(ts), v(e + 1)))
            out.append(valu('v_add_f32', v(ts), v(ts), v(e + 2)))
            out.append(valu('v_cvt_pk_bf16_f32', v(Preg(t, ct) + 2 * T + 1), v(e + 2), v(e + 3)))
            out.append(valu('v_add_f32', v(ts), v(ts), v(e + 3)))
    return out
def softmax_check(t):
    return [valu('v_max_f32', v(V_TM), v(V_TS0), v(V_TS1)),
            valu('v_cmp_lt_f32', 'vcc', s(S_THR), v(V_TM)),
            raw(f"s_cbranch_vccnz L_slow_{t}", 'branch', ['vcc']),
            label(f"L_back_{t}"),
            valu('v_add_f32', v(V_L0), v(V_L0), v(V_TS0)), valu('v_add_f32', v(V_L1), v(V_L1), v(V_TS1))]

def slow_path(par):
    t = par
    o = []
    o.append(label(f"L_slowsub_{par}"))
    o.append(nop(15))
    for ct in range(2):
        r = [Sreg(t, 0, ct) + k for k in range(4)] + [Sreg(t, 1, ct) + k for k in range(4)]
        m = V_T + ct
        o += [valu('v_max3_f32', v(m), v(r[0]), v(r[1]), v(r[2])), valu('v_max3_f32', v(m), v(m), v(r[3]), v(r[4])),
              valu('v_max3_f32', v(m), v(m), v(r[5]), v(r[6])), valu('v_max_f32', v(m), v(m), v(r[7]))]
        o += xlane_reduce('v_max_f32', m, V_T + 2)
        o.append(valu('v_max_f32', v(m), 0, v(m)))
    for ct in range(2):
        d = V_T + ct; f = V_T + 2 + ct
        o.append(valu('v_sub_f32', v(f), 0, v(d))); o.append(valu('v_exp_f32', v(f), v(f)))
        for k in range(4): o.append(valu('v_sub_f32', v(V_NEGM + 4 * ct + k), v(V_NEGM + 4 * ct + k), v(d)))
        for tt in (t, t + 1):
            for T in range(2):
                for k in range(4): o.append(valu('v_sub_f32', v(Sreg(tt, T, ct) + k), v(Sreg(tt, T, ct) + k), v(d)))
        o.append(valu('v_mul_f32', v(V_L0 + ct), v(V_L0 + ct), v(f)))
        for dt in range(16):
            b = ((dt >> 1) * 2 + ct) * 8 + (dt & 1) * 4
            for k in range(4): o.append(valu('v_mul_f32', v(b + k), v(b + k), v(f)))
    o += softmax_body(t)
    o.append(nop(3))
    o.append(raw(f"s_setpc_b64 s[{S_RET}:{S_RET+1}]", 'branch', [s(S_RET, 2)]))
    return o

def onorm(i):
    ct = i & 1; b = 8 * i; rl = V_RL0 + ct; t = V_T
    out = []
    for k in range(8): out.append(valu('v_mul_f32', v(t + k), v(b + k), v(rl)))
    for k in range(4): out.append(valu('v_cvt_pk_bf16_f32', v(b + k), v(t + 2 * k), v(t + 2 * k + 1)))
    if i < 8: out.append(ds_write('ds_write_b128', v(V_XW), v(b, 4), i * 1024, tag='ow1'))
    return out

def units(x):
    if x.kind == 'trans': return 2
    if x.kind == 'nop': return x.tag + 1
    if x.kind == 'label': return 0
    return 1

def build():
    _last_base.clear()
    chunks, groups, marks = build_main()
    nchunks = len(chunks)
    fcount = 0
    for g in groups:
        g.bufs = []
        for _ in g.frs:
            g.bufs.append(A_FB + 4 * (fcount % CFG.nb)); fcount += 1
        g.f0 = fcount - len(g.frs)
        g.mf = g.mk(g.bufs)
    merged = set()
    if CFG.merge_waits:
        gi = 0
        while gi + 1 < len(groups):
            g, h = groups[gi], groups[gi + 1]
            nm = chunks[g.chunk].name
            on = (CFG.merge_waits == 'all') or (CFG.merge_waits == 'att' and nm[0] in 'KV') or (CFG.merge_waits == 'atto' and nm[0] in 'KVO') or (CFG.merge_waits == 'k' and nm[0] == 'K')
            if on:
                for b in h.bufs: g.mf[0].extra_need |= set(regs(a(b, 4)))
                merged.add(gi)
            gi += 2
    mstart = []; m = 0
    for g in groups:
        mstart.append(m); m += len(g.mf)
    mstart.append(m); NM = m
    M = {k: mstart[i] for k, i in marks.items()}
    chunk_first_m = {}
    for gi, g in enumerate(groups): chunk_first_m.setdefault(g.chunk, mstart[gi])
    chunk_first_m[nchunks] = NM
    def first_chunk(name):
        return min(i for i, c in enumerate(chunks) if c.name.startswith(name))
    forced = {first_chunk("O s0 j0"), first_chunk("O s0 j2"), first_chunk("O s0 j4"), first_chunk("O s0 j6")}
    bars = []; b = 0
    while b < nchunks:
        bars.append(b)
        b += 1 if (CFG.bar_every == 1 or (b + 1) in forced) else 2
    barset = set(bars)
    nextbar = {bb: (bars[i + 1] if i + 1 < len(bars) else nchunks) for i, bb in enumerate(bars)}
    def bar_at_or_after(c):
        return min(bb for bb in bars if bb >= c)

    side = []
    seq = [0]
    def spread(ins, m0, m1, early=True):
        n = len(ins)
        for k, x in enumerate(ins):
            side.append([m0 + (m1 - m0) * k / max(n, 1), seq[0], m0 if early else None, x]); seq[0] += 1
    def at(ins, m0):
        for x in ins:
            side.append([m0, seq[0], None, x]); seq[0] += 1
    LAT = 6
    if CFG.f1mix:
        spread(geglu(0), M["F1_1"] + LAT, M["F1_2"] - 2)
        spread(geglu(1), M["F1_2"] + LAT, M["Q_0"] - 2)
        spread(geglu(2), M["Q_0"] + LAT, M["Q_0"] + 76)
        spread(geglu(3), M["Q_0"] + 78, M["Q_1"] - 6)
    else:
        spread(geglu(0), M["F1_1"] + LAT, M["F1_2"] + 20)
        spread(geglu(1), M["F1_2"] + 24, M["F1_3"] + 10)
        spread(geglu(2), M["F1_3"] + 14, M["Q_0"] + 50)
        spread(geglu(3), M["Q_0"] + 54, M["Q_1"] - 8)
    pre_dma = {}
    pre_dma[first_chunk("Q ")] = dv_setup(V_DVB, 8192)
    pre_dma[first_chunk("F2")] = dv_setup(V_DVA, 896)
    pre_dma[first_chunk("K0")] = dv_setup_K(V_DVB)
    pre_dma[first_chunk("V0")] = dv_setup(V_DVA, 512)
    pre_dma[first_chunk("O ")] = dv_setup(V_DVB, 896)
    qn = ["Q_1", "Q_2", "Q_3", "F2_0"]; qe = ["Q_2", "Q_3", "F2_0", "F2_1"]
    for st in range(4):
        spread(qconv(st), M[qn[st]] + LAT, M[qe[st]] - 8)
    hc = bar_at_or_after(first_chunk("Q s2 j0"))
    fence = {hc: ['hw']}; fence_count = {'hw': 8, 'ow1': 8, 'ow2': 8, 'pr1': 8}
    q3 = first_chunk("Q s3 j0")
    for i in range(7):
        m0 = chunk_first_m[q3 + i // 2 + 1] + 1
        at([ds_read('ds_read_b128', a(A_H + (i * 2 + ct) * 4, 4), v(V_HR), i * 4096 + ct * 1024, tag='hr') for ct in range(2)], m0 + 2 * (i & 1))
    spread(gconv(0), M["F2_1"] + LAT, M["F2_2"] - 8)
    spread(gconv(1), M["F2_2"] + LAT, M["F2_3"] - 8)
    spread(gconv(2), M["F2_3"] + LAT, M["S_0"] + 8)
    spread(gconv(3), M["S_0"] + 12, M["S_1"] - 2)
    spread(softmax_first() + softmax_body(0), M["S_1"] + LAT, M["S_2"] - 2)
    at([valu('v_add_f32', v(V_L0), v(V_L0), v(V_TS0)), valu('v_add_f32', v(V_L1), v(V_L1), v(V_TS1))], M["S_2"] - 1)
    for t in range(1, 16):
        if t < 15: m0, m1 = M[f"S_{t+1}"], (M[f"S_{t+2}"] if t < 14 else M["PV_14"])
        else: m0, m1 = M["PV_14"], M["PV_15"]
        body = softmax_body(t)
        if t == 1: body = s1_fix() + body
        spread(body, m0 + (LAT if t == 1 else 1), m1 - 3)
        at(softmax_check(t), m1 - 1)
    k = 0
    for li in range(7):
        for ct in range(2):
            t = 1 + k
            at(gstore(li, ct), M[f"PV_{t-1}"] + 8); k += 1
    fin = interleave(xlane_reduce('v_add_f32', V_L0, V_T), xlane_reduce('v_add_f32', V_L1, V_T + 1))
    fin += [valu('v_rcp_f32', v(V_RL0), v(V_L0)), valu('v_rcp_f32', v(V_RL1), v(V_L1))]
    spread(fin, M["PV_15"], M["PV_15"] + 10, early=False)
    allnorm = []
    for ks in range(8): allnorm += onorm(2 * ks) + onorm(2 * ks + 1)
    spread(allnorm, M["PV_15"] + 12, M["O_0"] + 28, early=False)
    oj2, oj4, oj6 = first_chunk("O s0 j2"), first_chunk("O s0 j4"), first_chunk("O s0 j6")
    fence[oj2] = ['ow1']; fence[oj4] = ['pr1']; fence[oj6] = ['ow2']
    after_bar = {}
    after_bar[oj2] = [ds_read('ds_read_b128', a(A_PART + i * 4, 4), v(V_XR), i * 1024, tag='pr1') for i in range(8)]
    after_bar[oj4] = [ds_write('ds_write_b128', v(V_XW), v(8 * i, 4), (i - 8) * 1024, tag='ow2') for i in range(8, 16)]
    after_bar[oj6] = [ds_read('ds_read_b128', a(A_PART + i * 4, 4), v(V_XR), (i - 8) * 1024, tag='pr2') for i in range(8, 16)]
    o3 = [salu('s_lshl_b32', s(S_T0), s(S_CH), 13), salu('s_xor_b32', s(S_T2), s(S_T0), 8192)]
    for k in range(4): o3.append(valu('v_add_u32', v(V_TS + 4 + k), s(S_T2), v(V_TS + k)))
    for k in range(4): o3.append(valu('v_add_u32', v(V_TS + k), s(S_T0), v(V_TS + k)))
    spread(o3, M["O_1"] + 8, M["O_1"] + 30, early=False)
    spread(sconv(0), M["O_1"] + LAT, M["O_1"] + 60)
    spread(sconv(1), M["O_2"] + LAT, M["O_2"] + 60)
    spread(sconv(2), M["O_3"] + LAT, M["O_3"] + 40)
    tail = sconv(3)

    if CFG.warm_w:
        w_f1, w_setup, w_issue = warm_weights()
        for item in CFG.warm_main.split('+'):
            if not item: continue
            k, where, off = item.split(':')
            at(w_issue[k], M[where] + int(off))
    STAMP = ["F1_0", "Q_0", "F2_0", "S_0", "S_2", "PV_14", "O_0"]
    if CFG.stamps == 'pro': STAMP = ["F1_0", "F1_1", "F1_2", "F1_3"]
    if CFG.stamps == 'p2': STAMP = ["F1_0"]
    if CFG.stamps == 'f1': STAMP = ["F1_0", "F1_1", "F1_2", "F1_3", "Q_0", "Q_1", "Q_2"]
    if CFG.stamps == 'o': STAMP = ["PV_14", "PV_15", "O_0", "O_part", "O_1", "O_2", "O_3"]
    if CFG.stamps == 'q': STAMP = ["Q_0", "Q_1", "Q_2", "Q_3", "F2_0", "F2_2", "S_0"]
    if CFG.stamps == 'a': STAMP = ["S_2", "PV_0", "S_3", "PV_1", "S_4", "S_8", "S_12"]
    sbase = 3 if CFG.stamps == 'pro' else (6 if CFG.stamps == 'p2' else 0)
    if CFG.stamps:
        for k0, nm in enumerate(STAMP):
            k = k0 + sbase
            at([raw(f"s_memrealtime s[{74+2*k}:{75+2*k}]", 'salu')], M[nm])
    side.sort(key=lambda x: (x[0], x[1]))

    P = prologue()
    if CFG.warm_first and CFG.warm_w:
        xl = [x for x in P if x.kind == 'vload' and x.tag == 'x']
        P = [x for x in P if not (x.kind == 'vload' and x.tag == 'x')]
        k = [i for i, x in enumerate(P) if x.text.startswith('s_mov_b32 s11,')][0] + 1
        P = P[:k] + (w_f1 + xl if CFG.warm_first == 1 else xl + w_f1) + P[k:]
    if CFG.stamps:
        P.insert(2, raw("s_memrealtime s[88:89]", 'salu'))
        P.append(raw("s_mov_b32 s67, s88", 'salu'))
    pro_v = []
    if CFG.stamps == 'p2': P.append(raw("s_memrealtime s[74:75]", 'salu'))
    wc = []
    P += wc
    if CFG.warm_w: P += w_setup
    P += prologue2()
    late = chunk_dma(0, chunks[0]) + chunk_dma(1, chunks[1])
    wl_b = chunk_dma(2, chunks[2]) + chunk_dma(3, chunks[3])
    if CFG.stamps == 'p2': P.append(raw("s_memrealtime s[76:77]", 'salu'))
    if CFG.stamps == 'p2': P.append(raw("s_memrealtime s[78:79]", 'salu'))
    LN = layernorm(late, wl_b)
    if CFG.stamps == 'p2':
        kb = [i for i, x in enumerate(LN) if x.kind == 'barrier'][0]
        LN.insert(kb, raw("s_memrealtime s[84:85]", 'salu'))
        kd = [i for i, x in enumerate(LN) if x.text.startswith('v_add_f32_dpp')][0]
        LN.insert(kd, raw("s_memrealtime s[82:83]", 'salu'))
        LN.insert(10, raw("s_memrealtime s[80:81]", 'salu'))
    if CFG.stamps == 'pro':
        LN.insert(8, raw("s_memrealtime s[76:77]", 'salu'))
        LN.insert(0, raw("s_memrealtime s[74:75]", 'salu'))
        kb = [i for i, x in enumerate(LN) if x.kind == 'barrier'][0]
        LN.insert(kb, raw("s_memrealtime s[78:79]", 'salu'))
    P += LN

    for gi, g in enumerate(groups):
        g.reads = []
        for fi, fr in enumerate(g.frs):
            g.reads += fr(g.bufs[fi], g.chunk % NSLOT, g.chunk)
    st8 = dict(opened=-1, issued=3, rg=0, ri=0, sp=0, prevbar=None)
    dq = []
    xq = []
    gap = [0]
    def emit(x):
        P.append(x); gap[0] += units(x)
    def open_bar(c, mi):
        while dq: emit(dq.pop(0)[1])
        if c in fence:
            for tg in fence[c]:
                have = sum(1 for x in P if x.tag == tg); want = fence_count[tg]
                assert have == want, (tg, have, want)
            P.append(wait_lgkm_tag(fence[c]))
        cover = list(range(c, nextbar[c]))
        P.append(wait_vm_tag([('dma', cc) for cc in cover])); gap[0] += 1
        emit(barrier())
        st8['opened'] = nextbar[c] - 1
        pb = st8['prevbar']
        lim = 5 if pb is None else pb + NSLOT - 1
        st8['prevbar'] = c
        todo = []
        while st8['issued'] < min(lim, nchunks - 1):
            n = st8['issued'] + 1
            if n in pre_dma: todo += pre_dma[n]
            todo += chunk_dma(n, chunks[n]); st8['issued'] = n
        nd = sum(1 for x in todo if x.kind == 'dma')
        if nd:
            L = max(4, chunk_first_m[nextbar[c]] - chunk_first_m[c] - 2)
            step = L / nd
            k = 0; pend = []
            for x in todo:
                if x.kind == 'dma':
                    pos = mi + 1 + k * step
                    for j, y in enumerate(pend): dq.append([pos - step * (len(pend) - j) / (len(pend) + 1) if k > 0 else mi, y])
                    pend = []
                    dq.append([pos, x]); k += 1
                else: pend.append(x)
        if c in after_bar: xq.extend(after_bar[c])
    def can_read(gidx, cur):
        g = groups[gidx]
        prevf = g.f0 + len(g.frs) - 1 - CFG.nb
        return prevf < 0 or groups[cur].f0 > prevf
    def issue_reads(cur, maxn, mi):
        n = 0
        while st8['rg'] < len(groups) and n < maxn and can_read(st8['rg'], cur):
            g = groups[st8['rg']]
            if g.chunk > st8['opened']:
                assert g.chunk in barset, g.chunk
                open_bar(g.chunk, mi)
            r = g.reads[st8['ri']]
            emit(r); st8['ri'] += 1; n += 1
            if st8['ri'] == len(g.reads): st8['rg'] += 1; st8['ri'] = 0
        return n
    while st8['rg'] < len(groups) and groups[st8['rg']].f0 + len(groups[st8['rg']].frs) <= CFG.nb: issue_reads(0, 1, 0)
    mi = 0
    for gi, g in enumerate(groups):
        while st8['rg'] <= gi:
            if not issue_reads(gi, 8, mi): raise Exception("cannot issue reads")
        for k, mf in enumerate(g.mf):
            P.append(mf); gap[0] = 0
            last = (k == len(g.mf) - 1)
            if last and gi not in merged: gap[0] += 1
            cur = gi + 1 if (last and gi + 1 < len(groups)) else gi
            nrd = len(groups[min(st8['rg'], len(groups) - 1)].reads)
            issue_reads(cur, 1 if len(g.mf) >= 4 else 2, mi)
            while xq and gap[0] < 2: emit(xq.pop(0))
            while dq and dq[0][0] <= mi: emit(dq.pop(0)[1])
            while st8['sp'] < len(side):
                dl, _, early, x = side[st8['sp']]
                if dl <= mi or (CFG.fill and early is not None and early <= mi and gap[0] + units(x) <= 2):
                    emit(x); st8['sp'] += 1
                else: break
            mi += 1
    while xq: emit(xq.pop(0))
    while st8['sp'] < len(side):
        P.append(side[st8['sp']][3]); st8['sp'] += 1
    P += tail
    if CFG.stamps: P.append(raw("s_memrealtime s[44:45]", 'salu'))
    P.append(raw("s_waitcnt vmcnt(0)", 'wait_raw'))
    if CFG.stamps:
        P.append(raw("s_memrealtime s[46:47]", 'salu'))
        P.append(raw("s_waitcnt lgkmcnt(0)", 'wait_raw'))
        P.append(salu('s_lshl_b32', s(S_T0), s(2), 2)); P.append(salu('s_add_u32', s(S_T0), s(S_T0), s(S_W))); P.append(salu('s_lshl_b32', s(S_T0), s(S_T0), 6))
        P.append(salu('s_add_u32', s(S_T0), s(S_T0), 30 << 20)); P.append(salu('s_mov_b32', s(S_WS + 2), 40 << 20))
        order = [67] + [74 + 2 * k for k in range(7)] + [44, 46, 46, 46]
        for k, r in enumerate(order): P.append(valu('v_mov_b32', v(k), s(r)))
        P.append(valu('v_mov_b32', v(16), 0))
        P.append(raw("s_mov_b64 exec, 1", 'salu'))
        for k in range(3): P.append(vstore('buffer_store_dwordx4', v(4 * k, 4), v(16), s(S_WS, 4), s(S_T0), 16 * k))
        P.append(raw("s_waitcnt vmcnt(0)", 'wait_raw'))
        if CFG.dbgstamps is not False:
            P.append(raw("s_load_dwordx2 s[4:5], s[0:1], 80", 'salu')); P.append(raw("s_waitcnt lgkmcnt(0)", 'wait_raw'))
            P.append(salu('s_mov_b32', s(6), 256)); P.append(salu('s_mov_b32', s(7), '0x00020000'))
            for k in range(1, 11): P.append(valu('v_sub_u32', v(k), v(k), v(0)))
            P.append(salu('s_lshl_b32', s(S_T0), s(2), 2)); P.append(salu('s_add_u32', s(S_T0), s(S_T0), s(S_W)))
            P.append(salu('s_cmp_eq_u32', s(S_T0), int(CFG.dbgstamps))); P.append(raw("s_cbranch_scc0 L_main_end", 'branch'))
            for k in range(3): P.append(vstore('buffer_store_dwordx4', v(4 * k, 4), v(16), s(4, 4), '0', 16 * k))
            P.append(raw("s_waitcnt vmcnt(0)", 'wait_raw'))
    P.append(label("L_main_end")); P.append(raw("s_endpgm", 'branch'))
    for t in range(1, 16):
        P.append(label(f"L_slow_{t}"))
        P.append(raw(f"s_call_b64 s[{S_RET}:{S_RET+1}], L_slowsub_{t & 1}", 'branch', [], [s(S_RET, 2)]))
        P.append(raw(f"s_branch L_back_{t}", 'branch'))
    P += slow_path(0); P += slow_path(1)
    P.append(label("L_main_code_end"))
    if CFG.stampop != 's_memrealtime':
        for x in P:
            if x.text.startswith('s_memrealtime'): x.text = x.text.replace('s_memrealtime', CFG.stampop)
    Pf, stats = finalize(P)
    if 'nodma' in CFG.abl: Pf = [x for x in Pf if x.kind != 'dma']
    if 'nobar' in CFG.abl: Pf = [x for x in Pf if x.kind != 'barrier']
    if 'novm' in CFG.abl: Pf = [x for x in Pf if not (x.kind == 'wait' and 'vmcnt' in x.text)]
    if 'nolgkm' in CFG.abl:
        k0 = [i for i, x in enumerate(Pf) if x.kind == 'mfma'][0]
        Pf = [x for i, x in enumerate(Pf) if i < k0 or not (x.kind == 'wait' and 'lgkm' in x.text)]
    if 'nostore' in CFG.abl: Pf = [x for x in Pf if not (x.kind == 'vstore' and x.tag in ('gst', 'sst'))]
    return Pf, stats, M, NM

def reduce_kernel():
    P = []; E = P.append
    E(salu('s_cmp_ge_u32', s(2), 448)); E(raw("s_cbranch_scc1 L_red_end", 'branch'))
    if CFG.stamps: E(raw("s_memrealtime s[34:35]", 'salu'))
    E(raw("s_load_dwordx2 s[4:5], s[0:1], 0")); E(raw("s_load_dwordx2 s[6:7], s[0:1], 72")); E(raw("s_load_dwordx2 s[8:9], s[0:1], 88"))
    E(valu('v_and_b32', v(1), 63, v(0))); E(valu('v_lshrrev_b32', v(2), 6, v(0)))
    E(valu('v_lshlrev_b32', v(3), 4, v(1)))
    E(valu('v_readfirstlane_b32', s(20), v(2)))
    E(salu('s_lshl_b32', s(21), s(2), 2)); E(salu('s_add_u32', s(21), s(21), s(20)))
    E(salu('s_mul_hi_u32', s(22), s(21), (2 ** 32 + 55) // 56))
    E(salu('s_mul_i32', s(23), s(22), 56)); E(salu('s_sub_u32', s(23), s(21), s(23)))
    E(raw("s_waitcnt lgkmcnt(0)", 'wait_raw'))
    E(salu('s_mov_b32', s(12), s(8))); E(salu('s_mov_b32', s(13), s(9))); E(salu('s_mov_b32', s(14), 2 * 256 * 57344)); E(salu('s_mov_b32', s(15), '0x00020000'))
    E(salu('s_mul_i32', s(24), s(22), 8 * 57344)); E(salu('s_lshl_b32', s(25), s(23), 10)); E(salu('s_add_u32', s(24), s(24), s(25)))
    for which in range(2):
        for k in range(8):
            E(salu('s_add_u32', s(26), s(24), which * 256 * 57344 + k * 57344))
            E(vload('buffer_load_dwordx4', v(16 + (which * 8 + k) * 4, 4), v(3), s(12, 4), s(26), 0, tag='p'))
    E(salu('s_and_b32', s(27), s(23), 1))
    E(salu('s_lshr_b32', s(28), s(23), 1))
    E(salu('s_cmp_ge_u32', s(28), 14)); E(salu('s_cselect_b32', s(29), 1, 0))
    E(salu('s_mul_i32', s(30), s(29), 14)); E(salu('s_sub_u32', s(28), s(28), s(30)))
    E(salu('s_lshl_b32', s(30), s(22), 6)); E(salu('s_lshl_b32', s(31), s(29), 5)); E(salu('s_add_u32', s(30), s(30), s(31)))
    E(salu('s_lshl_b32', s(31), s(27), 4)); E(salu('s_add_u32', s(30), s(30), s(31)))
    E(salu('s_mul_i32', s(30), s(30), 896)); E(salu('s_lshl_b32', s(31), s(28), 6)); E(salu('s_add_u32', s(30), s(30), s(31)))
    E(valu('v_and_b32', v(4), 15, v(1))); E(valu('v_lshrrev_b32', v(5), 4, v(1)))
    E(salu('s_mov_b32', s(32), 896)); E(valu('v_lshlrev_b32', v(5), 4, v(5))); E(valu('v_mad_u32_u24', v(4), v(4), s(32), v(5)))
    E(salu('s_mov_b32', s(16), s(4))); E(salu('s_mov_b32', s(17), s(5))); E(salu('s_mov_b32', s(18), 2048 * 896)); E(salu('s_mov_b32', s(19), '0x00020000'))
    E(vload('buffer_load_dwordx4', v(8, 4), v(4), s(16, 4), s(30), 0, tag='x'))
    E(salu('s_mov_b32', s(33), '0xffff0000'))
    for which in range(2):
        acc = 80 + 8 * which
        for k in range(8):
            src = 16 + (which * 8 + k) * 4
            for d in range(4):
                E(valu('v_lshlrev_b32', v(96), 16, v(src + d))); E(valu('v_and_b32', v(97), s(33), v(src + d)))
                if k == 0:
                    E(valu('v_mov_b32', v(acc + 2 * d), v(96))); E(valu('v_mov_b32', v(acc + 2 * d + 1), v(97)))
                else:
                    E(valu('v_add_f32', v(acc + 2 * d), v(acc + 2 * d), v(96))); E(valu('v_add_f32', v(acc + 2 * d + 1), v(acc + 2 * d + 1), v(97)))
    for k in range(8): E(valu('v_mul_f32', v(100 + k), lit(-math.log2(math.e)), v(88 + k)))
    for k in range(8): E(valu('v_exp_f32', v(100 + k), v(100 + k)))
    for k in range(8): E(valu('v_add_f32', v(100 + k), '1.0', v(100 + k)))
    for k in range(8): E(valu('v_rcp_f32', v(100 + k), v(100 + k)))
    for k in range(8): E(valu('v_mul_f32', v(88 + k), v(88 + k), v(100 + k)))
    for k in range(8): E(valu('v_mul_f32', v(80 + k), v(80 + k), v(88 + k)))
    for k in range(4): E(valu('v_cvt_pk_bf16_f32', v(108 + k), v(80 + 2 * k), v(81 + 2 * k)))
    E(valu('v_permlane32_swap_b32', v(108), v(110))); E(valu('v_permlane32_swap_b32', v(109), v(111)))
    E(valu('v_permlane16_swap_b32', v(108), v(110))); E(valu('v_permlane16_swap_b32', v(109), v(111)))
    for d in range(4):
        E(valu('v_lshlrev_b32', v(80 + 2 * d), 16, v(108 + d))); E(valu('v_and_b32', v(81 + 2 * d), s(33), v(108 + d)))
        E(valu('v_lshlrev_b32', v(88 + 2 * d), 16, v(8 + d))); E(valu('v_and_b32', v(89 + 2 * d), s(33), v(8 + d)))
    for k in range(8): E(valu('v_add_f32', v(80 + k), v(80 + k), v(88 + k)))
    for k in range(4): E(valu('v_cvt_pk_bf16_f32', v(108 + k), v(80 + 2 * k), v(81 + 2 * k)))
    E(salu('s_mov_b32', s(16), s(6))); E(salu('s_mov_b32', s(17), s(7)))
    E(vstore('buffer_store_dwordx4', v(108, 4), v(4), s(16, 4), s(30), 0))
    E(raw("s_waitcnt vmcnt(0)", 'wait_raw'))
    if CFG.stamps:
        E(raw("s_memrealtime s[36:37]", 'salu')); E(raw("s_waitcnt lgkmcnt(0)", 'wait_raw'))
        E(salu('s_lshl_b32', s(21), s(21), 3)); E(salu('s_add_u32', s(21), s(21), 31 << 20)); E(salu('s_mov_b32', s(14), 40 << 20))
        E(valu('v_mov_b32', v(8), s(34))); E(valu('v_mov_b32', v(9), s(36))); E(valu('v_mov_b32', v(10), 0))
        E(raw("s_mov_b64 exec, 1", 'salu'))
        E(vstore('buffer_store_dwordx2', v(8, 2), v(10), s(12, 4), s(21), 0)); E(raw("s_waitcnt vmcnt(0)", 'wait_raw'))
    E(label("L_red_end")); E(raw("s_endpgm", 'branch'))
    Pf, _ = finalize(P)
    return Pf

HEADER = """; Kernarg layout (96 bytes, ptrs only, base s[0:1]):
; Generated by gen/gen.py (hand-written generator).  Two launches:
;  1. fused_main_kernel: workgroup = (64 rows, kv head): LayerNorm, GEGLU FFN slice, q projection, attention, output projection
;     -> bf16 partial sums of s and g in d_ws
; @launch kernel=fused_main_kernel grid=(256,1,1) block=(256,1,1) lds=163840
; @launch kernel=fused_reduce_kernel grid=(448,1,1) block=(256,1,1) lds=0
.amdgcn_target "amdgcn-amd-amdhsa--gfx950"
.text
"""
def kd(name, nv, acc, ns):
    return f""".section .rodata,"a"
.p2align 6
.amdhsa_kernel {name}
  .amdhsa_next_free_vgpr {nv}
  .amdhsa_next_free_sgpr {ns}
  .amdhsa_accum_offset {acc}
  .amdhsa_group_segment_fixed_size 0
  .amdhsa_kernarg_size 96
  .amdhsa_user_sgpr_count 2
  .amdhsa_user_sgpr_kernarg_segment_ptr 1
  .amdhsa_system_sgpr_workgroup_id_x 1
  .amdhsa_float_denorm_mode_32 3
.end_amdhsa_kernel
"""
def generate():
    Pm, stats, M, NM = build()
    Pr = reduce_kernel()
    t = HEADER
    t += f".globl {MAIN}\n.p2align 8\n.type {MAIN},@function\n{MAIN}:\n" + text(Pm) + "\n"
    t += f".globl {RED}\n.p2align 8\n.type {RED},@function\n{RED}:\n" + text(Pr) + "\nL_all_code_end:\n"
    t += kd(MAIN, 512, 256, 102) + kd(RED, 112, 112, 40)
    return t, Pm, stats, M, NM

if __name__ == "__main__":
    for arg in sys.argv[2:]:
        k, val = arg.split("=")
        setattr(CFG, k, {"True": True, "False": False}.get(val, int(val) if val.lstrip('-').isdigit() else val))
    t, Pm, stats, M, NM = generate()
    out = sys.argv[1] if len(sys.argv) > 1 else f"cdna_kernels/{KNAME}.s"
    open(out, "w").write(t)
    from collections import Counter
    cn = Counter(i.kind for i in Pm)
    print("instrs:", len(Pm), dict(cn)); print(stats, "NM", NM)
```

```python
import sys, math
from asmlib import *

KNAME = "recurrent_scan__sliding_block_cached__glu_gated_geglu__prompt"
MAIN = "fused_main_kernel"
RED = "fused_reduce_kernel"

class Cfg:
    dbgstamps = False
    merge_waits = 'all'
    qlds = False
    f1mix = False
    warm_first = 2
    warm_pro = 'f1'
    warm_main = 'wq:F1_2:2+wd:Q_2:2+k:F2_0:2+v:F2_0:9+wo:S_8:2'
    pro_order = 1
    warm_gran = 128
    warm_early = 2
    bar_every = 2
    fill = True
    pkln = True
    warm_code = True
    warm_w = True
    code_bytes = 72 * 1024
    gdma = True
    dma_gap = 4
    abl = ''
    stampop = 's_memrealtime'
    stamps = False
    store_flags = "sc1"
    gstore_flags = None
    debug = None
    nb = 12
CFG = Cfg()

SLOT = 16384; NSLOT = 8; XA = 131072; XSTAGE = 98304; LDS_BYTES = 163840
XROW = 912
AHEAD = 4

S_X, S_F1, S_WQ, S_WD, S_K, S_V, S_WO, S_WS = 4, 8, 12, 16, 20, 24, 28, 32
S_WG, S_WU = 56, 60
S_KVH, S_RB, S_W, S_CH, S_RH, S_PAR, S_WLDS, S_SOFF = 36, 37, 38, 39, 40, 41, 42, 43
S_F1B = 44
S_QB = 48
S_F2B = 49
S_F2C3, S_F2C10, S_F2C11, S_F2C12 = 52, 53, 54, 55
S_KB, S_VB = 56, 57
S_OOWN = 58
S_OPAR = 61
S_KA = 64
S_O3 = 88
S_PB = 89
S_CB = 90
S_HI = 94
S_T0, S_T1, S_T2 = 98, 99, 100
S_THR = 101
S_ONES = 3
S_RET = 64
S_GB = 66

V_S = 128; V_P = 160; V_NEGM = 176; V_T = 184
V_L0, V_L1, V_TS0, V_TS1, V_TM, V_C1 = 192, 193, 194, 195, 196, 197
V_TAC = 200; V_TS = 208; V_TH = 212; V_KA = 216; V_TA = 224
V_DVA = 232; V_DVB = 236
V_L16, V_HW, V_HR, V_R8, V_SC16, V_XW, V_XR = 240, 241, 242, 243, 244, 245, 246
V_RL0, V_RL1 = 247, 248
V_F1H = 128
V_QW, V_QR = 92, 93
V_LANE, V_N16, V_GQ = 249, 250, 251
V_U0, V_U1, V_U2, V_U3 = 252, 253, 254, 255
HIOFF = 65536
SETS = [0, 32, 96]
def accset(gstep): return SETS[gstep % 3]
A_XB = 0; A_H = 0; A_FB = 112; A_Q = 192; A_G = 56; A_PART = 192

C_GELU0 = -2.0 * math.sqrt(2.0 / math.pi) * math.log2(math.e)
C_GELU1 = C_GELU0 * 0.044715
C_QS = math.log2(math.e) / 16.0
import struct
def f2u(x): return struct.unpack("<I", struct.pack("<f", x))[0]
def lit(x): return f"0x{f2u(x):08x}"

class Group:
    def __init__(self, chunk, frs, mk):
        self.chunk = chunk; self.frs = frs; self.mk = mk
class Chunk:
    def __init__(self, name, srd, dv, soff, imm):
        self.name = name; self.srd = srd; self.dv = dv; self.soff = soff; self.imm = imm; self.pair = dv

def tr_reads(addr_lo, off):
    lo, hi = addr_lo
    def f(buf, slot, c):
        ar = lo if slot < 4 else hi
        o = (slot % 4) * SLOT + off
        return [ds_read("ds_read_b64_tr_b16", a(buf, 2), v(ar), o, tag=('rd', c)),
                ds_read("ds_read_b64_tr_b16", a(buf + 2, 2), v(ar), o + 2048, tag=('rd', c))]
    return f
def b128_read(addr_lo, off):
    lo, hi = addr_lo
    def f(buf, slot, c):
        ar = lo if slot < 4 else hi
        o = (slot % 4) * SLOT + off
        return [ds_read("ds_read_b128", a(buf, 4), v(ar), o, tag=('rd', c))]
    return f

def build_main():
    chunks = []; groups = []
    marks = {}
    def mark(n): marks[n] = len(groups)
    def newchunk(*args):
        chunks.append(Chunk(*args)); return len(chunks) - 1
    TAC = lambda tt: (V_TAC + tt, V_TAC + 4 + tt)
    TS = lambda ti: (V_TS + ti, V_TS + 2 + ti)
    TH = (V_TH, V_TH + 1)
    KA = lambda i: (V_KA + i, V_KA + 4 + i)
    TA = lambda tt: (V_TA + tt, V_TA + 4 + tt)
    XB = lambda ks, ct: a(A_XB + (ks * 2 + ct) * 4, 4)

    def pair_mk(accf, Bf, first):
        def mk(fr):
            out = []
            for ct in range(2):
                for i, f in enumerate(fr):
                    d = v(accf(ct), 4)
                    C = '0' if (first and i == 0) else d
                    out.append(mfma(d, a(f, 4), Bf(i, ct), C, need=[a(x, 4) for x in fr] if (ct == 0 and i == 0) else ()))
            return out
        return mk

    def f1_chunk(st, j):
        base = accset(st) if (st < 3 or not CFG.f1mix) else V_F1H
        c = newchunk(f"F1 s{st} j{j}", S_F1, V_DVA, S_F1B + st, j * 64 * 3584)
        if st == 3 and CFG.f1mix: chunks[c].pair = V_DVB
        tis = range(2) if st < 3 else range(1)
        for ti in tis:
            for mat in range(2):
                ad = TS(ti) if st < 3 else TH
                frs = [tr_reads(ad, (ksl * 2 + mat) * 4096) for ksl in range(2)]
                accf = (lambda ct, mat=mat, ti=ti, base=base: base + ((mat * 2 + ti) * 2 + ct) * 4)
                Bf = (lambda i, ct, j=j: XB(2 * j + i, ct))
                groups.append(Group(c, frs, pair_mk(accf, Bf, j == 0)))
    if CFG.f1mix:
        n = 0
        for st in range(3):
            mark(f"F1_{st}")
            for j in range(7):
                f1_chunk(st, j); n += 1
                if n % 3 == 1: f1_chunk(3, n // 3)
        mark("F1_3")
    else:
        for st in range(4):
            mark(f"F1_{st}")
            for j in range(7): f1_chunk(st, j)
    for st in range(4):
        mark(f"Q_{st}")
        base = accset(4 + st)
        for j in range(7):
            c = newchunk(f"Q s{st} j{j}", S_WQ, V_DVB, S_QB, j * 64 * 8192 + st * 128)
            for tt in range(4):
                frs = [tr_reads(TAC(tt), ksl * 4096) for ksl in range(2)]
                accf = (lambda ct, tt=tt, base=base: base + (tt * 2 + ct) * 4)
                Bf = (lambda i, ct, j=j: XB(2 * j + i, ct))
                groups.append(Group(c, frs, pair_mk(accf, Bf, j == 0)))
    HB = lambda ks, ct: a(A_H + (ks * 2 + ct) * 4, 4)
    KR = 32 * 896
    def f2_pair(c, st, ks0, first):
        base = accset(8 + st)
        for tt in range(4):
            frs = [tr_reads(TAC(tt), ksl * 4096) for ksl in range(2)]
            accf = (lambda ct, tt=tt, base=base: base + (tt * 2 + ct) * 4)
            groups.append(Group(c, frs, pair_mk(accf, (lambda i, ct, ks0=ks0: HB(ks0 + i, ct)), first)))
    def f2_single(c, st, ks, item, first):
        base = accset(8 + st)
        for tt in range(4):
            frs = [tr_reads(TAC(tt), item * 4096)]
            accf = (lambda ct, tt=tt, base=base: base + (tt * 2 + ct) * 4)
            groups.append(Group(c, frs, pair_mk(accf, (lambda i, ct, ks=ks: HB(ks, ct)), first)))
    def f2_shared(c, kss, items, first):
        for ti in range(2):
            frs = [tr_reads(TS(ti), it * 4096) for it in items]
            accf = (lambda ct, ti=ti: accset(11) + (ti * 2 + ct) * 4)
            groups.append(Group(c, frs, pair_mk(accf, (lambda i, ct, kss=kss: HB(kss[i], ct)), first)))
    mark("F2_0")
    for i in range(3):
        c = newchunk(f"F2 s0 p{i}", S_WD, V_DVA, S_F2B + 0, 2 * i * KR); f2_pair(c, 0, 2 * i, i == 0)
    c = newchunk("F2 c3", S_WD, V_DVA, S_F2C3, 6 * KR)
    f2_single(c, 0, 6, 0, False)
    mark("F2_1")
    f2_single(c, 1, 6, 1, True)
    for i in range(3):
        c = newchunk(f"F2 s1 p{i}", S_WD, V_DVA, S_F2B + 1, 2 * i * KR); f2_pair(c, 1, 2 * i, False)
    mark("F2_2")
    for i in range(3):
        c = newchunk(f"F2 s2 p{i}", S_WD, V_DVA, S_F2B + 2, 2 * i * KR); f2_pair(c, 2, 2 * i, i == 0)
    c = newchunk("F2 c10", S_WD, V_DVA, S_F2C10, 0)
    f2_single(c, 2, 6, 0, False)
    mark("F2_3")
    f2_shared(c, [0, 1], [1, 3], True)
    c = newchunk("F2 c11", S_WD, V_DVA, S_F2C11, 2 * KR)
    f2_shared(c, [2, 3], [0, 1], False)
    f2_shared(c, [4, 5], [2, 3], False)
    c = newchunk("F2 c12", S_WD, V_DVA, S_F2C12, 0)
    f2_shared(c, [6], [0], False)
    QB = lambda ks, ct: a(A_Q + (ks * 2 + ct) * 4, 4)
    Sreg = lambda t, T, ct: V_S + 16 * (t & 1) + (ct * 2 + T) * 4
    Preg = lambda t, ct: V_P + 8 * (t & 1) + ct * 4
    Oacc = lambda dt, ct: ((dt >> 1) * 2 + ct) * 8 + (dt & 1) * 4
    def S_phase(t):
        mark(f"S_{t}")
        c = newchunk(f"K{t}", S_K, V_DVB, S_KB, t * 16384)
        for T in range(2):
            for kp in range(4):
                frs = [b128_read(KA((2 * kp + i) & 3), T * 8192 + ((2 * kp + i) >> 2) * 256) for i in range(2)]
                def mk(fr, T=T, kp=kp, t=t):
                    out = []
                    for ct in range(2):
                        for i, f in enumerate(fr):
                            d = v(Sreg(t, T, ct), 4)
                            if kp == 0 and i == 0:
                                C = '0' if t < 2 else v(V_NEGM + 4 * ct, 4)
                            else: C = d
                            out.append(mfma(d, a(f, 4), QB(2 * kp + i, ct), C, need=[a(x, 4) for x in fr] if (ct == 0 and i == 0) else ()))
                    return out
                groups.append(Group(c, frs, mk))
    def PV_phase(t):
        mark(f"PV_{t}")
        c = newchunk(f"V{t}", S_V, V_DVA, S_VB, t * 16384)
        for dp in range(8):
            frs = [tr_reads(TA((2 * dp + i) & 3), ((2 * dp + i) >> 2) * 4096) for i in range(2)]
            def mk(fr, dp=dp, t=t):
                out = []
                for i, f in enumerate(fr):
                    for ct in range(2):
                        d = v(Oacc(2 * dp + i, ct), 4)
                        C = '0' if t == 0 else d
                        out.append(mfma(d, a(f, 4), v(Preg(t, ct), 4), C, need=[a(x, 4) for x in fr] if (ct == 0 and i == 0) else ()))
                return out
            groups.append(Group(c, frs, mk))
    S_phase(0); S_phase(1)
    for t in range(1, 15):
        S_phase(t + 1); PV_phase(t - 1)
    PV_phase(14); PV_phase(15)
    OWN = lambda ks, ct: v((ks * 2 + ct) * 8, 4)
    PART = lambda ks, ct: a(A_PART + (ks * 2 + ct) * 4, 4)
    OB = lambda kk, ct: OWN(kk, ct) if kk < 8 else PART(kk - 8, ct)
    OR = 64 * 896
    for st in range(3):
        mark(f"O_{st}")
        base = 128 + 32 * (st & 1)
        for j in range(8):
            if j < 4: c = newchunk(f"O s{st} j{j}", S_WO, V_DVB, S_OOWN + st, j * OR)
            else: c = newchunk(f"O s{st} j{j}", S_WO, V_DVB, S_OPAR + st, (j - 4) * OR)
            if st == 0 and j == 4: mark("O_part")
            for tt in range(4):
                frs = [tr_reads(TAC(tt), ksl * 4096) for ksl in range(2)]
                accf = (lambda ct, tt=tt, base=base: base + (tt * 2 + ct) * 4)
                groups.append(Group(c, frs, pair_mk(accf, (lambda i, ct, j=j: OB(2 * j + i, ct)), j == 0)))
    mark("O_3")
    for j in range(4):
        c = newchunk(f"O s3 j{j}", S_WO, V_DVB, S_O3, j * OR)
        for who in range(2):
            for ti in range(2):
                ad = (V_TS + who * 4 + ti, V_TS + who * 4 + 2 + ti)
                frs = [tr_reads(ad, ksl * 4096) for ksl in range(2)]
                accf = (lambda ct, ti=ti: 160 + (ti * 2 + ct) * 4)
                groups.append(Group(c, frs, pair_mk(accf, (lambda i, ct, j=j, who=who: OB(8 * who + 2 * j + i, ct)), j == 0 and who == 0)))
    mark("END")
    return chunks, groups, marks

def prologue():
    P = []
    E = P.append
    E(salu('s_cmp_ge_u32', s(2), 256)); E(raw("s_cbranch_scc1 L_main_end", 'branch'))
    E(raw(f"s_load_dwordx16 s[{S_KA}:{S_KA+15}], s[0:1], 0"))
    E(raw(f"s_load_dwordx8 s[{S_KA+16}:{S_KA+23}], s[0:1], 64"))
    if CFG.warm_code: P += warm_code()
    E(valu('v_and_b32', v(V_LANE), 63, v(0)))
    E(valu('v_lshrrev_b32', v(V_U0), 6, v(0)))
    E(valu('v_and_b32', v(V_N16), 15, v(V_LANE)))
    E(valu('v_readfirstlane_b32', s(S_W), v(V_U0)))
    E(valu('v_lshrrev_b32', v(V_GQ), 4, v(V_LANE)))
    E(valu('v_lshrrev_b32', v(V_R8), 3, v(V_LANE)))
    E(valu('v_lshlrev_b32', v(V_L16), 4, v(V_LANE)))
    E(salu('s_and_b32', s(S_KVH), s(2), 7)); E(salu('s_lshr_b32', s(S_RB), s(2), 3))
    E(salu('s_and_b32', s(S_PAR), s(S_KVH), 1))
    E(salu('s_and_b32', s(S_RH), s(S_W), 1)); E(salu('s_lshr_b32', s(S_CH), s(S_W), 1))
    E(salu('s_lshl_b32', s(S_WLDS), s(S_W), 12))
    E(valu('v_and_b32', v(V_U1), 7, v(V_LANE)))
    E(valu('v_lshlrev_b32', v(V_U2), 4, v(V_U1)))
    E(salu('s_mov_b32', s(S_T0), 896))
    E(valu('v_mad_u32_u24', v(V_U0), v(V_R8), s(S_T0), v(V_U2)))
    E(raw("s_waitcnt lgkmcnt(0)", 'wait_raw'))
    kx, kk, kv, kwq, kwo, kwg, kwu, kwd, kws = [S_KA + o for o in (0, 2, 4, 6, 8, 12, 14, 16, 22)]
    def srd(dst, ptr, nbytes):
        E(salu('s_mov_b32', s(dst), s(ptr))); E(salu('s_mov_b32', s(dst + 1), s(ptr + 1)))
        E(salu('s_mov_b32', s(dst + 2), nbytes)); E(salu('s_mov_b32', s(dst + 3), '0x00020000'))
    srd(S_X, kx, 2048 * 896)
    E(salu('s_mul_i32', s(S_T0), s(S_RB), 57344)); E(salu('s_mul_i32', s(S_T1), s(S_W), 14336))
    E(salu('s_add_u32', s(S_T0), s(S_T0), s(S_T1))); E(salu('s_add_u32', s(S_T1), s(S_T0), 7168))
    for p in range(2):
        for i in range(7):
            E(vload('buffer_load_dwordx4', v((p * 7 + i) * 4, 4), v(V_U0), s(S_X, 4), s(S_T0 + p), i * 128, tag='x'))
    E(salu('s_cmp_eq_u32', s(S_RH), 0))
    E(salu('s_cselect_b32', s(S_F1), s(kwg), s(kwu))); E(salu('s_cselect_b32', s(S_F1 + 1), s(kwg + 1), s(kwu + 1)))
    E(salu('s_mov_b32', s(S_F1 + 2), 448 * 3584)); E(salu('s_mov_b32', s(S_F1 + 3), '0x00020000'))
    srd(S_WQ, kwq, 448 * 8192); srd(S_WD, kwd, 1792 * 896); srd(S_WO, kwo, 4096 * 896)
    srd(S_WS, kws, 2 * 256 * 57344)
    for (dst, ptr) in ((S_K, kk), (S_V, kv)):
        E(salu('s_lshl_b32', s(S_T2), s(S_KVH), 20)); E(salu('s_add_u32', s(S_T2), s(S_T2), 1536 * 512))
        E(salu('s_add_u32', s(dst), s(ptr), s(S_T2))); E(salu('s_addc_u32', s(dst + 1), s(ptr + 1), 0))
        E(salu('s_mov_b32', s(dst + 2), 512 * 512)); E(salu('s_mov_b32', s(dst + 3), '0x00020000'))
    E(valu('v_lshrrev_b32', v(V_U2), 1, v(V_R8))); E(valu('v_and_b32', v(V_U2), 3, v(V_U2)))
    E(valu('v_lshlrev_b32', v(V_U2), 1, v(V_U2))); E(valu('v_xor_b32', v(V_U2), v(V_U2), v(V_U1)))
    E(valu('v_lshlrev_b32', v(V_SC16), 4, v(V_U2)))
    P += dv_setup(V_DVA, 3584)
    E(salu('s_mul_i32', s(S_T0), s(S_KVH), 7)); E(salu('s_lshr_b32', s(S_T0), s(S_T0), 1)); E(salu('s_lshl_b32', s(S_T0), s(S_T0), 7))
    E(salu('s_mul_i32', s(S_T1), s(S_CH), 32 * 3584)); E(salu('s_add_u32', s(S_T0), s(S_T0), s(S_T1)))
    for st in range(4):
        P += sel(S_T1, S_PAR, st * 128, (3 - st) * 128)
        E(salu('s_add_u32', s(S_F1B + st), s(S_T0), s(S_T1)))
    return P

def sel(dst, cond, v0, v1):
    d = (v1 - v0) & 0xffffffff
    return [salu('s_mul_i32', s(dst), s(cond), f"0x{d:x}"), salu('s_add_u32', s(dst), s(dst), v0)]

def dv_setup(dst, stride):
    out = [salu('s_mov_b32', s(S_T2), stride),
           valu('v_mad_u32_u24', v(dst), v(V_R8), s(S_T2), v(V_SC16))]
    for j in range(1, 4):
        out.append(valu('v_add_u32', v(dst + j), j * (8 * stride - 1024), v(dst)))
    return out
def dv_setup_K(dst):
    out = [valu('v_lshrrev_b32', v(V_U0), 5, v(V_LANE)), valu('v_and_b32', v(V_U1), 31, v(V_LANE)),
           salu('s_lshl_b32', s(S_T2), s(S_RH), 3),
           valu('v_xor_b32', v(V_U1), v(V_U1), v(V_U0)),
           valu('v_xor_b32', v(V_U1), s(S_T2), v(V_U1)),
           valu('v_lshlrev_b32', v(V_U0), 9, v(V_U0))]
    for j in range(4):
        out.append(valu('v_xor_b32', v(V_U2), 2 * j, v(V_U1)))
        out.append(valu('v_lshl_add_u32', v(dst + j), v(V_U2), 4, v(V_U0)))
    return out

S_GA = {V_DVA: 68, V_DVB: 70}
S_GC = 72
_last_base = {}
def chunk_dma(c, ch):
    slot = c % NSLOT
    if CFG.gdma:
        out = []
        ga = S_GA[ch.pair]
        if _last_base.get(ch.pair) != (ch.srd, ch.soff):
            _last_base[ch.pair] = (ch.srd, ch.soff)
            out += [salu('s_add_u32', s(ga), s(ch.srd), s(ch.soff)), salu('s_addc_u32', s(ga + 1), s(ch.srd + 1), 0)]
        out += [salu('s_add_u32', 'm0', s(S_WLDS), slot * SLOT),
                salu('s_add_u32', s(S_GC), s(ga), ch.imm), salu('s_addc_u32', s(S_GC + 1), s(ga + 1), 0)]
        for j in range(4): out.append(gdma(v(ch.dv + j), s(S_GC, 2), j * 1024, tag=('dma', c)))
        return out
    out = [salu('s_add_u32', 'm0', s(S_WLDS), slot * SLOT),
           salu('s_add_u32', s(S_SOFF), s(ch.soff), ch.imm)]
    for j in range(4):
        imm = j * 1024
        out.append(dma(v(ch.dv + j), s(ch.srd, 4), s(S_SOFF), imm, tag=('dma', c)))
    return out

V_DUM = 198
def warm_code():
    return [raw("s_getpc_b64 s[92:93]", 'salu', [], [s(92, 2)]), label("L_pc_here"),
            salu('s_and_b32', s(93), s(93), '0xffff'),
            raw("s_mov_b32 s94, L_all_code_end-L_pc_here", 'salu', [], [s(94)]), salu('s_mov_b32', s(95), '0x00020000'),
            salu('s_lshr_b32', s(96), s(2), 3), salu('s_and_b32', s(96), s(96), 3), salu('s_lshl_b32', s(96), s(96), 15),
            valu('v_lshlrev_b32', v(V_U3), 7, v(0)),
            vload('buffer_load_dword', v(198), v(V_U3), s(92, 4), s(96), 0, tag='warm')]
WARM_V = {'wq': 132, 'wd': 133, 'k': 134, 'v': 135, 'wo': 199}
WARM_S = {'wq': 4, 'wd': 5, 'k': 6, 'v': 7, 'wo': 43}
def warm_weights():
    W0, W1, W2 = 88, 89, 90
    T0, T2 = 64, 65
    G = CFG.warm_gran; lg = {64: 6, 128: 7}[G]
    head = [valu('v_mov_b32', v(W2), '0x7ffffff0')]
    setup = {}; issue = {}
    def lin(key, srd, nbytes, base):
        V, T1 = WARM_V[key], WARM_S[key]
        per = -(-nbytes // G // 128)
        o = [base(T1), salu('s_mul_i32', s(T2), s(T0), per * G), salu('s_add_u32', s(T1), s(T1), s(T2)),
             valu('v_lshlrev_b32', v(V), lg, v(V_LANE)),
             valu('v_cmp_gt_u32', 'vcc', per, v(V_LANE)), nop(0), valu('v_cndmask_b32', v(V), v(W2), v(V), 'vcc')]
        setup[key] = o; issue[key] = [vload('buffer_load_dword', v(198), v(V), s(srd, 4), s(T1), 0, tag='warm')]
    def strided(key, V, T1, srd, rowbytes, stride, nwaves, colbase):
        npr = rowbytes // G; lgr = npr.bit_length() - 1
        per = 448 * npr // nwaves
        o = list(colbase)
        o += [salu('s_mul_i32', s(T2), s(T0), per),
              valu('v_add_u32', v(W0), s(T2), v(V_LANE)),
              valu('v_lshrrev_b32', v(W1), lgr, v(W0)), valu('v_and_b32', v(W0), npr - 1, v(W0)),
              salu('s_mov_b32', s(T2), stride), valu('v_lshlrev_b32', v(W0), lg, v(W0)),
              valu('v_mad_u32_u24', v(V), v(W1), s(T2), v(W0)),
              valu('v_cmp_gt_u32', 'vcc', per, v(V_LANE)), nop(0), valu('v_cndmask_b32', v(V), v(W2), v(V), 'vcc')]
        setup[key] = o; issue[key] = [vload('buffer_load_dword', v(198), v(V), s(srd, 4), s(T1), 0, tag='warm')]
    strided('f1', 91, 43, S_F1, 512, 3584, 64,
            [salu('s_mul_i32', s(43), s(S_KVH), 7), salu('s_lshr_b32', s(43), s(43), 1), salu('s_lshl_b32', s(43), s(43), 7)])
    f1 = head + [salu('s_lshl_b32', s(T0), s(S_RB), 1), salu('s_add_u32', s(T0), s(T0), s(S_CH))] + setup.pop('f1') + issue.pop('f1')
    strided('wq', WARM_V['wq'], WARM_S['wq'], S_WQ, 1024, 8192, 128, [salu('s_lshl_b32', s(WARM_S['wq']), s(S_KVH), 10)])
    lin('wd', S_WD, 224 * 896, lambda r: salu('s_mul_i32', s(r), s(S_KVH), 224 * 896))
    lin('k', S_K, 262144, lambda r: salu('s_mov_b32', s(r), 0)); lin('v', S_V, 262144, lambda r: salu('s_mov_b32', s(r), 0))
    lin('wo', S_WO, 512 * 896, lambda r: salu('s_mul_i32', s(r), s(S_KVH), 512 * 896))
    allsetup = head + [salu('s_lshl_b32', s(T0), s(S_RB), 2), salu('s_add_u32', s(T0), s(T0), s(S_W))]
    for k in ('wq', 'wd', 'k', 'v', 'wo'): allsetup += setup[k]
    return f1, allsetup, issue

def prologue2():
    P = []; E = P.append
    E(salu('s_lshl_b32', s(S_T0), s(S_KVH), 1)); E(salu('s_add_u32', s(S_T0), s(S_T0), s(S_CH))); E(salu('s_lshl_b32', s(S_T0), s(S_T0), 9))
    E(salu('s_lshl_b32', s(S_T1), s(S_RH), 18)); E(salu('s_add_u32', s(S_QB), s(S_T0), s(S_T1)))
    KR = 32 * 896
    E(salu('s_mul_i32', s(S_T0), s(S_KVH), 224 * 896))
    E(salu('s_mul_i32', s(S_T1), s(S_RH), KR))
    for st in range(3):
        P += sel(S_T2, S_CH, st * 128, (6 - st) * 128)
        E(salu('s_add_u32', s(S_F2B + st), s(S_T0), s(S_T2))); E(salu('s_add_u32', s(S_F2B + st), s(S_F2B + st), s(S_T1)))
    P += sel(S_T2, S_CH, 0, 6 * 128); P += sel(S_F2C3, S_CH, 128, 5 * 128)
    E(salu('s_cmp_eq_u32', s(S_RH), 0)); E(salu('s_cselect_b32', s(S_T2), s(S_T2), s(S_F2C3)))
    E(salu('s_add_u32', s(S_F2C3), s(S_T0), s(S_T2)))
    P += sel(S_T2, S_CH, 6 * KR + 2 * 128, 6 * KR + 4 * 128); P += sel(S_F2C10, S_CH, 384, KR + 384)
    E(salu('s_cmp_eq_u32', s(S_RH), 0)); E(salu('s_cselect_b32', s(S_T2), s(S_T2), s(S_F2C10)))
    E(salu('s_add_u32', s(S_F2C10), s(S_T0), s(S_T2)))
    E(salu('s_mul_i32', s(S_T2), s(S_W), KR)); E(salu('s_add_u32', s(S_F2C11), s(S_T0), s(S_T2))); E(salu('s_add_u32', s(S_F2C11), s(S_F2C11), 384))
    E(salu('s_add_u32', s(S_F2C12), s(S_T0), 6 * KR + 384))
    E(salu('s_lshl_b32', s(S_KB), s(S_W), 12)); E(salu('s_lshl_b32', s(S_VB), s(S_W), 7))
    E(salu('s_lshl_b32', s(S_T0), s(S_KVH), 9)); E(salu('s_lshl_b32', s(S_T1), s(S_RH), 5)); E(salu('s_add_u32', s(S_T0), s(S_T0), s(S_T1)))
    E(salu('s_lshl_b32', s(S_T1), s(S_CH), 8)); E(salu('s_add_u32', s(S_T1), s(S_T0), s(S_T1))); E(salu('s_mul_i32', s(S_T1), s(S_T1), 896))
    E(salu('s_xor_b32', s(S_T2), s(S_CH), 1)); E(salu('s_lshl_b32', s(S_T2), s(S_T2), 8)); E(salu('s_add_u32', s(S_T0), s(S_T0), s(S_T2))); E(salu('s_mul_i32', s(S_T0), s(S_T0), 896))
    for st in range(3):
        P += sel(S_T2, S_CH, st * 128, (6 - st) * 128)
        E(salu('s_add_u32', s(S_OOWN + st), s(S_T1), s(S_T2))); E(salu('s_add_u32', s(S_OPAR + st), s(S_T0), s(S_T2)))
    E(salu('s_add_u32', s(S_O3), s(S_T1), 384))
    E(salu('s_mul_i32', s(S_T0), s(2), 57344))
    E(salu('s_mul_i32', s(S_T1), s(S_RH), 28672)); E(salu('s_add_u32', s(S_PB), s(S_T0), s(S_T1)))
    E(salu('s_add_u32', s(S_GB), s(S_PB), 256 * 57344))
    for st in range(3):
        P += sel(S_CB + st, S_CH, 2 * st * 2048, (12 - 2 * st) * 2048)
    P += sel(S_CB + 3, S_CH, 6 * 2048, 7 * 2048)
    for st in range(3):
        P += sel(S_T0, S_PAR, 2 * st, 2 * (3 - st) - 1)
        E(salu('s_add_u32', s(S_T0), s(S_T0), s(S_CH))); E(salu('s_lshl_b32', s(S_HI + st), s(S_T0), 12))
    P += sel(S_T0, S_PAR, 6 * 4096, 0)
    E(salu('s_lshl_b32', s(S_T1), s(S_CH), 3)); E(salu('s_add_u32', s(S_HI + 3), s(S_T0), s(S_T1)))
    E(salu('s_mov_b32', s(S_THR), lit(65536.0)))
    E(salu('s_mov_b32', s(S_ONES), '0x3f803f80'))
    E(valu('v_bfe_u32', v(V_U0), v(V_LANE), 2, 2))
    E(valu('v_lshl_add_u32', v(V_U1), v(V_GQ), 2, v(V_U0)))
    E(valu('v_lshrrev_b32', v(V_U2), 1, v(V_U1))); E(valu('v_and_b32', v(V_U2), 3, v(V_U2)))
    E(valu('v_and_b32', v(V_U3), 3, v(V_LANE))); E(valu('v_lshlrev_b32', v(V_U3), 3, v(V_U3)))
    E(valu('v_lshl_add_u32', v(V_U3), v(V_U1), 7, v(V_U3)))
    for tt in range(4):
        E(valu('v_xor_b32', v(V_U0), tt, v(V_U2)))
        E(valu('v_lshl_add_u32', v(V_TA + tt), v(V_U0), 5, v(V_U3)))
        E(valu('v_add_u32', v(V_TA + 4 + tt), HIOFF, v(V_TA + tt)))
    E(salu('s_lshl_b32', s(S_T0), s(S_CH), 13))
    for tt in range(8):
        E(valu('v_add_u32', v(V_TAC + tt), s(S_T0), v(V_TA + tt)))
    E(salu('s_lshl_b32', s(S_T0), s(S_CH), 1))
    for ti in range(2):
        E(salu('s_add_u32', s(S_T1), s(S_T0), ti))
        E(valu('v_xor_b32', v(V_U0), s(S_T1), v(V_U2)))
        E(valu('v_lshl_add_u32', v(V_TS + ti), v(V_U0), 5, v(V_U3)))
        E(valu('v_add_u32', v(V_TS + 2 + ti), HIOFF, v(V_TS + ti)))
    E(salu('s_lshl_b32', s(S_T0), s(S_PAR), 1)); E(salu('s_add_u32', s(S_T1), s(S_T0), s(S_CH)))
    E(valu('v_xor_b32', v(V_U0), s(S_T1), v(V_U2)))
    E(valu('v_lshl_add_u32', v(V_TH), v(V_U0), 5, v(V_U3)))
    E(valu('v_add_u32', v(V_TH + 1), HIOFF, v(V_TH)))
    for i in range(4):
        E(valu('v_add_u32', v(V_U0), 4 * i, v(V_GQ))); E(valu('v_xor_b32', v(V_U0), v(V_U0), v(V_N16)))
        E(valu('v_lshlrev_b32', v(V_U0), 4, v(V_U0)))
        E(valu('v_lshl_add_u32', v(V_KA + i), v(V_N16), 9, v(V_U0)))
        E(valu('v_add_u32', v(V_KA + 4 + i), HIOFF, v(V_KA + i)))
    E(salu('s_lshl_b32', s(S_T0), s(S_RH), 11)); E(salu('s_add_u32', s(S_T0), s(S_T0), XA))
    E(valu('v_add_u32', v(V_HR), s(S_T0), v(V_L16)))
    E(salu('s_lshl_b32', s(S_T0), s(S_W), 13)); E(salu('s_add_u32', s(S_T0), s(S_T0), XA))
    E(valu('v_add_u32', v(V_XW), s(S_T0), v(V_L16)))
    E(salu('s_xor_b32', s(S_T0), s(S_W), 2)); E(salu('s_lshl_b32', s(S_T0), s(S_T0), 13)); E(salu('s_add_u32', s(S_T0), s(S_T0), XA))
    E(valu('v_add_u32', v(V_XR), s(S_T0), v(V_L16)))
    E(valu('v_mov_b32', v(V_C1), lit(C_GELU1)))
    E(salu('s_lshl_b32', s(S_T0), s(S_W), 10)); E(salu('s_add_u32', s(S_T0), s(S_T0), XA + 28672))
    E(valu('v_lshlrev_b32', v(V_U0), 6, v(V_N16))); E(valu('v_add_u32', v(V_U0), s(S_T0), v(V_U0)))
    E(valu('v_lshl_add_u32', v(V_QW), v(V_GQ), 3, v(V_U0))); E(valu('v_lshl_add_u32', v(V_QR), v(V_GQ), 4, v(V_U0)))
    return P

def layernorm(late, wl):
    P = []; E = P.append
    late = list(late); wl = list(wl)
    def drip(q, n=1):
        while q and n > 0:
            x = q.pop(0); E(x)
            if x.kind in ('dma', 'vload'): n -= 1
    ACC = 64
    for p in range(2):
        b = ACC + 4 * p
        for k in range(4): E(valu('v_mov_b32', v(b + k), 0))
        for n in range(28):
            d = p * 28 + n
            E(valu('v_dot2_f32_bf16', v(b + (n & 1)), v(d), s(S_ONES), v(b + (n & 1))))
            E(valu('v_dot2_f32_bf16', v(b + 2 + (n & 1)), v(d), v(d), v(b + 2 + (n & 1))))
            if n % 7 == 3: drip(late)
        E(valu('v_add_f32', v(b), v(b), v(b + 1))); E(valu('v_add_f32', v(b + 2), v(b + 2), v(b + 3)))
    for mods in ("quad_perm:[1,0,3,2] row_mask:0xf bank_mask:0xf", "quad_perm:[2,3,0,1] row_mask:0xf bank_mask:0xf", "row_half_mirror row_mask:0xf bank_mask:0xf"):
        for p in range(2):
            for k in (0, 2):
                r = ACC + 4 * p + k
                E(valu('v_add_f32_dpp', v(r), v(r), v(r), mods=mods))
    for p in range(2):
        b = ACC + 4 * p
        E(valu('v_mul_f32', v(b), lit(1.0 / 448), v(b)))
        E(valu('v_mul_f32', v(b + 2), lit(1.0 / 448), v(b + 2)))
        E(valu('v_fma_f32', v(b + 2), '-' + v(b), v(b), v(b + 2)))
        E(valu('v_max_f32', v(b + 2), 0, v(b + 2)))
        E(valu('v_add_f32', v(b + 2), lit(1e-5), v(b + 2)))
        E(valu('v_rsq_f32', v(b + 2), v(b + 2)))
        E(valu('v_mul_f32', v(b), v(b), v(b + 2)))
        E(valu('v_sub_f32', v(b + 1), 0, v(b)))
    E(valu('v_and_b32', v(V_U0), 7, v(V_LANE)))
    E(valu('v_and_b32', v(V_U1), 3, v(V_U0)))
    E(valu('v_lshrrev_b32', v(V_U0), 2, v(V_U0))); E(valu('v_lshlrev_b32', v(V_U0), 6, v(V_U0)))
    E(valu('v_and_b32', v(V_U2), 1, v(V_U1))); E(valu('v_lshl_add_u32', v(V_U0), v(V_U2), 5, v(V_U0)))
    E(valu('v_lshrrev_b32', v(V_U1), 1, v(V_U1))); E(valu('v_lshl_add_u32', v(V_U0), v(V_U1), 3, v(V_U0)))
    E(salu('s_mov_b32', s(S_T0), XROW)); E(valu('v_mad_u32_u24', v(V_U0), v(V_R8), s(S_T0), v(V_U0)))
    E(salu('s_mul_i32', s(S_T1), s(S_W), 16 * XROW)); E(salu('s_add_u32', s(S_T1), s(S_T1), XSTAGE))
    E(valu('v_add_u32', v(V_U0), s(S_T1), v(V_U0)))
    E(valu('v_add_u32', v(V_U1), 8 * XROW, v(V_U0)))
    E(salu('s_mov_b32', s(S_T2), '0xffff0000'))
    T = 72
    for p in range(2):
        b = ACC + 4 * p
        for i in range(7):
            d0 = (p * 7 + i) * 4
            for k in range(4):
                t = T + 2 * k
                E(valu('v_lshlrev_b32', v(t), 16, v(d0 + k))); E(valu('v_and_b32', v(t + 1), s(S_T2), v(d0 + k)))
            for k in range(4):
                t = T + 2 * k
                if CFG.pkln:
                    x = I(f"v_pk_fma_f32 v[{t}:{t+1}], v[{t}:{t+1}], v[{b+2}:{b+3}], v[{b}:{b+1}] op_sel:[0,0,1] op_sel_hi:[1,0,1]", 'valu',
                          regs(v(t, 2)) + regs(v(b, 4)), regs(v(t, 2)))
                    E(x)
                else:
                    E(valu('v_fma_f32', v(t), v(t), v(b + 2), '-' + v(b))); E(valu('v_fma_f32', v(t + 1), v(t + 1), v(b + 2), '-' + v(b)))
            for k in range(4):
                t = T + 2 * k
                E(valu('v_cvt_pk_bf16_f32', v(d0 + k), v(t), v(t + 1)))
            E(ds_write2_b64(v(V_U0 + p), v(d0, 2), v(d0 + 2, 2), 16 * i, 16 * i + 2, tag='xw'))
            drip(wl)
    drip(late, 99); drip(wl, 99)
    E(wait_lgkm_tag('xw')); E(barrier())
    E(salu('s_lshl_b32', s(S_T0), s(S_RH), 5)); E(valu('v_add_u32', v(V_U0), s(S_T0), v(V_N16)))
    E(salu('s_mov_b32', s(S_T0), XROW)); E(valu('v_lshlrev_b32', v(V_U1), 4, v(V_GQ)))
    E(valu('v_mad_u32_u24', v(V_U0), v(V_U0), s(S_T0), v(V_U1))); E(valu('v_add_u32', v(V_U0), XSTAGE, v(V_U0)))
    for ks in range(14):
        for ct in range(2):
            E(ds_read('ds_read_b128', a(A_XB + (ks * 2 + ct) * 4, 4), v(V_U0), ks * 64 + ct * 16 * XROW, tag='xb'))
    return P

def interleave(*lists):
    out = []; its = [list(l) for l in lists]
    while any(its):
        for l in its:
            if l: out.append(l.pop(0))
    return out

def geglu(st):
    base = accset(st) if (st < 3 or not CFG.f1mix) else V_F1H
    out = []
    tis = range(2) if st < 3 else range(1)
    TT = 64; HP = 80
    out.append(valu('v_add_u32', v(V_HW), s(S_HI + st), v(V_HR)))
    for ct in range(2):
        for ti in tis:
            G = base + ((0 * 2 + ti) * 2 + ct) * 4; U = base + ((1 * 2 + ti) * 2 + ct) * 4
            t = [TT + k for k in range(4)]; e = [TT + 4 + k for k in range(4)]
            for k in range(4): out.append(valu('v_mul_f32', v(t[k]), v(G + k), v(G + k)))
            for k in range(4): out.append(valu('v_fmaak_f32', v(t[k]), v(t[k]), v(V_C1), lit(C_GELU0)))
            for k in range(4): out.append(valu('v_mul_f32', v(t[k]), v(G + k), v(t[k])))
            for k in range(4): out.append(valu('v_exp_f32', v(e[k]), v(t[k])))
            for k in range(4): out.append(valu('v_mul_f32', v(t[k]), v(G + k), v(U + k)))
            for k in range(4): out.append(valu('v_add_f32', v(e[k]), '1.0', v(e[k])))
            for k in range(4): out.append(valu('v_rcp_f32', v(e[k]), v(e[k])))
            hp = HP + ct * 4 + ti * 2
            for k in range(4): out.append(valu('v_mul_f32', v(t[k]), v(t[k]), v(e[k])))
            out.append(valu('v_cvt_pk_bf16_f32', v(hp), v(t[0]), v(t[1]))); out.append(valu('v_cvt_pk_bf16_f32', v(hp + 1), v(t[2]), v(t[3])))
        if st < 3: out.append(ds_write('ds_write_b128', v(V_HW), v(HP + ct * 4, 4), ct * 1024, tag='hw'))
        else: out.append(ds_write('ds_write_b64', v(V_HW), v(HP + ct * 4, 2), ct * 1024, tag='hw'))
    return out

def qconv(st):
    base = accset(4 + st); out = []
    for pp in range(2):
        for ct in range(2):
            X0 = base + ((2 * pp) * 2 + ct) * 4; X1 = base + ((2 * pp + 1) * 2 + ct) * 4
            t = 64 + 8 * ct; h = 80 + 4 * ct
            for k in range(4): out.append(valu('v_mul_f32', v(t + k), lit(C_QS), v(X0 + k)))
            for k in range(4): out.append(valu('v_mul_f32', v(t + 4 + k), lit(C_QS), v(X1 + k)))
            for k in range(4): out.append(valu('v_cvt_pk_bf16_f32', v(h + k), v(t + 2 * k), v(t + 2 * k + 1)))
            if CFG.qlds:
                ks = 2 * st + pp
                out.append(ds_write2_b64(v(V_QW), v(h, 2), v(h + 2, 2), 0, 4, tag='qw'))
                out.append(ds_read('ds_read_b128', a(A_Q + (ks * 2 + ct) * 4, 4), v(V_QR), 0, tag='qr'))
                continue
            out.append(valu('v_permlane32_swap_b32', v(h), v(h + 2))); out.append(valu('v_permlane32_swap_b32', v(h + 1), v(h + 3)))
            out.append(nop(0))
            out.append(valu('v_permlane16_swap_b32', v(h), v(h + 2))); out.append(valu('v_permlane16_swap_b32', v(h + 1), v(h + 3)))
            ks = 2 * st + pp
            for k in range(4): out.append(valu('v_accvgpr_write_b32', a(A_Q + (ks * 2 + ct) * 4 + k), v(h + k)))
    return out

def gconv(st):
    base = accset(8 + st); out = []
    pps = range(2) if st < 3 else range(1)
    for pp in pps:
        for ct in range(2):
            if st < 3: X0 = base + ((2 * pp) * 2 + ct) * 4; X1 = base + ((2 * pp + 1) * 2 + ct) * 4
            else: X0 = base + (0 * 2 + ct) * 4; X1 = base + (1 * 2 + ct) * 4
            h = 80 + 4 * ct
            out.append(valu('v_cvt_pk_bf16_f32', v(h), v(X0), v(X0 + 1))); out.append(valu('v_cvt_pk_bf16_f32', v(h + 1), v(X0 + 2), v(X0 + 3)))
            out.append(valu('v_cvt_pk_bf16_f32', v(h + 2), v(X1), v(X1 + 1))); out.append(valu('v_cvt_pk_bf16_f32', v(h + 3), v(X1 + 2), v(X1 + 3)))
            li = st * 2 + pp
            for k in range(4): out.append(valu('v_accvgpr_write_b32', a(A_G + (li * 2 + ct) * 4 + k), v(h + k)))
    return out
def gstore(li, ct):
    st, pp = li // 2, li % 2
    return [salu('s_add_u32', s(S_T0), s(S_GB), s(S_CB + st)),
            vstore('buffer_store_dwordx4', a(A_G + (li * 2 + ct) * 4, 4), v(V_L16), s(S_WS, 4), s(S_T0), pp * 2048 + ct * 1024, (CFG.gstore_flags if CFG.gstore_flags is not None else CFG.store_flags).replace('_', ' ').strip(), tag='gst')]

def sconv(st):
    base = 128 + 32 * (st & 1); out = []
    pps = range(2) if st < 3 else range(1)
    out.append(salu('s_add_u32', s(S_T1), s(S_PB), s(S_CB + st)))
    n = 0
    for pp in pps:
        for ct in range(2):
            if st < 3: X0 = base + ((2 * pp) * 2 + ct) * 4; X1 = base + ((2 * pp + 1) * 2 + ct) * 4
            else: X0 = 160 + (0 * 2 + ct) * 4; X1 = 160 + (1 * 2 + ct) * 4
            h = 192 + 4 * (n & 1); n += 1
            out.append(valu('v_cvt_pk_bf16_f32', v(h), v(X0), v(X0 + 1))); out.append(valu('v_cvt_pk_bf16_f32', v(h + 1), v(X0 + 2), v(X0 + 3)))
            out.append(valu('v_cvt_pk_bf16_f32', v(h + 2), v(X1), v(X1 + 1))); out.append(valu('v_cvt_pk_bf16_f32', v(h + 3), v(X1 + 2), v(X1 + 3)))
            out.append(vstore('buffer_store_dwordx4', v(h, 4), v(V_L16), s(S_WS, 4), s(S_T1), pp * 2048 + ct * 1024, CFG.store_flags.replace('_', ' ').strip(), tag='sst'))
    return out

def xlane_reduce(op, reg, tmp):
    return [valu('v_mov_b32', v(tmp), v(reg)), nop(0), valu('v_permlane16_swap_b32', v(reg), v(tmp)), nop(0), valu(op, v(reg), v(reg), v(tmp)),
            valu('v_mov_b32', v(tmp), v(reg)), nop(0), valu('v_permlane32_swap_b32', v(reg), v(tmp)), nop(0), valu(op, v(reg), v(reg), v(tmp))]

def Sreg(t, T, ct): return V_S + 16 * (t & 1) + (ct * 2 + T) * 4
def Preg(t, ct): return V_P + 8 * (t & 1) + ct * 4

def softmax_first():
    out = []
    for ct in range(2):
        r = [Sreg(0, 0, ct) + k for k in range(4)] + [Sreg(0, 1, ct) + k for k in range(4)]
        m = V_T + ct
        out.append(valu('v_max3_f32', v(m), v(r[0]), v(r[1]), v(r[2])))
        out.append(valu('v_max3_f32', v(m), v(m), v(r[3]), v(r[4])))
        out.append(valu('v_max3_f32', v(m), v(m), v(r[5]), v(r[6])))
        out.append(valu('v_max_f32', v(m), v(m), v(r[7])))
    a0 = xlane_reduce('v_max_f32', V_T, V_T + 2); a1 = xlane_reduce('v_max_f32', V_T + 1, V_T + 3)
    out += interleave(a0, a1)
    for ct in range(2):
        for k in range(4): out.append(valu('v_sub_f32', v(V_NEGM + 4 * ct + k), 0, v(V_T + ct)))
    for ct in range(2):
        for T in range(2):
            for k in range(4): out.append(valu('v_add_f32', v(Sreg(0, T, ct) + k), v(V_NEGM + 4 * ct), v(Sreg(0, T, ct) + k)))
    out.append(valu('v_mov_b32', v(V_L0), 0)); out.append(valu('v_mov_b32', v(V_L1), 0))
    return out
def s1_fix():
    out = []
    for ct in range(2):
        for T in range(2):
            for k in range(4): out.append(valu('v_add_f32', v(Sreg(1, T, ct) + k), v(V_NEGM + 4 * ct), v(Sreg(1, T, ct) + k)))
    return out
def softmax_body(t):
    out = []
    for ct in range(2):
        ts = V_TS0 + ct
        for T in range(2):
            S = Sreg(t, T, ct); e = V_T + 4 * T
            for k in range(4): out.append(valu('v_exp_f32', v(e + k), v(S + k)))
            if T == 0:
                out.append(valu('v_add_f32', v(ts), v(e), v(e + 1)))
            else:
                out.append(valu('v_add_f32', v(ts), v(ts), v(e)));
            out.append(valu('v_cvt_pk_bf16_f32', v(Preg(t, ct) + 2 * T), v(e), v(e + 1)))
            if T == 1: out.append(valu('v_add_f32', v(ts), v(ts), v(e + 1)))
            out.append(valu('v_add_f32', v(ts), v(ts), v(e + 2)))
            out.append(valu('v_cvt_pk_bf16_f32', v(Preg(t, ct) + 2 * T + 1), v(e + 2), v(e + 3)))
            out.append(valu('v_add_f32', v(ts), v(ts), v(e + 3)))
    return out
def softmax_check(t):
    return [valu('v_max_f32', v(V_TM), v(V_TS0), v(V_TS1)),
            valu('v_cmp_lt_f32', 'vcc', s(S_THR), v(V_TM)),
            raw(f"s_cbranch_vccnz L_slow_{t}", 'branch', ['vcc']),
            label(f"L_back_{t}"),
            valu('v_add_f32', v(V_L0), v(V_L0), v(V_TS0)), valu('v_add_f32', v(V_L1), v(V_L1), v(V_TS1))]

def slow_path(par):
    t = par
    o = []
    o.append(label(f"L_slowsub_{par}"))
    o.append(nop(15))
    for ct in range(2):
        r = [Sreg(t, 0, ct) + k for k in range(4)] + [Sreg(t, 1, ct) + k for k in range(4)]
        m = V_T + ct
        o += [valu('v_max3_f32', v(m), v(r[0]), v(r[1]), v(r[2])), valu('v_max3_f32', v(m), v(m), v(r[3]), v(r[4])),
              valu('v_max3_f32', v(m), v(m), v(r[5]), v(r[6])), valu('v_max_f32', v(m), v(m), v(r[7]))]
        o += xlane_reduce('v_max_f32', m, V_T + 2)
        o.append(valu('v_max_f32', v(m), 0, v(m)))
    for ct in range(2):
        d = V_T + ct; f = V_T + 2 + ct
        o.append(valu('v_sub_f32', v(f), 0, v(d))); o.append(valu('v_exp_f32', v(f), v(f)))
        for k in range(4): o.append(valu('v_sub_f32', v(V_NEGM + 4 * ct + k), v(V_NEGM + 4 * ct + k), v(d)))
        for tt in (t, t + 1):
            for T in range(2):
                for k in range(4): o.append(valu('v_sub_f32', v(Sreg(tt, T, ct) + k), v(Sreg(tt, T, ct) + k), v(d)))
        o.append(valu('v_mul_f32', v(V_L0 + ct), v(V_L0 + ct), v(f)))
        for dt in range(16):
            b = ((dt >> 1) * 2 + ct) * 8 + (dt & 1) * 4
            for k in range(4): o.append(valu('v_mul_f32', v(b + k), v(b + k), v(f)))
    o += softmax_body(t)
    o.append(nop(3))
    o.append(raw(f"s_setpc_b64 s[{S_RET}:{S_RET+1}]", 'branch', [s(S_RET, 2)]))
    return o

def onorm(i):
    ct = i & 1; b = 8 * i; rl = V_RL0 + ct; t = V_T
    out = []
    for k in range(8): out.append(valu('v_mul_f32', v(t + k), v(b + k), v(rl)))
    for k in range(4): out.append(valu('v_cvt_pk_bf16_f32', v(b + k), v(t + 2 * k), v(t + 2 * k + 1)))
    if i < 8: out.append(ds_write('ds_write_b128', v(V_XW), v(b, 4), i * 1024, tag='ow1'))
    return out

def units(x):
    if x.kind == 'trans': return 2
    if x.kind == 'nop': return x.tag + 1
    if x.kind == 'label': return 0
    return 1

def build():
    _last_base.clear()
    chunks, groups, marks = build_main()
    nchunks = len(chunks)
    fcount = 0
    for g in groups:
        g.bufs = []
        for _ in g.frs:
            g.bufs.append(A_FB + 4 * (fcount % CFG.nb)); fcount += 1
        g.f0 = fcount - len(g.frs)
        g.mf = g.mk(g.bufs)
    merged = set()
    if CFG.merge_waits:
        gi = 0
        while gi + 1 < len(groups):
            g, h = groups[gi], groups[gi + 1]
            nm = chunks[g.chunk].name
            on = (CFG.merge_waits == 'all') or (CFG.merge_waits == 'att' and nm[0] in 'KV') or (CFG.merge_waits == 'atto' and nm[0] in 'KVO') or (CFG.merge_waits == 'k' and nm[0] == 'K')
            if on:
                for b in h.bufs: g.mf[0].extra_need |= set(regs(a(b, 4)))
                merged.add(gi)
            gi += 2
    mstart = []; m = 0
    for g in groups:
        mstart.append(m); m += len(g.mf)
    mstart.append(m); NM = m
    M = {k: mstart[i] for k, i in marks.items()}
    chunk_first_m = {}
    for gi, g in enumerate(groups): chunk_first_m.setdefault(g.chunk, mstart[gi])
    chunk_first_m[nchunks] = NM
    def first_chunk(name):
        return min(i for i, c in enumerate(chunks) if c.name.startswith(name))
    forced = {first_chunk("O s0 j0"), first_chunk("O s0 j2"), first_chunk("O s0 j4"), first_chunk("O s0 j6")}
    bars = []; b = 0
    while b < nchunks:
        bars.append(b)
        b += 1 if (CFG.bar_every == 1 or (b + 1) in forced) else 2
    barset = set(bars)
    nextbar = {bb: (bars[i + 1] if i + 1 < len(bars) else nchunks) for i, bb in enumerate(bars)}
    def bar_at_or_after(c):
        return min(bb for bb in bars if bb >= c)

    side = []
    seq = [0]
    def spread(ins, m0, m1, early=True):
        n = len(ins)
        for k, x in enumerate(ins):
            side.append([m0 + (m1 - m0) * k / max(n, 1), seq[0], m0 if early else None, x]); seq[0] += 1
    def at(ins, m0):
        for x in ins:
            side.append([m0, seq[0], None, x]); seq[0] += 1
    LAT = 6
    if CFG.f1mix:
        spread(geglu(0), M["F1_1"] + LAT, M["F1_2"] - 2)
        spread(geglu(1), M["F1_2"] + LAT, M["Q_0"] - 2)
        spread(geglu(2), M["Q_0"] + LAT, M["Q_0"] + 76)
        spread(geglu(3), M["Q_0"] + 78, M["Q_1"] - 6)
    else:
        spread(geglu(0), M["F1_1"] + LAT, M["F1_2"] + 20)
        spread(geglu(1), M["F1_2"] + 24, M["F1_3"] + 10)
        spread(geglu(2), M["F1_3"] + 14, M["Q_0"] + 50)
        spread(geglu(3), M["Q_0"] + 54, M["Q_1"] - 8)
    pre_dma = {}
    pre_dma[first_chunk("Q ")] = dv_setup(V_DVB, 8192)
    pre_dma[first_chunk("F2")] = dv_setup(V_DVA, 896)
    pre_dma[first_chunk("K0")] = dv_setup_K(V_DVB)
    pre_dma[first_chunk("V0")] = dv_setup(V_DVA, 512)
    pre_dma[first_chunk("O ")] = dv_setup(V_DVB, 896)
    qn = ["Q_1", "Q_2", "Q_3", "F2_0"]; qe = ["Q_2", "Q_3", "F2_0", "F2_1"]
    for st in range(4):
        spread(qconv(st), M[qn[st]] + LAT, M[qe[st]] - 8)
    hc = bar_at_or_after(first_chunk("Q s2 j0"))
    fence = {hc: ['hw']}; fence_count = {'hw': 8, 'ow1': 8, 'ow2': 8, 'pr1': 8}
    q3 = first_chunk("Q s3 j0")
    for i in range(7):
        m0 = chunk_first_m[q3 + i // 2 + 1] + 1
        at([ds_read('ds_read_b128', a(A_H + (i * 2 + ct) * 4, 4), v(V_HR), i * 4096 + ct * 1024, tag='hr') for ct in range(2)], m0 + 2 * (i & 1))
    spread(gconv(0), M["F2_1"] + LAT, M["F2_2"] - 8)
    spread(gconv(1), M["F2_2"] + LAT, M["F2_3"] - 8)
    spread(gconv(2), M["F2_3"] + LAT, M["S_0"] + 8)
    spread(gconv(3), M["S_0"] + 12, M["S_1"] - 2)
    spread(softmax_first() + softmax_body(0), M["S_1"] + LAT, M["S_2"] - 2)
    at([valu('v_add_f32', v(V_L0), v(V_L0), v(V_TS0)), valu('v_add_f32', v(V_L1), v(V_L1), v(V_TS1))], M["S_2"] - 1)
    for t in range(1, 16):
        if t < 15: m0, m1 = M[f"S_{t+1}"], (M[f"S_{t+2}"] if t < 14 else M["PV_14"])
        else: m0, m1 = M["PV_14"], M["PV_15"]
        body = softmax_body(t)
        if t == 1: body = s1_fix() + body
        spread(body, m0 + (LAT if t == 1 else 1), m1 - 3)
        at(softmax_check(t), m1 - 1)
    k = 0
    for li in range(7):
        for ct in range(2):
            t = 1 + k
            at(gstore(li, ct), M[f"PV_{t-1}"] + 8); k += 1
    fin = interleave(xlane_reduce('v_add_f32', V_L0, V_T), xlane_reduce('v_add_f32', V_L1, V_T + 1))
    fin += [valu('v_rcp_f32', v(V_RL0), v(V_L0)), valu('v_rcp_f32', v(V_RL1), v(V_L1))]
    spread(fin, M["PV_15"], M["PV_15"] + 10, early=False)
    allnorm = []
    for ks in range(8): allnorm += onorm(2 * ks) + onorm(2 * ks + 1)
    spread(allnorm, M["PV_15"] + 12, M["O_0"] + 28, early=False)
    oj2, oj4, oj6 = first_chunk("O s0 j2"), first_chunk("O s0 j4"), first_chunk("O s0 j6")
    fence[oj2] = ['ow1']; fence[oj4] = ['pr1']; fence[oj6] = ['ow2']
    after_bar = {}
    after_bar[oj2] = [ds_read('ds_read_b128', a(A_PART + i * 4, 4), v(V_XR), i * 1024, tag='pr1') for i in range(8)]
    after_bar[oj4] = [ds_write('ds_write_b128', v(V_XW), v(8 * i, 4), (i - 8) * 1024, tag='ow2') for i in range(8, 16)]
    after_bar[oj6] = [ds_read('ds_read_b128', a(A_PART + i * 4, 4), v(V_XR), (i - 8) * 1024, tag='pr2') for i in range(8, 16)]
    o3 = [salu('s_lshl_b32', s(S_T0), s(S_CH), 13), salu('s_xor_b32', s(S_T2), s(S_T0), 8192)]
    for k in range(4): o3.append(valu('v_add_u32', v(V_TS + 4 + k), s(S_T2), v(V_TS + k)))
    for k in range(4): o3.append(valu('v_add_u32', v(V_TS + k), s(S_T0), v(V_TS + k)))
    spread(o3, M["O_1"] + 8, M["O_1"] + 30, early=False)
    spread(sconv(0), M["O_1"] + LAT, M["O_1"] + 60)
    spread(sconv(1), M["O_2"] + LAT, M["O_2"] + 60)
    spread(sconv(2), M["O_3"] + LAT, M["O_3"] + 40)
    tail = sconv(3)

    if CFG.warm_w:
        w_f1, w_setup, w_issue = warm_weights()
        for item in CFG.warm_main.split('+'):
            if not item: continue
            k, where, off = item.split(':')
            at(w_issue[k], M[where] + int(off))
    STAMP = ["F1_0", "Q_0", "F2_0", "S_0", "S_2", "PV_14", "O_0"]
    if CFG.stamps == 'pro': STAMP = ["F1_0", "F1_1", "F1_2", "F1_3"]
    if CFG.stamps == 'p2': STAMP = ["F1_0"]
    if CFG.stamps == 'f1': STAMP = ["F1_0", "F1_1", "F1_2", "F1_3", "Q_0", "Q_1", "Q_2"]
    if CFG.stamps == 'o': STAMP = ["PV_14", "PV_15", "O_0", "O_part", "O_1", "O_2", "O_3"]
    if CFG.stamps == 'q': STAMP = ["Q_0", "Q_1", "Q_2", "Q_3", "F2_0", "F2_2", "S_0"]
    if CFG.stamps == 'a': STAMP = ["S_2", "PV_0", "S_3", "PV_1", "S_4", "S_8", "S_12"]
    sbase = 3 if CFG.stamps == 'pro' else (6 if CFG.stamps == 'p2' else 0)
    if CFG.stamps:
        for k0, nm in enumerate(STAMP):
            k = k0 + sbase
            at([raw(f"s_memrealtime s[{74+2*k}:{75+2*k}]", 'salu')], M[nm])
    side.sort(key=lambda x: (x[0], x[1]))

    P = prologue()
    if CFG.warm_first and CFG.warm_w:
        xl = [x for x in P if x.kind == 'vload' and x.tag == 'x']
        P = [x for x in P if not (x.kind == 'vload' and x.tag == 'x')]
        k = [i for i, x in enumerate(P) if x.text.startswith('s_mov_b32 s11,')][0] + 1
        P = P[:k] + (w_f1 + xl if CFG.warm_first == 1 else xl + w_f1) + P[k:]
    if CFG.stamps:
        P.insert(2, raw("s_memrealtime s[88:89]", 'salu'))
        P.append(raw("s_mov_b32 s67, s88", 'salu'))
    pro_v = []
    if CFG.stamps == 'p2': P.append(raw("s_memrealtime s[74:75]", 'salu'))
    wc = []
    P += wc
    if CFG.warm_w: P += w_setup
    P += prologue2()
    late = chunk_dma(0, chunks[0]) + chunk_dma(1, chunks[1])
    wl_b = chunk_dma(2, chunks[2]) + chunk_dma(3, chunks[3])
    if CFG.stamps == 'p2': P.append(raw("s_memrealtime s[76:77]", 'salu'))
    if CFG.stamps == 'p2': P.append(raw("s_memrealtime s[78:79]", 'salu'))
    LN = layernorm(late, wl_b)
    if CFG.stamps == 'p2':
        kb = [i for i, x in enumerate(LN) if x.kind == 'barrier'][0]
        LN.insert(kb, raw("s_memrealtime s[84:85]", 'salu'))
        kd = [i for i, x in enumerate(LN) if x.text.startswith('v_add_f32_dpp')][0]
        LN.insert(kd, raw("s_memrealtime s[82:83]", 'salu'))
        LN.insert(10, raw("s_memrealtime s[80:81]", 'salu'))
    if CFG.stamps == 'pro':
        LN.insert(8, raw("s_memrealtime s[76:77]", 'salu'))
        LN.insert(0, raw("s_memrealtime s[74:75]", 'salu'))
        kb = [i for i, x in enumerate(LN) if x.kind == 'barrier'][0]
        LN.insert(kb, raw("s_memrealtime s[78:79]", 'salu'))
    P += LN

    for gi, g in enumerate(groups):
        g.reads = []
        for fi, fr in enumerate(g.frs):
            g.reads += fr(g.bufs[fi], g.chunk % NSLOT, g.chunk)
    st8 = dict(opened=-1, issued=3, rg=0, ri=0, sp=0, prevbar=None)
    dq = []
    xq = []
    gap = [0]
    def emit(x):
        P.append(x); gap[0] += units(x)
    def open_bar(c, mi):
        while dq: emit(dq.pop(0)[1])
        if c in fence:
            for tg in fence[c]:
                have = sum(1 for x in P if x.tag == tg); want = fence_count[tg]
                assert have == want, (tg, have, want)
            P.append(wait_lgkm_tag(fence[c]))
        cover = list(range(c, nextbar[c]))
        P.append(wait_vm_tag([('dma', cc) for cc in cover])); gap[0] += 1
        emit(barrier())
        st8['opened'] = nextbar[c] - 1
        pb = st8['prevbar']
        lim = 5 if pb is None else pb + NSLOT - 1
        st8['prevbar'] = c
        todo = []
        while st8['issued'] < min(lim, nchunks - 1):
            n = st8['issued'] + 1
            if n in pre_dma: todo += pre_dma[n]
            todo += chunk_dma(n, chunks[n]); st8['issued'] = n
        nd = sum(1 for x in todo if x.kind == 'dma')
        if nd:
            L = max(4, chunk_first_m[nextbar[c]] - chunk_first_m[c] - 2)
            step = L / nd
            k = 0; pend = []
            for x in todo:
                if x.kind == 'dma':
                    pos = mi + 1 + k * step
                    for j, y in enumerate(pend): dq.append([pos - step * (len(pend) - j) / (len(pend) + 1) if k > 0 else mi, y])
                    pend = []
                    dq.append([pos, x]); k += 1
                else: pend.append(x)
        if c in after_bar: xq.extend(after_bar[c])
    def can_read(gidx, cur):
        g = groups[gidx]
        prevf = g.f0 + len(g.frs) - 1 - CFG.nb
        return prevf < 0 or groups[cur].f0 > prevf
    def issue_reads(cur, maxn, mi):
        n = 0
        while st8['rg'] < len(groups) and n < maxn and can_read(st8['rg'], cur):
            g = groups[st8['rg']]
            if g.chunk > st8['opened']:
                assert g.chunk in barset, g.chunk
                open_bar(g.chunk, mi)
            r = g.reads[st8['ri']]
            emit(r); st8['ri'] += 1; n += 1
            if st8['ri'] == len(g.reads): st8['rg'] += 1; st8['ri'] = 0
        return n
    while st8['rg'] < len(groups) and groups[st8['rg']].f0 + len(groups[st8['rg']].frs) <= CFG.nb: issue_reads(0, 1, 0)
    mi = 0
    for gi, g in enumerate(groups):
        while st8['rg'] <= gi:
            if not issue_reads(gi, 8, mi): raise Exception("cannot issue reads")
        for k, mf in enumerate(g.mf):
            P.append(mf); gap[0] = 0
            last = (k == len(g.mf) - 1)
            if last and gi not in merged: gap[0] += 1
            cur = gi + 1 if (last and gi + 1 < len(groups)) else gi
            nrd = len(groups[min(st8['rg'], len(groups) - 1)].reads)
            issue_reads(cur, 1 if len(g.mf) >= 4 else 2, mi)
            while xq and gap[0] < 2: emit(xq.pop(0))
            while dq and dq[0][0] <= mi: emit(dq.pop(0)[1])
            while st8['sp'] < len(side):
                dl, _, early, x = side[st8['sp']]
                if dl <= mi or (CFG.fill and early is not None and early <= mi and gap[0] + units(x) <= 2):
                    emit(x); st8['sp'] += 1
                else: break
            mi += 1
    while xq: emit(xq.pop(0))
    while st8['sp'] < len(side):
        P.append(side[st8['sp']][3]); st8['sp'] += 1
    P += tail
    if CFG.stamps: P.append(raw("s_memrealtime s[44:45]", 'salu'))
    P.append(raw("s_waitcnt vmcnt(0)", 'wait_raw'))
    if CFG.stamps:
        P.append(raw("s_memrealtime s[46:47]", 'salu'))
        P.append(raw("s_waitcnt lgkmcnt(0)", 'wait_raw'))
        P.append(salu('s_lshl_b32', s(S_T0), s(2), 2)); P.append(salu('s_add_u32', s(S_T0), s(S_T0), s(S_W))); P.append(salu('s_lshl_b32', s(S_T0), s(S_T0), 6))
        P.append(salu('s_add_u32', s(S_T0), s(S_T0), 30 << 20)); P.append(salu('s_mov_b32', s(S_WS + 2), 40 << 20))
        order = [67] + [74 + 2 * k for k in range(7)] + [44, 46, 46, 46]
        for k, r in enumerate(order): P.append(valu('v_mov_b32', v(k), s(r)))
        P.append(valu('v_mov_b32', v(16), 0))
        P.append(raw("s_mov_b64 exec, 1", 'salu'))
        for k in range(3): P.append(vstore('buffer_store_dwordx4', v(4 * k, 4), v(16), s(S_WS, 4), s(S_T0), 16 * k))
        P.append(raw("s_waitcnt vmcnt(0)", 'wait_raw'))
        if CFG.dbgstamps is not False:
            P.append(raw("s_load_dwordx2 s[4:5], s[0:1], 80", 'salu')); P.append(raw("s_waitcnt lgkmcnt(0)", 'wait_raw'))
            P.append(salu('s_mov_b32', s(6), 256)); P.append(salu('s_mov_b32', s(7), '0x00020000'))
            for k in range(1, 11): P.append(valu('v_sub_u32', v(k), v(k), v(0)))
            P.append(salu('s_lshl_b32', s(S_T0), s(2), 2)); P.append(salu('s_add_u32', s(S_T0), s(S_T0), s(S_W)))
            P.append(salu('s_cmp_eq_u32', s(S_T0), int(CFG.dbgstamps))); P.append(raw("s_cbranch_scc0 L_main_end", 'branch'))
            for k in range(3): P.append(vstore('buffer_store_dwordx4', v(4 * k, 4), v(16), s(4, 4), '0', 16 * k))
            P.append(raw("s_waitcnt vmcnt(0)", 'wait_raw'))
    P.append(label("L_main_end")); P.append(raw("s_endpgm", 'branch'))
    for t in range(1, 16):
        P.append(label(f"L_slow_{t}"))
        P.append(raw(f"s_call_b64 s[{S_RET}:{S_RET+1}], L_slowsub_{t & 1}", 'branch', [], [s(S_RET, 2)]))
        P.append(raw(f"s_branch L_back_{t}", 'branch'))
    P += slow_path(0); P += slow_path(1)
    P.append(label("L_main_code_end"))
    if CFG.stampop != 's_memrealtime':
        for x in P:
            if x.text.startswith('s_memrealtime'): x.text = x.text.replace('s_memrealtime', CFG.stampop)
    Pf, stats = finalize(P)
    if 'nodma' in CFG.abl: Pf = [x for x in Pf if x.kind != 'dma']
    if 'nobar' in CFG.abl: Pf = [x for x in Pf if x.kind != 'barrier']
    if 'novm' in CFG.abl: Pf = [x for x in Pf if not (x.kind == 'wait' and 'vmcnt' in x.text)]
    if 'nolgkm' in CFG.abl:
        k0 = [i for i, x in enumerate(Pf) if x.kind == 'mfma'][0]
        Pf = [x for i, x in enumerate(Pf) if i < k0 or not (x.kind == 'wait' and 'lgkm' in x.text)]
    if 'nostore' in CFG.abl: Pf = [x for x in Pf if not (x.kind == 'vstore' and x.tag in ('gst', 'sst'))]
    return Pf, stats, M, NM

def reduce_kernel():
    P = []; E = P.append
    E(salu('s_cmp_ge_u32', s(2), 448)); E(raw("s_cbranch_scc1 L_red_end", 'branch'))
    if CFG.stamps: E(raw("s_memrealtime s[34:35]", 'salu'))
    E(raw("s_load_dwordx2 s[4:5], s[0:1], 0")); E(raw("s_load_dwordx2 s[6:7], s[0:1], 72")); E(raw("s_load_dwordx2 s[8:9], s[0:1], 88"))
    E(valu('v_and_b32', v(1), 63, v(0))); E(valu('v_lshrrev_b32', v(2), 6, v(0)))
    E(valu('v_lshlrev_b32', v(3), 4, v(1)))
    E(valu('v_readfirstlane_b32', s(20), v(2)))
    E(salu('s_lshl_b32', s(21), s(2), 2)); E(salu('s_add_u32', s(21), s(21), s(20)))
    E(salu('s_mul_hi_u32', s(22), s(21), (2 ** 32 + 55) // 56))
    E(salu('s_mul_i32', s(23), s(22), 56)); E(salu('s_sub_u32', s(23), s(21), s(23)))
    E(raw("s_waitcnt lgkmcnt(0)", 'wait_raw'))
    E(salu('s_mov_b32', s(12), s(8))); E(salu('s_mov_b32', s(13), s(9))); E(salu('s_mov_b32', s(14), 2 * 256 * 57344)); E(salu('s_mov_b32', s(15), '0x00020000'))
    E(salu('s_mul_i32', s(24), s(22), 8 * 57344)); E(salu('s_lshl_b32', s(25), s(23), 10)); E(salu('s_add_u32', s(24), s(24), s(25)))
    for which in range(2):
        for k in range(8):
            E(salu('s_add_u32', s(26), s(24), which * 256 * 57344 + k * 57344))
            E(vload('buffer_load_dwordx4', v(16 + (which * 8 + k) * 4, 4), v(3), s(12, 4), s(26), 0, tag='p'))
    E(salu('s_and_b32', s(27), s(23), 1))
    E(salu('s_lshr_b32', s(28), s(23), 1))
    E(salu('s_cmp_ge_u32', s(28), 14)); E(salu('s_cselect_b32', s(29), 1, 0))
    E(salu('s_mul_i32', s(30), s(29), 14)); E(salu('s_sub_u32', s(28), s(28), s(30)))
    E(salu('s_lshl_b32', s(30), s(22), 6)); E(salu('s_lshl_b32', s(31), s(29), 5)); E(salu('s_add_u32', s(30), s(30), s(31)))
    E(salu('s_lshl_b32', s(31), s(27), 4)); E(salu('s_add_u32', s(30), s(30), s(31)))
    E(salu('s_mul_i32', s(30), s(30), 896)); E(salu('s_lshl_b32', s(31), s(28), 6)); E(salu('s_add_u32', s(30), s(30), s(31)))
    E(valu('v_and_b32', v(4), 15, v(1))); E(valu('v_lshrrev_b32', v(5), 4, v(1)))
    E(salu('s_mov_b32', s(32), 896)); E(valu('v_lshlrev_b32', v(5), 4, v(5))); E(valu('v_mad_u32_u24', v(4), v(4), s(32), v(5)))
    E(salu('s_mov_b32', s(16), s(4))); E(salu('s_mov_b32', s(17), s(5))); E(salu('s_mov_b32', s(18), 2048 * 896)); E(salu('s_mov_b32', s(19), '0x00020000'))
    E(vload('buffer_load_dwordx4', v(8, 4), v(4), s(16, 4), s(30), 0, tag='x'))
    E(salu('s_mov_b32', s(33), '0xffff0000'))
    for which in range(2):
        acc = 80 + 8 * which
        for k in range(8):
            src = 16 + (which * 8 + k) * 4
            for d in range(4):
                E(valu('v_lshlrev_b32', v(96), 16, v(src + d))); E(valu('v_and_b32', v(97), s(33), v(src + d)))
                if k == 0:
                    E(valu('v_mov_b32', v(acc + 2 * d), v(96))); E(valu('v_mov_b32', v(acc + 2 * d + 1), v(97)))
                else:
                    E(valu('v_add_f32', v(acc + 2 * d), v(acc + 2 * d), v(96))); E(valu('v_add_f32', v(acc + 2 * d + 1), v(acc + 2 * d + 1), v(97)))
    for k in range(8): E(valu('v_mul_f32', v(100 + k), lit(-math.log2(math.e)), v(88 + k)))
    for k in range(8): E(valu('v_exp_f32', v(100 + k), v(100 + k)))
    for k in range(8): E(valu('v_add_f32', v(100 + k), '1.0', v(100 + k)))
    for k in range(8): E(valu('v_rcp_f32', v(100 + k), v(100 + k)))
    for k in range(8): E(valu('v_mul_f32', v(88 + k), v(88 + k), v(100 + k)))
    for k in range(8): E(valu('v_mul_f32', v(80 + k), v(80 + k), v(88 + k)))
    for k in range(4): E(valu('v_cvt_pk_bf16_f32', v(108 + k), v(80 + 2 * k), v(81 + 2 * k)))
    E(valu('v_permlane32_swap_b32', v(108), v(110))); E(valu('v_permlane32_swap_b32', v(109), v(111)))
    E(valu('v_permlane16_swap_b32', v(108), v(110))); E(valu('v_permlane16_swap_b32', v(109), v(111)))
    for d in range(4):
        E(valu('v_lshlrev_b32', v(80 + 2 * d), 16, v(108 + d))); E(valu('v_and_b32', v(81 + 2 * d), s(33), v(108 + d)))
        E(valu('v_lshlrev_b32', v(88 + 2 * d), 16, v(8 + d))); E(valu('v_and_b32', v(89 + 2 * d), s(33), v(8 + d)))
    for k in range(8): E(valu('v_add_f32', v(80 + k), v(80 + k), v(88 + k)))
    for k in range(4): E(valu('v_cvt_pk_bf16_f32', v(108 + k), v(80 + 2 * k), v(81 + 2 * k)))
    E(salu('s_mov_b32', s(16), s(6))); E(salu('s_mov_b32', s(17), s(7)))
    E(vstore('buffer_store_dwordx4', v(108, 4), v(4), s(16, 4), s(30), 0))
    E(raw("s_waitcnt vmcnt(0)", 'wait_raw'))
    if CFG.stamps:
        E(raw("s_memrealtime s[36:37]", 'salu')); E(raw("s_waitcnt lgkmcnt(0)", 'wait_raw'))
        E(salu('s_lshl_b32', s(21), s(21), 3)); E(salu('s_add_u32', s(21), s(21), 31 << 20)); E(salu('s_mov_b32', s(14), 40 << 20))
        E(valu('v_mov_b32', v(8), s(34))); E(valu('v_mov_b32', v(9), s(36))); E(valu('v_mov_b32', v(10), 0))
        E(raw("s_mov_b64 exec, 1", 'salu'))
        E(vstore('buffer_store_dwordx2', v(8, 2), v(10), s(12, 4), s(21), 0)); E(raw("s_waitcnt vmcnt(0)", 'wait_raw'))
        if CFG.dbgstamps is not False:
            E(salu('s_cmp_eq_u32', s(2), 447)); E(raw("s_cbranch_scc0 L_red_end", 'branch'))
            E(salu('s_cmp_eq_u32', s(20), 3)); E(raw("s_cbranch_scc0 L_red_end", 'branch'))
            E(raw("s_load_dwordx2 s[4:5], s[0:1], 80", 'salu')); E(raw("s_waitcnt lgkmcnt(0)", 'wait_raw'))
            E(salu('s_mov_b32', s(6), 256)); E(salu('s_mov_b32', s(7), '0x00020000'))
            E(salu('s_mov_b32', s(21), (30 << 20) + int(CFG.dbgstamps) * 64))
            for k in range(3): E(vload('buffer_load_dwordx4', v(16 + 4 * k, 4), v(10), s(12, 4), s(21), 16 * k, 'sc1'))
            E(raw("s_waitcnt vmcnt(0)", 'wait_raw'))
            E(valu('v_mov_b32', v(26), v(8))); E(valu('v_mov_b32', v(27), v(9)))
            for k in range(17, 28): E(valu('v_sub_u32', v(k), v(k), v(16)))
            for k in range(3): E(vstore('buffer_store_dwordx4', v(16 + 4 * k, 4), v(10), s(4, 4), '0', 16 * k))
            E(raw("s_waitcnt vmcnt(0)", 'wait_raw'))
    E(label("L_red_end")); E(raw("s_endpgm", 'branch'))
    Pf, _ = finalize(P)
    return Pf

HEADER = """; Kernarg layout (96 bytes, ptrs only, base s[0:1]):
; Generated by gen/gen.py (hand-written generator).  Two launches:
;  1. fused_main_kernel: workgroup = (64 rows, kv head): LayerNorm, GEGLU FFN slice, q projection, attention, output projection
;     -> bf16 partial sums of s and g in d_ws
; @launch kernel=fused_main_kernel grid=(256,1,1) block=(256,1,1) lds=163840
; @launch kernel=fused_reduce_kernel grid=(448,1,1) block=(256,1,1) lds=0
.amdgcn_target "amdgcn-amd-amdhsa--gfx950"
.text
"""
def kd(name, nv, acc, ns):
    return f""".section .rodata,"a"
.p2align 6
.amdhsa_kernel {name}
  .amdhsa_next_free_vgpr {nv}
  .amdhsa_next_free_sgpr {ns}
  .amdhsa_accum_offset {acc}
  .amdhsa_group_segment_fixed_size 0
  .amdhsa_kernarg_size 96
  .amdhsa_user_sgpr_count 2
  .amdhsa_user_sgpr_kernarg_segment_ptr 1
  .amdhsa_system_sgpr_workgroup_id_x 1
  .amdhsa_float_denorm_mode_32 3
.end_amdhsa_kernel
"""
def generate():
    Pm, stats, M, NM = build()
    Pr = reduce_kernel()
    t = HEADER
    t += f".globl {MAIN}\n.p2align 8\n.type {MAIN},@function\n{MAIN}:\n" + text(Pm) + "\n"
    t += f".globl {RED}\n.p2align 8\n.type {RED},@function\n{RED}:\n" + text(Pr) + "\nL_all_code_end:\n"
    t += kd(MAIN, 512, 256, 102) + kd(RED, 112, 112, 40)
    return t, Pm, stats, M, NM

if __name__ == "__main__":
    for arg in sys.argv[2:]:
        k, val = arg.split("=")
        setattr(CFG, k, {"True": True, "False": False}.get(val, int(val) if val.lstrip('-').isdigit() else val))
    t, Pm, stats, M, NM = generate()
    out = sys.argv[1] if len(sys.argv) > 1 else f"cdna_kernels/{KNAME}.s"
    open(out, "w").write(t)
    from collections import Counter
    cn = Counter(i.kind for i in Pm)
    print("instrs:", len(Pm), dict(cn)); print(stats, "NM", NM)
```

```python
import sys, math
from asmlib import *

KNAME = "recurrent_scan__sliding_block_cached__glu_gated_geglu__prompt"
MAIN = "fused_main_kernel"
RED = "fused_reduce_kernel"

class Cfg:
    poll_sleep = 1
    single_name = True
    fused = True
    spin = 200000
    dbgstamps = False
    merge_waits = 'all'
    qlds = False
    f1mix = False
    warm_first = 2
    warm_pro = 'f1'
    warm_main = 'wq:F1_2:2+wd:Q_2:2+k:F2_0:2+v:F2_0:9+wo:S_8:2'
    pro_order = 1
    warm_gran = 128
    warm_early = 2
    bar_every = 2
    fill = True
    pkln = True
    warm_code = True
    warm_w = True
    code_bytes = 72 * 1024
    gdma = True
    dma_gap = 4
    abl = ''
    stampop = 's_memrealtime'
    stamps = False
    store_flags = "sc1"
    gstore_flags = None
    debug = None
    nb = 12
CFG = Cfg()

SLOT = 16384; NSLOT = 8; XA = 131072; XSTAGE = 98304; LDS_BYTES = 163840
XROW = 912
AHEAD = 4

S_X, S_F1, S_WQ, S_WD, S_K, S_V, S_WO, S_WS = 4, 8, 12, 16, 20, 24, 28, 32
S_WG, S_WU = 56, 60
S_KVH, S_RB, S_W, S_CH, S_RH, S_PAR, S_WLDS, S_SOFF = 36, 37, 38, 39, 40, 41, 42, 43
S_F1B = 44
S_QB = 48
S_F2B = 49
S_F2C3, S_F2C10, S_F2C11, S_F2C12 = 52, 53, 54, 55
S_KB, S_VB = 56, 57
S_OOWN = 58
S_OPAR = 61
S_KA = 64
S_O3 = 88
S_PB = 89
S_CB = 90
S_HI = 94
S_T0, S_T1, S_T2 = 98, 99, 100
S_THR = 101
S_ONES = 3
S_RET = 64
S_GB = 66

V_S = 128; V_P = 160; V_NEGM = 176; V_T = 184
V_L0, V_L1, V_TS0, V_TS1, V_TM, V_C1 = 192, 193, 194, 195, 196, 197
V_TAC = 200; V_TS = 208; V_TH = 212; V_KA = 216; V_TA = 224
V_DVA = 232; V_DVB = 236
V_L16, V_HW, V_HR, V_R8, V_SC16, V_XW, V_XR = 240, 241, 242, 243, 244, 245, 246
V_RL0, V_RL1 = 247, 248
V_F1H = 128
V_QW, V_QR = 92, 93
V_LANE, V_N16, V_GQ = 249, 250, 251
V_U0, V_U1, V_U2, V_U3 = 252, 253, 254, 255
HIOFF = 65536
SETS = [0, 32, 96]
def accset(gstep): return SETS[gstep % 3]
A_XB = 0; A_H = 0; A_FB = 112; A_Q = 192; A_G = 56; A_PART = 192

C_GELU0 = -2.0 * math.sqrt(2.0 / math.pi) * math.log2(math.e)
C_GELU1 = C_GELU0 * 0.044715
C_QS = math.log2(math.e) / 16.0
import struct
def f2u(x): return struct.unpack("<I", struct.pack("<f", x))[0]
def lit(x): return f"0x{f2u(x):08x}"

class Group:
    def __init__(self, chunk, frs, mk):
        self.chunk = chunk; self.frs = frs; self.mk = mk
class Chunk:
    def __init__(self, name, srd, dv, soff, imm):
        self.name = name; self.srd = srd; self.dv = dv; self.soff = soff; self.imm = imm; self.pair = dv

def tr_reads(addr_lo, off):
    lo, hi = addr_lo
    def f(buf, slot, c):
        ar = lo if slot < 4 else hi
        o = (slot % 4) * SLOT + off
        return [ds_read("ds_read_b64_tr_b16", a(buf, 2), v(ar), o, tag=('rd', c)),
                ds_read("ds_read_b64_tr_b16", a(buf + 2, 2), v(ar), o + 2048, tag=('rd', c))]
    return f
def b128_read(addr_lo, off):
    lo, hi = addr_lo
    def f(buf, slot, c):
        ar = lo if slot < 4 else hi
        o = (slot % 4) * SLOT + off
        return [ds_read("ds_read_b128", a(buf, 4), v(ar), o, tag=('rd', c))]
    return f

def build_main():
    chunks = []; groups = []
    marks = {}
    def mark(n): marks[n] = len(groups)
    def newchunk(*args):
        chunks.append(Chunk(*args)); return len(chunks) - 1
    TAC = lambda tt: (V_TAC + tt, V_TAC + 4 + tt)
    TS = lambda ti: (V_TS + ti, V_TS + 2 + ti)
    TH = (V_TH, V_TH + 1)
    KA = lambda i: (V_KA + i, V_KA + 4 + i)
    TA = lambda tt: (V_TA + tt, V_TA + 4 + tt)
    XB = lambda ks, ct: a(A_XB + (ks * 2 + ct) * 4, 4)

    def pair_mk(accf, Bf, first):
        def mk(fr):
            out = []
            for ct in range(2):
                for i, f in enumerate(fr):
                    d = v(accf(ct), 4)
                    C = '0' if (first and i == 0) else d
                    out.append(mfma(d, a(f, 4), Bf(i, ct), C, need=[a(x, 4) for x in fr] if (ct == 0 and i == 0) else ()))
            return out
        return mk

    def f1_chunk(st, j):
        base = accset(st) if (st < 3 or not CFG.f1mix) else V_F1H
        c = newchunk(f"F1 s{st} j{j}", S_F1, V_DVA, S_F1B + st, j * 64 * 3584)
        if st == 3 and CFG.f1mix: chunks[c].pair = V_DVB
        tis = range(2) if st < 3 else range(1)
        for ti in tis:
            for mat in range(2):
                ad = TS(ti) if st < 3 else TH
                frs = [tr_reads(ad, (ksl * 2 + mat) * 4096) for ksl in range(2)]
                accf = (lambda ct, mat=mat, ti=ti, base=base: base + ((mat * 2 + ti) * 2 + ct) * 4)
                Bf = (lambda i, ct, j=j: XB(2 * j + i, ct))
                groups.append(Group(c, frs, pair_mk(accf, Bf, j == 0)))
    if CFG.f1mix:
        n = 0
        for st in range(3):
            mark(f"F1_{st}")
            for j in range(7):
                f1_chunk(st, j); n += 1
                if n % 3 == 1: f1_chunk(3, n // 3)
        mark("F1_3")
    else:
        for st in range(4):
            mark(f"F1_{st}")
            for j in range(7): f1_chunk(st, j)
    for st in range(4):
        mark(f"Q_{st}")
        base = accset(4 + st)
        for j in range(7):
            c = newchunk(f"Q s{st} j{j}", S_WQ, V_DVB, S_QB, j * 64 * 8192 + st * 128)
            for tt in range(4):
                frs = [tr_reads(TAC(tt), ksl * 4096) for ksl in range(2)]
                accf = (lambda ct, tt=tt, base=base: base + (tt * 2 + ct) * 4)
                Bf = (lambda i, ct, j=j: XB(2 * j + i, ct))
                groups.append(Group(c, frs, pair_mk(accf, Bf, j == 0)))
    HB = lambda ks, ct: a(A_H + (ks * 2 + ct) * 4, 4)
    KR = 32 * 896
    def f2_pair(c, st, ks0, first):
        base = accset(8 + st)
        for tt in range(4):
            frs = [tr_reads(TAC(tt), ksl * 4096) for ksl in range(2)]
            accf = (lambda ct, tt=tt, base=base: base + (tt * 2 + ct) * 4)
            groups.append(Group(c, frs, pair_mk(accf, (lambda i, ct, ks0=ks0: HB(ks0 + i, ct)), first)))
    def f2_single(c, st, ks, item, first):
        base = accset(8 + st)
        for tt in range(4):
            frs = [tr_reads(TAC(tt), item * 4096)]
            accf = (lambda ct, tt=tt, base=base: base + (tt * 2 + ct) * 4)
            groups.append(Group(c, frs, pair_mk(accf, (lambda i, ct, ks=ks: HB(ks, ct)), first)))
    def f2_shared(c, kss, items, first):
        for ti in range(2):
            frs = [tr_reads(TS(ti), it * 4096) for it in items]
            accf = (lambda ct, ti=ti: accset(11) + (ti * 2 + ct) * 4)
            groups.append(Group(c, frs, pair_mk(accf, (lambda i, ct, kss=kss: HB(kss[i], ct)), first)))
    mark("F2_0")
    for i in range(3):
        c = newchunk(f"F2 s0 p{i}", S_WD, V_DVA, S_F2B + 0, 2 * i * KR); f2_pair(c, 0, 2 * i, i == 0)
    c = newchunk("F2 c3", S_WD, V_DVA, S_F2C3, 6 * KR)
    f2_single(c, 0, 6, 0, False)
    mark("F2_1")
    f2_single(c, 1, 6, 1, True)
    for i in range(3):
        c = newchunk(f"F2 s1 p{i}", S_WD, V_DVA, S_F2B + 1, 2 * i * KR); f2_pair(c, 1, 2 * i, False)
    mark("F2_2")
    for i in range(3):
        c = newchunk(f"F2 s2 p{i}", S_WD, V_DVA, S_F2B + 2, 2 * i * KR); f2_pair(c, 2, 2 * i, i == 0)
    c = newchunk("F2 c10", S_WD, V_DVA, S_F2C10, 0)
    f2_single(c, 2, 6, 0, False)
    mark("F2_3")
    f2_shared(c, [0, 1], [1, 3], True)
    c = newchunk("F2 c11", S_WD, V_DVA, S_F2C11, 2 * KR)
    f2_shared(c, [2, 3], [0, 1], False)
    f2_shared(c, [4, 5], [2, 3], False)
    c = newchunk("F2 c12", S_WD, V_DVA, S_F2C12, 0)
    f2_shared(c, [6], [0], False)
    QB = lambda ks, ct: a(A_Q + (ks * 2 + ct) * 4, 4)
    Sreg = lambda t, T, ct: V_S + 16 * (t & 1) + (ct * 2 + T) * 4
    Preg = lambda t, ct: V_P + 8 * (t & 1) + ct * 4
    Oacc = lambda dt, ct: ((dt >> 1) * 2 + ct) * 8 + (dt & 1) * 4
    def S_phase(t):
        mark(f"S_{t}")
        c = newchunk(f"K{t}", S_K, V_DVB, S_KB, t * 16384)
        for T in range(2):
            for kp in range(4):
                frs = [b128_read(KA((2 * kp + i) & 3), T * 8192 + ((2 * kp + i) >> 2) * 256) for i in range(2)]
                def mk(fr, T=T, kp=kp, t=t):
                    out = []
                    for ct in range(2):
                        for i, f in enumerate(fr):
                            d = v(Sreg(t, T, ct), 4)
                            if kp == 0 and i == 0:
                                C = '0' if t < 2 else v(V_NEGM + 4 * ct, 4)
                            else: C = d
                            out.append(mfma(d, a(f, 4), QB(2 * kp + i, ct), C, need=[a(x, 4) for x in fr] if (ct == 0 and i == 0) else ()))
                    return out
                groups.append(Group(c, frs, mk))
    def PV_phase(t):
        mark(f"PV_{t}")
        c = newchunk(f"V{t}", S_V, V_DVA, S_VB, t * 16384)
        for dp in range(8):
            frs = [tr_reads(TA((2 * dp + i) & 3), ((2 * dp + i) >> 2) * 4096) for i in range(2)]
            def mk(fr, dp=dp, t=t):
                out = []
                for i, f in enumerate(fr):
                    for ct in range(2):
                        d = v(Oacc(2 * dp + i, ct), 4)
                        C = '0' if t == 0 else d
                        out.append(mfma(d, a(f, 4), v(Preg(t, ct), 4), C, need=[a(x, 4) for x in fr] if (ct == 0 and i == 0) else ()))
                return out
            groups.append(Group(c, frs, mk))
    S_phase(0); S_phase(1)
    for t in range(1, 15):
        S_phase(t + 1); PV_phase(t - 1)
    PV_phase(14); PV_phase(15)
    OWN = lambda ks, ct: v((ks * 2 + ct) * 8, 4)
    PART = lambda ks, ct: a(A_PART + (ks * 2 + ct) * 4, 4)
    OB = lambda kk, ct: OWN(kk, ct) if kk < 8 else PART(kk - 8, ct)
    OR = 64 * 896
    for st in range(3):
        mark(f"O_{st}")
        base = 128 + 32 * (st & 1)
        for j in range(8):
            if j < 4: c = newchunk(f"O s{st} j{j}", S_WO, V_DVB, S_OOWN + st, j * OR)
            else: c = newchunk(f"O s{st} j{j}", S_WO, V_DVB, S_OPAR + st, (j - 4) * OR)
            if st == 0 and j == 4: mark("O_part")
            for tt in range(4):
                frs = [tr_reads(TAC(tt), ksl * 4096) for ksl in range(2)]
                accf = (lambda ct, tt=tt, base=base: base + (tt * 2 + ct) * 4)
                groups.append(Group(c, frs, pair_mk(accf, (lambda i, ct, j=j: OB(2 * j + i, ct)), j == 0)))
    mark("O_3")
    for j in range(4):
        c = newchunk(f"O s3 j{j}", S_WO, V_DVB, S_O3, j * OR)
        for who in range(2):
            for ti in range(2):
                ad = (V_TS + who * 4 + ti, V_TS + who * 4 + 2 + ti)
                frs = [tr_reads(ad, ksl * 4096) for ksl in range(2)]
                accf = (lambda ct, ti=ti: 160 + (ti * 2 + ct) * 4)
                groups.append(Group(c, frs, pair_mk(accf, (lambda i, ct, j=j, who=who: OB(8 * who + 2 * j + i, ct)), j == 0 and who == 0)))
    mark("END")
    return chunks, groups, marks

def prologue():
    P = []
    E = P.append
    E(salu('s_cmp_ge_u32', s(2), 256)); E(raw("s_cbranch_scc1 L_main_end", 'branch'))
    E(raw(f"s_load_dwordx16 s[{S_KA}:{S_KA+15}], s[0:1], 0"))
    E(raw(f"s_load_dwordx8 s[{S_KA+16}:{S_KA+23}], s[0:1], 64"))
    if CFG.warm_code: P += warm_code()
    E(valu('v_and_b32', v(V_LANE), 63, v(0)))
    E(valu('v_lshrrev_b32', v(V_U0), 6, v(0)))
    E(valu('v_and_b32', v(V_N16), 15, v(V_LANE)))
    E(valu('v_readfirstlane_b32', s(S_W), v(V_U0)))
    E(valu('v_lshrrev_b32', v(V_GQ), 4, v(V_LANE)))
    E(valu('v_lshrrev_b32', v(V_R8), 3, v(V_LANE)))
    E(valu('v_lshlrev_b32', v(V_L16), 4, v(V_LANE)))
    E(salu('s_and_b32', s(S_KVH), s(2), 7)); E(salu('s_lshr_b32', s(S_RB), s(2), 3))
    E(salu('s_and_b32', s(S_PAR), s(S_KVH), 1))
    E(salu('s_and_b32', s(S_RH), s(S_W), 1)); E(salu('s_lshr_b32', s(S_CH), s(S_W), 1))
    E(salu('s_lshl_b32', s(S_WLDS), s(S_W), 12))
    E(valu('v_and_b32', v(V_U1), 7, v(V_LANE)))
    E(valu('v_lshlrev_b32', v(V_U2), 4, v(V_U1)))
    E(salu('s_mov_b32', s(S_T0), 896))
    E(valu('v_mad_u32_u24', v(V_U0), v(V_R8), s(S_T0), v(V_U2)))
    E(raw("s_waitcnt lgkmcnt(0)", 'wait_raw'))
    kx, kk, kv, kwq, kwo, kwg, kwu, kwd, kws = [S_KA + o for o in (0, 2, 4, 6, 8, 12, 14, 16, 22)]
    def srd(dst, ptr, nbytes):
        E(salu('s_mov_b32', s(dst), s(ptr))); E(salu('s_mov_b32', s(dst + 1), s(ptr + 1)))
        E(salu('s_mov_b32', s(dst + 2), nbytes)); E(salu('s_mov_b32', s(dst + 3), '0x00020000'))
    srd(S_X, kx, 2048 * 896)
    E(salu('s_mul_i32', s(S_T0), s(S_RB), 57344)); E(salu('s_mul_i32', s(S_T1), s(S_W), 14336))
    E(salu('s_add_u32', s(S_T0), s(S_T0), s(S_T1))); E(salu('s_add_u32', s(S_T1), s(S_T0), 7168))
    for p in range(2):
        for i in range(7):
            E(vload('buffer_load_dwordx4', v((p * 7 + i) * 4, 4), v(V_U0), s(S_X, 4), s(S_T0 + p), i * 128, tag='x'))
    E(salu('s_cmp_eq_u32', s(S_RH), 0))
    E(salu('s_cselect_b32', s(S_F1), s(kwg), s(kwu))); E(salu('s_cselect_b32', s(S_F1 + 1), s(kwg + 1), s(kwu + 1)))
    E(salu('s_mov_b32', s(S_F1 + 2), 448 * 3584)); E(salu('s_mov_b32', s(S_F1 + 3), '0x00020000'))
    srd(S_WQ, kwq, 448 * 8192); srd(S_WD, kwd, 1792 * 896); srd(S_WO, kwo, 4096 * 896)
    srd(S_WS, kws, 2 * 256 * 57344 + 256 * 128)
    for (dst, ptr) in ((S_K, kk), (S_V, kv)):
        E(salu('s_lshl_b32', s(S_T2), s(S_KVH), 20)); E(salu('s_add_u32', s(S_T2), s(S_T2), 1536 * 512))
        E(salu('s_add_u32', s(dst), s(ptr), s(S_T2))); E(salu('s_addc_u32', s(dst + 1), s(ptr + 1), 0))
        E(salu('s_mov_b32', s(dst + 2), 512 * 512)); E(salu('s_mov_b32', s(dst + 3), '0x00020000'))
    E(valu('v_lshrrev_b32', v(V_U2), 1, v(V_R8))); E(valu('v_and_b32', v(V_U2), 3, v(V_U2)))
    E(valu('v_lshlrev_b32', v(V_U2), 1, v(V_U2))); E(valu('v_xor_b32', v(V_U2), v(V_U2), v(V_U1)))
    E(valu('v_lshlrev_b32', v(V_SC16), 4, v(V_U2)))
    P += dv_setup(V_DVA, 3584)
    E(salu('s_mul_i32', s(S_T0), s(S_KVH), 7)); E(salu('s_lshr_b32', s(S_T0), s(S_T0), 1)); E(salu('s_lshl_b32', s(S_T0), s(S_T0), 7))
    E(salu('s_mul_i32', s(S_T1), s(S_CH), 32 * 3584)); E(salu('s_add_u32', s(S_T0), s(S_T0), s(S_T1)))
    for st in range(4):
        P += sel(S_T1, S_PAR, st * 128, (3 - st) * 128)
        E(salu('s_add_u32', s(S_F1B + st), s(S_T0), s(S_T1)))
    return P

def sel(dst, cond, v0, v1):
    d = (v1 - v0) & 0xffffffff
    return [salu('s_mul_i32', s(dst), s(cond), f"0x{d:x}"), salu('s_add_u32', s(dst), s(dst), v0)]

def dv_setup(dst, stride):
    out = [salu('s_mov_b32', s(S_T2), stride),
           valu('v_mad_u32_u24', v(dst), v(V_R8), s(S_T2), v(V_SC16))]
    for j in range(1, 4):
        out.append(valu('v_add_u32', v(dst + j), j * (8 * stride - 1024), v(dst)))
    return out
def dv_setup_K(dst):
    out = [valu('v_lshrrev_b32', v(V_U0), 5, v(V_LANE)), valu('v_and_b32', v(V_U1), 31, v(V_LANE)),
           salu('s_lshl_b32', s(S_T2), s(S_RH), 3),
           valu('v_xor_b32', v(V_U1), v(V_U1), v(V_U0)),
           valu('v_xor_b32', v(V_U1), s(S_T2), v(V_U1)),
           valu('v_lshlrev_b32', v(V_U0), 9, v(V_U0))]
    for j in range(4):
        out.append(valu('v_xor_b32', v(V_U2), 2 * j, v(V_U1)))
        out.append(valu('v_lshl_add_u32', v(dst + j), v(V_U2), 4, v(V_U0)))
    return out

S_GA = {V_DVA: 68, V_DVB: 70}
S_GC = 72
_last_base = {}
def chunk_dma(c, ch):
    slot = c % NSLOT
    if CFG.gdma:
        out = []
        ga = S_GA[ch.pair]
        if _last_base.get(ch.pair) != (ch.srd, ch.soff):
            _last_base[ch.pair] = (ch.srd, ch.soff)
            out += [salu('s_add_u32', s(ga), s(ch.srd), s(ch.soff)), salu('s_addc_u32', s(ga + 1), s(ch.srd + 1), 0)]
        out += [salu('s_add_u32', 'm0', s(S_WLDS), slot * SLOT),
                salu('s_add_u32', s(S_GC), s(ga), ch.imm), salu('s_addc_u32', s(S_GC + 1), s(ga + 1), 0)]
        for j in range(4): out.append(gdma(v(ch.dv + j), s(S_GC, 2), j * 1024, tag=('dma', c)))
        return out
    out = [salu('s_add_u32', 'm0', s(S_WLDS), slot * SLOT),
           salu('s_add_u32', s(S_SOFF), s(ch.soff), ch.imm)]
    for j in range(4):
        imm = j * 1024
        out.append(dma(v(ch.dv + j), s(ch.srd, 4), s(S_SOFF), imm, tag=('dma', c)))
    return out

V_DUM = 198
def warm_code():
    return [raw("s_getpc_b64 s[92:93]", 'salu', [], [s(92, 2)]), label("L_pc_here"),
            salu('s_and_b32', s(93), s(93), '0xffff'),
            raw("s_mov_b32 s94, L_all_code_end-L_pc_here", 'salu', [], [s(94)]), salu('s_mov_b32', s(95), '0x00020000'),
            salu('s_lshr_b32', s(96), s(2), 3), salu('s_and_b32', s(96), s(96), 3), salu('s_lshl_b32', s(96), s(96), 15),
            valu('v_lshlrev_b32', v(V_U3), 7, v(0)),
            vload('buffer_load_dword', v(198), v(V_U3), s(92, 4), s(96), 0, tag='warm')]
WARM_V = {'wq': 132, 'wd': 133, 'k': 134, 'v': 135, 'wo': 199}
WARM_S = {'wq': 4, 'wd': 5, 'k': 6, 'v': 7, 'wo': 43}
def warm_weights():
    W0, W1, W2 = 88, 89, 90
    T0, T2 = 64, 65
    G = CFG.warm_gran; lg = {64: 6, 128: 7}[G]
    head = [valu('v_mov_b32', v(W2), '0x7ffffff0')]
    setup = {}; issue = {}
    def lin(key, srd, nbytes, base):
        V, T1 = WARM_V[key], WARM_S[key]
        per = -(-nbytes // G // 128)
        o = [base(T1), salu('s_mul_i32', s(T2), s(T0), per * G), salu('s_add_u32', s(T1), s(T1), s(T2)),
             valu('v_lshlrev_b32', v(V), lg, v(V_LANE)),
             valu('v_cmp_gt_u32', 'vcc', per, v(V_LANE)), nop(0), valu('v_cndmask_b32', v(V), v(W2), v(V), 'vcc')]
        setup[key] = o; issue[key] = [vload('buffer_load_dword', v(198), v(V), s(srd, 4), s(T1), 0, tag='warm')]
    def strided(key, V, T1, srd, rowbytes, stride, nwaves, colbase):
        npr = rowbytes // G; lgr = npr.bit_length() - 1
        per = 448 * npr // nwaves
        o = list(colbase)
        o += [salu('s_mul_i32', s(T2), s(T0), per),
              valu('v_add_u32', v(W0), s(T2), v(V_LANE)),
              valu('v_lshrrev_b32', v(W1), lgr, v(W0)), valu('v_and_b32', v(W0), npr - 1, v(W0)),
              salu('s_mov_b32', s(T2), stride), valu('v_lshlrev_b32', v(W0), lg, v(W0)),
              valu('v_mad_u32_u24', v(V), v(W1), s(T2), v(W0)),
              valu('v_cmp_gt_u32', 'vcc', per, v(V_LANE)), nop(0), valu('v_cndmask_b32', v(V), v(W2), v(V), 'vcc')]
        setup[key] = o; issue[key] = [vload('buffer_load_dword', v(198), v(V), s(srd, 4), s(T1), 0, tag='warm')]
    strided('f1', 91, 43, S_F1, 512, 3584, 64,
            [salu('s_mul_i32', s(43), s(S_KVH), 7), salu('s_lshr_b32', s(43), s(43), 1), salu('s_lshl_b32', s(43), s(43), 7)])
    f1 = head + [salu('s_lshl_b32', s(T0), s(S_RB), 1), salu('s_add_u32', s(T0), s(T0), s(S_CH))] + setup.pop('f1') + issue.pop('f1')
    strided('wq', WARM_V['wq'], WARM_S['wq'], S_WQ, 1024, 8192, 128, [salu('s_lshl_b32', s(WARM_S['wq']), s(S_KVH), 10)])
    lin('wd', S_WD, 224 * 896, lambda r: salu('s_mul_i32', s(r), s(S_KVH), 224 * 896))
    lin('k', S_K, 262144, lambda r: salu('s_mov_b32', s(r), 0)); lin('v', S_V, 262144, lambda r: salu('s_mov_b32', s(r), 0))
    lin('wo', S_WO, 512 * 896, lambda r: salu('s_mul_i32', s(r), s(S_KVH), 512 * 896))
    allsetup = head + [salu('s_lshl_b32', s(T0), s(S_RB), 2), salu('s_add_u32', s(T0), s(T0), s(S_W))]
    for k in ('wq', 'wd', 'k', 'v', 'wo'): allsetup += setup[k]
    return f1, allsetup, issue

def prologue2():
    P = []; E = P.append
    E(salu('s_lshl_b32', s(S_T0), s(S_KVH), 1)); E(salu('s_add_u32', s(S_T0), s(S_T0), s(S_CH))); E(salu('s_lshl_b32', s(S_T0), s(S_T0), 9))
    E(salu('s_lshl_b32', s(S_T1), s(S_RH), 18)); E(salu('s_add_u32', s(S_QB), s(S_T0), s(S_T1)))
    KR = 32 * 896
    E(salu('s_mul_i32', s(S_T0), s(S_KVH), 224 * 896))
    E(salu('s_mul_i32', s(S_T1), s(S_RH), KR))
    for st in range(3):
        P += sel(S_T2, S_CH, st * 128, (6 - st) * 128)
        E(salu('s_add_u32', s(S_F2B + st), s(S_T0), s(S_T2))); E(salu('s_add_u32', s(S_F2B + st), s(S_F2B + st), s(S_T1)))
    P += sel(S_T2, S_CH, 0, 6 * 128); P += sel(S_F2C3, S_CH, 128, 5 * 128)
    E(salu('s_cmp_eq_u32', s(S_RH), 0)); E(salu('s_cselect_b32', s(S_T2), s(S_T2), s(S_F2C3)))
    E(salu('s_add_u32', s(S_F2C3), s(S_T0), s(S_T2)))
    P += sel(S_T2, S_CH, 6 * KR + 2 * 128, 6 * KR + 4 * 128); P += sel(S_F2C10, S_CH, 384, KR + 384)
    E(salu('s_cmp_eq_u32', s(S_RH), 0)); E(salu('s_cselect_b32', s(S_T2), s(S_T2), s(S_F2C10)))
    E(salu('s_add_u32', s(S_F2C10), s(S_T0), s(S_T2)))
    E(salu('s_mul_i32', s(S_T2), s(S_W), KR)); E(salu('s_add_u32', s(S_F2C11), s(S_T0), s(S_T2))); E(salu('s_add_u32', s(S_F2C11), s(S_F2C11), 384))
    E(salu('s_add_u32', s(S_F2C12), s(S_T0), 6 * KR + 384))
    E(salu('s_lshl_b32', s(S_KB), s(S_W), 12)); E(salu('s_lshl_b32', s(S_VB), s(S_W), 7))
    E(salu('s_lshl_b32', s(S_T0), s(S_KVH), 9)); E(salu('s_lshl_b32', s(S_T1), s(S_RH), 5)); E(salu('s_add_u32', s(S_T0), s(S_T0), s(S_T1)))
    E(salu('s_lshl_b32', s(S_T1), s(S_CH), 8)); E(salu('s_add_u32', s(S_T1), s(S_T0), s(S_T1))); E(salu('s_mul_i32', s(S_T1), s(S_T1), 896))
    E(salu('s_xor_b32', s(S_T2), s(S_CH), 1)); E(salu('s_lshl_b32', s(S_T2), s(S_T2), 8)); E(salu('s_add_u32', s(S_T0), s(S_T0), s(S_T2))); E(salu('s_mul_i32', s(S_T0), s(S_T0), 896))
    for st in range(3):
        P += sel(S_T2, S_CH, st * 128, (6 - st) * 128)
        E(salu('s_add_u32', s(S_OOWN + st), s(S_T1), s(S_T2))); E(salu('s_add_u32', s(S_OPAR + st), s(S_T0), s(S_T2)))
    E(salu('s_add_u32', s(S_O3), s(S_T1), 384))
    E(salu('s_mul_i32', s(S_T0), s(2), 57344))
    E(salu('s_mul_i32', s(S_T1), s(S_RH), 28672)); E(salu('s_add_u32', s(S_PB), s(S_T0), s(S_T1)))
    E(salu('s_add_u32', s(S_GB), s(S_PB), 256 * 57344))
    for st in range(3):
        P += sel(S_CB + st, S_CH, 2 * st * 2048, (12 - 2 * st) * 2048)
    P += sel(S_CB + 3, S_CH, 6 * 2048, 7 * 2048)
    for st in range(3):
        P += sel(S_T0, S_PAR, 2 * st, 2 * (3 - st) - 1)
        E(salu('s_add_u32', s(S_T0), s(S_T0), s(S_CH))); E(salu('s_lshl_b32', s(S_HI + st), s(S_T0), 12))
    P += sel(S_T0, S_PAR, 6 * 4096, 0)
    E(salu('s_lshl_b32', s(S_T1), s(S_CH), 3)); E(salu('s_add_u32', s(S_HI + 3), s(S_T0), s(S_T1)))
    E(salu('s_mov_b32', s(S_THR), lit(65536.0)))
    E(salu('s_mov_b32', s(S_ONES), '0x3f803f80'))
    E(valu('v_bfe_u32', v(V_U0), v(V_LANE), 2, 2))
    E(valu('v_lshl_add_u32', v(V_U1), v(V_GQ), 2, v(V_U0)))
    E(valu('v_lshrrev_b32', v(V_U2), 1, v(V_U1))); E(valu('v_and_b32', v(V_U2), 3, v(V_U2)))
    E(valu('v_and_b32', v(V_U3), 3, v(V_LANE))); E(valu('v_lshlrev_b32', v(V_U3), 3, v(V_U3)))
    E(valu('v_lshl_add_u32', v(V_U3), v(V_U1), 7, v(V_U3)))
    for tt in range(4):
        E(valu('v_xor_b32', v(V_U0), tt, v(V_U2)))
        E(valu('v_lshl_add_u32', v(V_TA + tt), v(V_U0), 5, v(V_U3)))
        E(valu('v_add_u32', v(V_TA + 4 + tt), HIOFF, v(V_TA + tt)))
    E(salu('s_lshl_b32', s(S_T0), s(S_CH), 13))
    for tt in range(8):
        E(valu('v_add_u32', v(V_TAC + tt), s(S_T0), v(V_TA + tt)))
    E(salu('s_lshl_b32', s(S_T0), s(S_CH), 1))
    for ti in range(2):
        E(salu('s_add_u32', s(S_T1), s(S_T0), ti))
        E(valu('v_xor_b32', v(V_U0), s(S_T1), v(V_U2)))
        E(valu('v_lshl_add_u32', v(V_TS + ti), v(V_U0), 5, v(V_U3)))
        E(valu('v_add_u32', v(V_TS + 2 + ti), HIOFF, v(V_TS + ti)))
    E(salu('s_lshl_b32', s(S_T0), s(S_PAR), 1)); E(salu('s_add_u32', s(S_T1), s(S_T0), s(S_CH)))
    E(valu('v_xor_b32', v(V_U0), s(S_T1), v(V_U2)))
    E(valu('v_lshl_add_u32', v(V_TH), v(V_U0), 5, v(V_U3)))
    E(valu('v_add_u32', v(V_TH + 1), HIOFF, v(V_TH)))
    for i in range(4):
        E(valu('v_add_u32', v(V_U0), 4 * i, v(V_GQ))); E(valu('v_xor_b32', v(V_U0), v(V_U0), v(V_N16)))
        E(valu('v_lshlrev_b32', v(V_U0), 4, v(V_U0)))
        E(valu('v_lshl_add_u32', v(V_KA + i), v(V_N16), 9, v(V_U0)))
        E(valu('v_add_u32', v(V_KA + 4 + i), HIOFF, v(V_KA + i)))
    E(salu('s_lshl_b32', s(S_T0), s(S_RH), 11)); E(salu('s_add_u32', s(S_T0), s(S_T0), XA))
    E(valu('v_add_u32', v(V_HR), s(S_T0), v(V_L16)))
    E(salu('s_lshl_b32', s(S_T0), s(S_W), 13)); E(salu('s_add_u32', s(S_T0), s(S_T0), XA))
    E(valu('v_add_u32', v(V_XW), s(S_T0), v(V_L16)))
    E(salu('s_xor_b32', s(S_T0), s(S_W), 2)); E(salu('s_lshl_b32', s(S_T0), s(S_T0), 13)); E(salu('s_add_u32', s(S_T0), s(S_T0), XA))
    E(valu('v_add_u32', v(V_XR), s(S_T0), v(V_L16)))
    E(valu('v_mov_b32', v(V_C1), lit(C_GELU1)))
    E(salu('s_lshl_b32', s(S_T0), s(S_W), 10)); E(salu('s_add_u32', s(S_T0), s(S_T0), XA + 28672))
    E(valu('v_lshlrev_b32', v(V_U0), 6, v(V_N16))); E(valu('v_add_u32', v(V_U0), s(S_T0), v(V_U0)))
    E(valu('v_lshl_add_u32', v(V_QW), v(V_GQ), 3, v(V_U0))); E(valu('v_lshl_add_u32', v(V_QR), v(V_GQ), 4, v(V_U0)))
    return P

def layernorm(late, wl):
    P = []; E = P.append
    late = list(late); wl = list(wl)
    def drip(q, n=1):
        while q and n > 0:
            x = q.pop(0); E(x)
            if x.kind in ('dma', 'vload'): n -= 1
    ACC = 64
    for p in range(2):
        b = ACC + 4 * p
        for k in range(4): E(valu('v_mov_b32', v(b + k), 0))
        for n in range(28):
            d = p * 28 + n
            E(valu('v_dot2_f32_bf16', v(b + (n & 1)), v(d), s(S_ONES), v(b + (n & 1))))
            E(valu('v_dot2_f32_bf16', v(b + 2 + (n & 1)), v(d), v(d), v(b + 2 + (n & 1))))
            if n % 7 == 3: drip(late)
        E(valu('v_add_f32', v(b), v(b), v(b + 1))); E(valu('v_add_f32', v(b + 2), v(b + 2), v(b + 3)))
    for mods in ("quad_perm:[1,0,3,2] row_mask:0xf bank_mask:0xf", "quad_perm:[2,3,0,1] row_mask:0xf bank_mask:0xf", "row_half_mirror row_mask:0xf bank_mask:0xf"):
        for p in range(2):
            for k in (0, 2):
                r = ACC + 4 * p + k
                E(valu('v_add_f32_dpp', v(r), v(r), v(r), mods=mods))
    for p in range(2):
        b = ACC + 4 * p
        E(valu('v_mul_f32', v(b), lit(1.0 / 448), v(b)))
        E(valu('v_mul_f32', v(b + 2), lit(1.0 / 448), v(b + 2)))
        E(valu('v_fma_f32', v(b + 2), '-' + v(b), v(b), v(b + 2)))
        E(valu('v_max_f32', v(b + 2), 0, v(b + 2)))
        E(valu('v_add_f32', v(b + 2), lit(1e-5), v(b + 2)))
        E(valu('v_rsq_f32', v(b + 2), v(b + 2)))
        E(valu('v_mul_f32', v(b), v(b), v(b + 2)))
        E(valu('v_sub_f32', v(b + 1), 0, v(b)))
    E(valu('v_and_b32', v(V_U0), 7, v(V_LANE)))
    E(valu('v_and_b32', v(V_U1), 3, v(V_U0)))
    E(valu('v_lshrrev_b32', v(V_U0), 2, v(V_U0))); E(valu('v_lshlrev_b32', v(V_U0), 6, v(V_U0)))
    E(valu('v_and_b32', v(V_U2), 1, v(V_U1))); E(valu('v_lshl_add_u32', v(V_U0), v(V_U2), 5, v(V_U0)))
    E(valu('v_lshrrev_b32', v(V_U1), 1, v(V_U1))); E(valu('v_lshl_add_u32', v(V_U0), v(V_U1), 3, v(V_U0)))
    E(salu('s_mov_b32', s(S_T0), XROW)); E(valu('v_mad_u32_u24', v(V_U0), v(V_R8), s(S_T0), v(V_U0)))
    E(salu('s_mul_i32', s(S_T1), s(S_W), 16 * XROW)); E(salu('s_add_u32', s(S_T1), s(S_T1), XSTAGE))
    E(valu('v_add_u32', v(V_U0), s(S_T1), v(V_U0)))
    E(valu('v_add_u32', v(V_U1), 8 * XROW, v(V_U0)))
    E(salu('s_mov_b32', s(S_T2), '0xffff0000'))
    T = 72
    for p in range(2):
        b = ACC + 4 * p
        for i in range(7):
            d0 = (p * 7 + i) * 4
            for k in range(4):
                t = T + 2 * k
                E(valu('v_lshlrev_b32', v(t), 16, v(d0 + k))); E(valu('v_and_b32', v(t + 1), s(S_T2), v(d0 + k)))
            for k in range(4):
                t = T + 2 * k
                if CFG.pkln:
                    x = I(f"v_pk_fma_f32 v[{t}:{t+1}], v[{t}:{t+1}], v[{b+2}:{b+3}], v[{b}:{b+1}] op_sel:[0,0,1] op_sel_hi:[1,0,1]", 'valu',
                          regs(v(t, 2)) + regs(v(b, 4)), regs(v(t, 2)))
                    E(x)
                else:
                    E(valu('v_fma_f32', v(t), v(t), v(b + 2), '-' + v(b))); E(valu('v_fma_f32', v(t + 1), v(t + 1), v(b + 2), '-' + v(b)))
            for k in range(4):
                t = T + 2 * k
                E(valu('v_cvt_pk_bf16_f32', v(d0 + k), v(t), v(t + 1)))
            E(ds_write2_b64(v(V_U0 + p), v(d0, 2), v(d0 + 2, 2), 16 * i, 16 * i + 2, tag='xw'))
            drip(wl)
    drip(late, 99); drip(wl, 99)
    E(wait_lgkm_tag('xw')); E(barrier())
    E(salu('s_lshl_b32', s(S_T0), s(S_RH), 5)); E(valu('v_add_u32', v(V_U0), s(S_T0), v(V_N16)))
    E(salu('s_mov_b32', s(S_T0), XROW)); E(valu('v_lshlrev_b32', v(V_U1), 4, v(V_GQ)))
    E(valu('v_mad_u32_u24', v(V_U0), v(V_U0), s(S_T0), v(V_U1))); E(valu('v_add_u32', v(V_U0), XSTAGE, v(V_U0)))
    for ks in range(14):
        for ct in range(2):
            E(ds_read('ds_read_b128', a(A_XB + (ks * 2 + ct) * 4, 4), v(V_U0), ks * 64 + ct * 16 * XROW, tag='xb'))
    return P

def interleave(*lists):
    out = []; its = [list(l) for l in lists]
    while any(its):
        for l in its:
            if l: out.append(l.pop(0))
    return out

def geglu(st):
    base = accset(st) if (st < 3 or not CFG.f1mix) else V_F1H
    out = []
    tis = range(2) if st < 3 else range(1)
    TT = 64; HP = 80
    out.append(valu('v_add_u32', v(V_HW), s(S_HI + st), v(V_HR)))
    for ct in range(2):
        for ti in tis:
            G = base + ((0 * 2 + ti) * 2 + ct) * 4; U = base + ((1 * 2 + ti) * 2 + ct) * 4
            t = [TT + k for k in range(4)]; e = [TT + 4 + k for k in range(4)]
            for k in range(4): out.append(valu('v_mul_f32', v(t[k]), v(G + k), v(G + k)))
            for k in range(4): out.append(valu('v_fmaak_f32', v(t[k]), v(t[k]), v(V_C1), lit(C_GELU0)))
            for k in range(4): out.append(valu('v_mul_f32', v(t[k]), v(G + k), v(t[k])))
            for k in range(4): out.append(valu('v_exp_f32', v(e[k]), v(t[k])))
            for k in range(4): out.append(valu('v_mul_f32', v(t[k]), v(G + k), v(U + k)))
            for k in range(4): out.append(valu('v_add_f32', v(e[k]), '1.0', v(e[k])))
            for k in range(4): out.append(valu('v_rcp_f32', v(e[k]), v(e[k])))
            hp = HP + ct * 4 + ti * 2
            for k in range(4): out.append(valu('v_mul_f32', v(t[k]), v(t[k]), v(e[k])))
            out.append(valu('v_cvt_pk_bf16_f32', v(hp), v(t[0]), v(t[1]))); out.append(valu('v_cvt_pk_bf16_f32', v(hp + 1), v(t[2]), v(t[3])))
        if st < 3: out.append(ds_write('ds_write_b128', v(V_HW), v(HP + ct * 4, 4), ct * 1024, tag='hw'))
        else: out.append(ds_write('ds_write_b64', v(V_HW), v(HP + ct * 4, 2), ct * 1024, tag='hw'))
    return out

def qconv(st):
    base = accset(4 + st); out = []
    for pp in range(2):
        for ct in range(2):
            X0 = base + ((2 * pp) * 2 + ct) * 4; X1 = base + ((2 * pp + 1) * 2 + ct) * 4
            t = 64 + 8 * ct; h = 80 + 4 * ct
            for k in range(4): out.append(valu('v_mul_f32', v(t + k), lit(C_QS), v(X0 + k)))
            for k in range(4): out.append(valu('v_mul_f32', v(t + 4 + k), lit(C_QS), v(X1 + k)))
            for k in range(4): out.append(valu('v_cvt_pk_bf16_f32', v(h + k), v(t + 2 * k), v(t + 2 * k + 1)))
            if CFG.qlds:
                ks = 2 * st + pp
                out.append(ds_write2_b64(v(V_QW), v(h, 2), v(h + 2, 2), 0, 4, tag='qw'))
                out.append(ds_read('ds_read_b128', a(A_Q + (ks * 2 + ct) * 4, 4), v(V_QR), 0, tag='qr'))
                continue
            out.append(valu('v_permlane32_swap_b32', v(h), v(h + 2))); out.append(valu('v_permlane32_swap_b32', v(h + 1), v(h + 3)))
            out.append(nop(0))
            out.append(valu('v_permlane16_swap_b32', v(h), v(h + 2))); out.append(valu('v_permlane16_swap_b32', v(h + 1), v(h + 3)))
            ks = 2 * st + pp
            for k in range(4): out.append(valu('v_accvgpr_write_b32', a(A_Q + (ks * 2 + ct) * 4 + k), v(h + k)))
    return out

def gconv(st):
    base = accset(8 + st); out = []
    pps = range(2) if st < 3 else range(1)
    for pp in pps:
        for ct in range(2):
            if st < 3: X0 = base + ((2 * pp) * 2 + ct) * 4; X1 = base + ((2 * pp + 1) * 2 + ct) * 4
            else: X0 = base + (0 * 2 + ct) * 4; X1 = base + (1 * 2 + ct) * 4
            h = 80 + 4 * ct
            out.append(valu('v_cvt_pk_bf16_f32', v(h), v(X0), v(X0 + 1))); out.append(valu('v_cvt_pk_bf16_f32', v(h + 1), v(X0 + 2), v(X0 + 3)))
            out.append(valu('v_cvt_pk_bf16_f32', v(h + 2), v(X1), v(X1 + 1))); out.append(valu('v_cvt_pk_bf16_f32', v(h + 3), v(X1 + 2), v(X1 + 3)))
            li = st * 2 + pp
            for k in range(4): out.append(valu('v_accvgpr_write_b32', a(A_G + (li * 2 + ct) * 4 + k), v(h + k)))
    return out
def gstore(li, ct):
    st, pp = li // 2, li % 2
    return [salu('s_add_u32', s(S_T0), s(S_GB), s(S_CB + st)),
            vstore('buffer_store_dwordx4', a(A_G + (li * 2 + ct) * 4, 4), v(V_L16), s(S_WS, 4), s(S_T0), pp * 2048 + ct * 1024, (CFG.gstore_flags if CFG.gstore_flags is not None else CFG.store_flags).replace('_', ' ').strip(), tag='gst')]

def sconv(st):
    base = 128 + 32 * (st & 1); out = []
    pps = range(2) if st < 3 else range(1)
    out.append(salu('s_add_u32', s(S_T1), s(S_PB), s(S_CB + st)))
    n = 0
    for pp in pps:
        for ct in range(2):
            if st < 3: X0 = base + ((2 * pp) * 2 + ct) * 4; X1 = base + ((2 * pp + 1) * 2 + ct) * 4
            else: X0 = 160 + (0 * 2 + ct) * 4; X1 = 160 + (1 * 2 + ct) * 4
            h = 192 + 4 * (n & 1); n += 1
            out.append(valu('v_cvt_pk_bf16_f32', v(h), v(X0), v(X0 + 1))); out.append(valu('v_cvt_pk_bf16_f32', v(h + 1), v(X0 + 2), v(X0 + 3)))
            out.append(valu('v_cvt_pk_bf16_f32', v(h + 2), v(X1), v(X1 + 1))); out.append(valu('v_cvt_pk_bf16_f32', v(h + 3), v(X1 + 2), v(X1 + 3)))
            out.append(vstore('buffer_store_dwordx4', v(h, 4), v(V_L16), s(S_WS, 4), s(S_T1), pp * 2048 + ct * 1024, CFG.store_flags.replace('_', ' ').strip(), tag='sst'))
    return out

def xlane_reduce(op, reg, tmp):
    return [valu('v_mov_b32', v(tmp), v(reg)), nop(0), valu('v_permlane16_swap_b32', v(reg), v(tmp)), nop(0), valu(op, v(reg), v(reg), v(tmp)),
            valu('v_mov_b32', v(tmp), v(reg)), nop(0), valu('v_permlane32_swap_b32', v(reg), v(tmp)), nop(0), valu(op, v(reg), v(reg), v(tmp))]

def Sreg(t, T, ct): return V_S + 16 * (t & 1) + (ct * 2 + T) * 4
def Preg(t, ct): return V_P + 8 * (t & 1) + ct * 4

def softmax_first():
    out = []
    for ct in range(2):
        r = [Sreg(0, 0, ct) + k for k in range(4)] + [Sreg(0, 1, ct) + k for k in range(4)]
        m = V_T + ct
        out.append(valu('v_max3_f32', v(m), v(r[0]), v(r[1]), v(r[2])))
        out.append(valu('v_max3_f32', v(m), v(m), v(r[3]), v(r[4])))
        out.append(valu('v_max3_f32', v(m), v(m), v(r[5]), v(r[6])))
        out.append(valu('v_max_f32', v(m), v(m), v(r[7])))
    a0 = xlane_reduce('v_max_f32', V_T, V_T + 2); a1 = xlane_reduce('v_max_f32', V_T + 1, V_T + 3)
    out += interleave(a0, a1)
    for ct in range(2):
        for k in range(4): out.append(valu('v_sub_f32', v(V_NEGM + 4 * ct + k), 0, v(V_T + ct)))
    for ct in range(2):
        for T in range(2):
            for k in range(4): out.append(valu('v_add_f32', v(Sreg(0, T, ct) + k), v(V_NEGM + 4 * ct), v(Sreg(0, T, ct) + k)))
    out.append(valu('v_mov_b32', v(V_L0), 0)); out.append(valu('v_mov_b32', v(V_L1), 0))
    return out
def s1_fix():
    out = []
    for ct in range(2):
        for T in range(2):
            for k in range(4): out.append(valu('v_add_f32', v(Sreg(1, T, ct) + k), v(V_NEGM + 4 * ct), v(Sreg(1, T, ct) + k)))
    return out
def softmax_body(t):
    out = []
    for ct in range(2):
        ts = V_TS0 + ct
        for T in range(2):
            S = Sreg(t, T, ct); e = V_T + 4 * T
            for k in range(4): out.append(valu('v_exp_f32', v(e + k), v(S + k)))
            if T == 0:
                out.append(valu('v_add_f32', v(ts), v(e), v(e + 1)))
            else:
                out.append(valu('v_add_f32', v(ts), v(ts), v(e)));
            out.append(valu('v_cvt_pk_bf16_f32', v(Preg(t, ct) + 2 * T), v(e), v(e + 1)))
            if T == 1: out.append(valu('v_add_f32', v(ts), v(ts), v(e + 1)))
            out.append(valu('v_add_f32', v(ts), v(ts), v(e + 2)))
            out.append(valu('v_cvt_pk_bf16_f32', v(Preg(t, ct) + 2 * T + 1), v(e + 2), v(e + 3)))
            out.append(valu('v_add_f32', v(ts), v(ts), v(e + 3)))
    return out
def softmax_check(t):
    return [valu('v_max_f32', v(V_TM), v(V_TS0), v(V_TS1)),
            valu('v_cmp_lt_f32', 'vcc', s(S_THR), v(V_TM)),
            raw(f"s_cbranch_vccnz L_slow_{t}", 'branch', ['vcc']),
            label(f"L_back_{t}"),
            valu('v_add_f32', v(V_L0), v(V_L0), v(V_TS0)), valu('v_add_f32', v(V_L1), v(V_L1), v(V_TS1))]

def slow_path(par):
    t = par
    o = []
    o.append(label(f"L_slowsub_{par}"))
    o.append(nop(15))
    for ct in range(2):
        r = [Sreg(t, 0, ct) + k for k in range(4)] + [Sreg(t, 1, ct) + k for k in range(4)]
        m = V_T + ct
        o += [valu('v_max3_f32', v(m), v(r[0]), v(r[1]), v(r[2])), valu('v_max3_f32', v(m), v(m), v(r[3]), v(r[4])),
              valu('v_max3_f32', v(m), v(m), v(r[5]), v(r[6])), valu('v_max_f32', v(m), v(m), v(r[7]))]
        o += xlane_reduce('v_max_f32', m, V_T + 2)
        o.append(valu('v_max_f32', v(m), 0, v(m)))
    for ct in range(2):
        d = V_T + ct; f = V_T + 2 + ct
        o.append(valu('v_sub_f32', v(f), 0, v(d))); o.append(valu('v_exp_f32', v(f), v(f)))
        for k in range(4): o.append(valu('v_sub_f32', v(V_NEGM + 4 * ct + k), v(V_NEGM + 4 * ct + k), v(d)))
        for tt in (t, t + 1):
            for T in range(2):
                for k in range(4): o.append(valu('v_sub_f32', v(Sreg(tt, T, ct) + k), v(Sreg(tt, T, ct) + k), v(d)))
        o.append(valu('v_mul_f32', v(V_L0 + ct), v(V_L0 + ct), v(f)))
        for dt in range(16):
            b = ((dt >> 1) * 2 + ct) * 8 + (dt & 1) * 4
            for k in range(4): o.append(valu('v_mul_f32', v(b + k), v(b + k), v(f)))
    o += softmax_body(t)
    o.append(nop(3))
    o.append(raw(f"s_setpc_b64 s[{S_RET}:{S_RET+1}]", 'branch', [s(S_RET, 2)]))
    return o

def onorm(i):
    ct = i & 1; b = 8 * i; rl = V_RL0 + ct; t = V_T
    out = []
    for k in range(8): out.append(valu('v_mul_f32', v(t + k), v(b + k), v(rl)))
    for k in range(4): out.append(valu('v_cvt_pk_bf16_f32', v(b + k), v(t + 2 * k), v(t + 2 * k + 1)))
    if i < 8: out.append(ds_write('ds_write_b128', v(V_XW), v(b, 4), i * 1024, tag='ow1'))
    return out


FLAGBASE = 2 * 256 * 57344
S_DBG, S_XS, S_OUTS = 12, 16, 20
V_Z = 94
V_FLAG = 241
V_FL0 = 242
S_B0, S_B1 = 50, 51
S_PO0, S_PO1, S_OO0, S_OO1 = 52, 53, 54, 55
S_LO, S_HI16 = 56, 57
def flag_setup():
    a1 = [raw(f"s_load_dwordx2 s[{S_DBG}:{S_DBG+1}], s[0:1], 80", 'salu', [], [s(S_DBG, 2)])]
    a2 = [raw("s_waitcnt lgkmcnt(0)", 'wait_raw'), salu('s_mov_b32', s(S_DBG + 2), 256), salu('s_mov_b32', s(S_DBG + 3), '0x00020000'),
          valu('v_mov_b32', v(V_FLAG), '0x7ffffff0'), valu('v_mov_b32', v(V_U0), s(2)),
          salu('s_lshl_b32', s(S_T2), s(S_W), 6), valu('v_add_u32', v(V_U1), s(S_T2), v(V_LANE)),
          valu('v_cmp_eq_u32', 'vcc', 0, v(V_U1)), nop(1), valu('v_cndmask_b32', v(V_FLAG), v(V_FLAG), v(V_U0), 'vcc')]
    return a1, a2
def flag_store(val):
    return [valu('v_mov_b32', v(V_U1), val),
            vstore('buffer_store_byte', v(V_U1), v(V_FLAG), s(S_DBG, 4), '0', 0, 'sc1', tag='flag')]
def wsflag_store(val, vreg):
    return [salu('s_lshl_b32', s(S_T0), s(2), 7), salu('s_add_u32', s(S_T0), s(S_T0), FLAGBASE), valu('v_mov_b32', v(V_U1), val),
            vstore('buffer_store_dword', v(V_U1), v(vreg), s(S_WS, 4), s(S_T0), 0, 'sc1', tag='wsflag')]
def flag_load():
    return [salu('s_lshl_b32', s(S_T2), s(S_RB), 3), valu('v_mov_b32', v(V_U2), 0),
            vload('buffer_load_dwordx2', v(V_FL0, 2), v(V_U2), s(S_DBG, 4), s(S_T2), 0, 'sc1', tag='fl')]
def flags_nonzero():
    return [valu('v_lshrrev_b32', v(V_U0), 1, v(V_FL0)), valu('v_lshrrev_b32', v(V_U1), 1, v(V_FL0 + 1)),
            valu('v_or_b32', v(V_U0), v(V_U0), v(V_FL0)), valu('v_or_b32', v(V_U1), v(V_U1), v(V_FL0 + 1)),
            valu('v_and_b32', v(V_U0), v(V_U0), v(V_U1)), valu('v_and_b32', v(V_U0), '0x01010101', v(V_U0)),
            valu('v_cmp_eq_u32', 'vcc', '0x01010101', v(V_U0))]
def tail_setup():
    a1 = [raw(f"s_load_dwordx2 s[{S_XS}:{S_XS+1}], s[0:1], 0", 'salu', [], [s(S_XS, 2)]),
          raw(f"s_load_dwordx2 s[{S_OUTS}:{S_OUTS+1}], s[0:1], 72", 'salu', [], [s(S_OUTS, 2)])]
    o = [raw("s_waitcnt lgkmcnt(0)", 'wait_raw')]
    for r in (S_XS, S_OUTS): o += [salu('s_mov_b32', s(r + 2), 2048 * 896), salu('s_mov_b32', s(r + 3), '0x00020000')]
    o += [salu('s_mul_i32', s(S_B0), s(S_KVH), 7), salu('s_add_u32', s(S_B0), s(S_B0), s(S_W)),
          salu('s_add_u32', s(S_B1), s(S_B0), 4), salu('s_cmp_eq_u32', s(S_W), 3), salu('s_cselect_b32', s(S_B1), s(S_B0), s(S_B1))]
    for (b, po, oo) in ((S_B0, S_PO0, S_OO0), (S_B1, S_PO1, S_OO1)):
        o += [salu('s_mul_i32', s(po), s(S_RB), 8 * 57344), salu('s_lshl_b32', s(S_T0), s(b), 10), salu('s_add_u32', s(po), s(po), s(S_T0))]
        o += [salu('s_cmp_ge_u32', s(b), 28), salu('s_cselect_b32', s(S_T0), 1, 0), salu('s_mul_i32', s(S_T1), s(S_T0), 28), salu('s_sub_u32', s(S_T1), s(b), s(S_T1)),
              salu('s_lshl_b32', s(oo), s(S_RB), 6), salu('s_lshl_b32', s(S_T0), s(S_T0), 5), salu('s_add_u32', s(oo), s(oo), s(S_T0)),
              salu('s_and_b32', s(S_T0), s(S_T1), 1), salu('s_lshl_b32', s(S_T0), s(S_T0), 4), salu('s_add_u32', s(oo), s(oo), s(S_T0)),
              salu('s_mul_i32', s(oo), s(oo), 896), salu('s_lshr_b32', s(S_T1), s(S_T1), 1), salu('s_lshl_b32', s(S_T1), s(S_T1), 6), salu('s_add_u32', s(oo), s(oo), s(S_T1))]
    o += [salu('s_mov_b32', s(S_LO), '0x00003f80'), salu('s_mov_b32', s(S_HI16), '0x3f800000')]
    return a1, o
def part_loads(which, dst):
    out = []
    for blk, po in enumerate((S_PO0, S_PO1)):
        for k in range(8):
            out.append(salu('s_add_u32', s(48 + (k & 1)), s(po), which * 256 * 57344 + k * 57344))
            out.append(vload('buffer_load_dwordx4', v(dst(blk, k), 4), v(V_L16), s(S_WS, 4), s(48 + (k & 1)), 0, 'sc1', tag='pl%d' % which))
    return out
def part_sum(dst, acc):
    out = []
    for k in range(8):
        for d in range(4):
            for h, sel_ in enumerate((S_LO, S_HI16)):
                r = acc + 2 * d + h
                out.append(valu('v_dot2_f32_bf16', v(r), v(dst(k) + d), s(sel_), v(r) if k else '0'))
    return out
GDST = lambda blk, k: 8 * (blk * 8 + k) + 4
SDST = lambda blk, k: 128 + (blk * 8 + k) * 4
def fused_tail():
    P = []; E = P.append
    def stamp(k):
        if CFG.stamps == 't': E(raw(f"s_memrealtime s[{74+2*k}:{75+2*k}]", 'salu'))
    stamp(1)
    E(raw("s_waitcnt vmcnt(0)", 'wait_raw')); stamp(2); E(barrier())
    E(valu('v_cmp_gt_u32', 'vcc', 256, v(V_FLAG))); E(valu('v_cndmask_b32', v(V_U0), v(V_FLAG), 0, 'vcc'))
    P += wsflag_store(2, V_U0)
    GA = [200, 208]
    for blk in range(2): P += part_sum(lambda k: GDST(blk, k), GA[blk])
    for blk in range(2):
        g = GA[blk]; t = 216 + 8 * blk
        for k in range(8): E(valu('v_mul_f32', v(t + k), lit(-math.log2(math.e)), v(g + k)))
        for k in range(8): E(valu('v_exp_f32', v(t + k), v(t + k)))
        for k in range(8): E(valu('v_add_f32', v(t + k), '1.0', v(t + k)))
        for k in range(8): E(valu('v_rcp_f32', v(t + k), v(t + k)))
        for k in range(8): E(valu('v_mul_f32', v(g + k), v(g + k), v(t + k)))
    E(salu('s_mov_b32', s(S_T0), 896)); E(valu('v_lshlrev_b32', v(232), 4, v(V_GQ))); E(valu('v_mad_u32_u24', v(232), v(V_N16), s(S_T0), v(232)))
    stamp(3)
    E(salu('s_cmp_eq_u32', s(S_W), 3)); E(raw("s_cbranch_scc0 L_poll_done", 'branch'))
    E(salu('s_mov_b32', s(S_T1), CFG.spin))
    E(salu('s_lshl_b32', s(S_T2), s(S_RB), 10)); E(salu('s_add_u32', s(S_T2), s(S_T2), FLAGBASE))
    E(valu('v_lshlrev_b32', v(V_U2), 7, v(V_LANE))); E(valu('v_mov_b32', v(V_U1), '0x7ffffff0'))
    E(valu('v_cmp_gt_u32', 'vcc', 8, v(V_LANE))); E(valu('v_cndmask_b32', v(V_U2), v(V_U1), v(V_U2), 'vcc'))
    E(label("L_poll"))
    E(raw(f"buffer_load_dword v{V_FL0}, v{V_U2}, s[{S_WS}:{S_WS+3}], s{S_T2} offen sc1", 'salu'))
    E(raw("s_waitcnt vmcnt(0)", 'wait_raw'))
    E(raw(f"v_cmp_eq_u32 vcc, 2, v{V_FL0}", 'salu')); E(raw("s_nop 4", 'salu'))
    E(raw("s_and_b32 s3, vcc_lo, 0xff", 'salu')); E(raw("s_cmp_eq_u32 s3, 0xff", 'salu'))
    E(raw("s_cbranch_scc1 L_poll_done", 'branch'))
    if CFG.poll_sleep: E(raw(f"s_sleep {CFG.poll_sleep}", 'salu'))
    E(raw(f"s_sub_u32 s{S_T1}, s{S_T1}, 1", 'salu')); E(raw(f"s_cmp_lg_u32 s{S_T1}, 0", 'salu')); E(raw("s_cbranch_scc1 L_poll", 'branch'))
    E(label("L_poll_done"))
    E(barrier())
    stamp(4)
    P += part_loads(0, SDST)
    XD = [192, 196]
    for blk, oo in enumerate((S_OO0, S_OO1)): E(vload('buffer_load_dwordx4', v(XD[blk], 4), v(232), s(S_XS, 4), s(oo), 0, tag='xf'))
    E(salu('s_mov_b32', s(S_T2), '0xffff0000'))
    for blk in range(2):
        SA = 8 * blk
        ps = part_sum(lambda k: SDST(blk, k), SA)
        if blk == 0 and CFG.stamps == 't': ps.insert(1, raw("s_memrealtime s[84:85]", 'salu'))
        if blk == 1 and CFG.stamps == 't': ps.append(raw("s_memrealtime s[86:87]", 'salu'))
        P += ps
        g = GA[blk]; h = 16 + 4 * blk; u = 24 + 16 * blk
        for k in range(8): E(valu('v_mul_f32', v(SA + k), v(SA + k), v(g + k)))
        for k in range(4): E(valu('v_cvt_pk_bf16_f32', v(h + k), v(SA + 2 * k), v(SA + 2 * k + 1)))
        E(valu('v_permlane32_swap_b32', v(h), v(h + 2))); E(valu('v_permlane32_swap_b32', v(h + 1), v(h + 3)))
        E(valu('v_permlane16_swap_b32', v(h), v(h + 2))); E(valu('v_permlane16_swap_b32', v(h + 1), v(h + 3)))
        for d in range(4):
            E(valu('v_lshlrev_b32', v(u + 2 * d), 16, v(h + d))); E(valu('v_and_b32', v(u + 2 * d + 1), s(S_T2), v(h + d)))
            E(valu('v_lshlrev_b32', v(u + 8 + 2 * d), 16, v(XD[blk] + d))); E(valu('v_and_b32', v(u + 8 + 2 * d + 1), s(S_T2), v(XD[blk] + d)))
        for k in range(8): E(valu('v_add_f32', v(u + k), v(u + k), v(u + 8 + k)))
        for k in range(4): E(valu('v_cvt_pk_bf16_f32', v(h + k), v(u + 2 * k), v(u + 2 * k + 1)))
        E(vstore('buffer_store_dwordx4', v(h, 4), v(232), s(S_OUTS, 4), s((S_OO0, S_OO1)[blk]), 0))
    return P

def units(x):
    if x.kind == 'trans': return 2
    if x.kind == 'nop': return x.tag + 1
    if x.kind == 'label': return 0
    return 1

def build():
    _last_base.clear()
    chunks, groups, marks = build_main()
    nchunks = len(chunks)
    fcount = 0
    for g in groups:
        g.bufs = []
        for _ in g.frs:
            g.bufs.append(A_FB + 4 * (fcount % CFG.nb)); fcount += 1
        g.f0 = fcount - len(g.frs)
        g.mf = g.mk(g.bufs)
    merged = set()
    if CFG.merge_waits:
        gi = 0
        while gi + 1 < len(groups):
            g, h = groups[gi], groups[gi + 1]
            nm = chunks[g.chunk].name
            on = (CFG.merge_waits == 'all') or (CFG.merge_waits == 'att' and nm[0] in 'KV') or (CFG.merge_waits == 'atto' and nm[0] in 'KVO') or (CFG.merge_waits == 'k' and nm[0] == 'K')
            if on:
                for b in h.bufs: g.mf[0].extra_need |= set(regs(a(b, 4)))
                merged.add(gi)
            gi += 2
    mstart = []; m = 0
    for g in groups:
        mstart.append(m); m += len(g.mf)
    mstart.append(m); NM = m
    M = {k: mstart[i] for k, i in marks.items()}
    chunk_first_m = {}
    for gi, g in enumerate(groups): chunk_first_m.setdefault(g.chunk, mstart[gi])
    chunk_first_m[nchunks] = NM
    def first_chunk(name):
        return min(i for i, c in enumerate(chunks) if c.name.startswith(name))
    forced = {first_chunk("O s0 j0"), first_chunk("O s0 j2"), first_chunk("O s0 j4"), first_chunk("O s0 j6")}
    bars = []; b = 0
    while b < nchunks:
        bars.append(b)
        b += 1 if (CFG.bar_every == 1 or (b + 1) in forced) else 2
    barset = set(bars)
    nextbar = {bb: (bars[i + 1] if i + 1 < len(bars) else nchunks) for i, bb in enumerate(bars)}
    def bar_at_or_after(c):
        return min(bb for bb in bars if bb >= c)

    side = []
    seq = [0]
    def spread(ins, m0, m1, early=True):
        n = len(ins)
        for k, x in enumerate(ins):
            side.append([m0 + (m1 - m0) * k / max(n, 1), seq[0], m0 if early else None, x]); seq[0] += 1
    def at(ins, m0):
        for x in ins:
            side.append([m0, seq[0], None, x]); seq[0] += 1
    LAT = 6
    if CFG.f1mix:
        spread(geglu(0), M["F1_1"] + LAT, M["F1_2"] - 2)
        spread(geglu(1), M["F1_2"] + LAT, M["Q_0"] - 2)
        spread(geglu(2), M["Q_0"] + LAT, M["Q_0"] + 76)
        spread(geglu(3), M["Q_0"] + 78, M["Q_1"] - 6)
    else:
        spread(geglu(0), M["F1_1"] + LAT, M["F1_2"] + 20)
        spread(geglu(1), M["F1_2"] + 24, M["F1_3"] + 10)
        spread(geglu(2), M["F1_3"] + 14, M["Q_0"] + 50)
        spread(geglu(3), M["Q_0"] + 54, M["Q_1"] - 8)
    pre_dma = {}
    pre_dma[first_chunk("Q ")] = dv_setup(V_DVB, 8192)
    pre_dma[first_chunk("F2")] = dv_setup(V_DVA, 896)
    pre_dma[first_chunk("K0")] = dv_setup_K(V_DVB)
    pre_dma[first_chunk("V0")] = dv_setup(V_DVA, 512)
    pre_dma[first_chunk("O ")] = dv_setup(V_DVB, 896)
    qn = ["Q_1", "Q_2", "Q_3", "F2_0"]; qe = ["Q_2", "Q_3", "F2_0", "F2_1"]
    for st in range(4):
        spread(qconv(st), M[qn[st]] + LAT, M[qe[st]] - 8)
    hc = bar_at_or_after(first_chunk("Q s2 j0"))
    fence = {hc: ['hw']}; fence_count = {'hw': 8, 'ow1': 8, 'ow2': 8, 'pr1': 8}
    q3 = first_chunk("Q s3 j0")
    for i in range(7):
        m0 = chunk_first_m[q3 + i // 2 + 1] + 1
        at([ds_read('ds_read_b128', a(A_H + (i * 2 + ct) * 4, 4), v(V_HR), i * 4096 + ct * 1024, tag='hr') for ct in range(2)], m0 + 2 * (i & 1))
    spread(gconv(0), M["F2_1"] + LAT, M["F2_2"] - 8)
    spread(gconv(1), M["F2_2"] + LAT, M["F2_3"] - 8)
    spread(gconv(2), M["F2_3"] + LAT, M["S_0"] + 8)
    spread(gconv(3), M["S_0"] + 12, M["S_1"] - 2)
    spread(softmax_first() + softmax_body(0), M["S_1"] + LAT, M["S_2"] - 2)
    at([valu('v_add_f32', v(V_L0), v(V_L0), v(V_TS0)), valu('v_add_f32', v(V_L1), v(V_L1), v(V_TS1))], M["S_2"] - 1)
    for t in range(1, 16):
        if t < 15: m0, m1 = M[f"S_{t+1}"], (M[f"S_{t+2}"] if t < 14 else M["PV_14"])
        else: m0, m1 = M["PV_14"], M["PV_15"]
        body = softmax_body(t)
        if t == 1: body = s1_fix() + body
        spread(body, m0 + (LAT if t == 1 else 1), m1 - 3)
        at(softmax_check(t), m1 - 1)
    k = 0
    for li in range(7):
        for ct in range(2):
            if CFG.fused: t = 1 + k // 2; off = 8 + 12 * (k & 1)
            else: t = 1 + k; off = 8
            at(gstore(li, ct), M[f"PV_{t-1}"] + off); k += 1
    if CFG.fused:
        fa1, fa2 = flag_setup()
        at(fa1, M["S_2"] + 4); at(fa2, M["S_2"] + 24)
        ta1, ta2 = tail_setup()
        at(ta1, M["O_0"] + 40); at(ta2, M["O_part"] + 20)
    fin = interleave(xlane_reduce('v_add_f32', V_L0, V_T), xlane_reduce('v_add_f32', V_L1, V_T + 1))
    fin += [valu('v_rcp_f32', v(V_RL0), v(V_L0)), valu('v_rcp_f32', v(V_RL1), v(V_L1))]
    spread(fin, M["PV_15"], M["PV_15"] + 10, early=False)
    allnorm = []
    for ks in range(8): allnorm += onorm(2 * ks) + onorm(2 * ks + 1)
    spread(allnorm, M["PV_15"] + 12, M["O_0"] + 28, early=False)
    oj2, oj4, oj6 = first_chunk("O s0 j2"), first_chunk("O s0 j4"), first_chunk("O s0 j6")
    fence[oj2] = ['ow1']; fence[oj4] = ['pr1']; fence[oj6] = ['ow2']
    after_bar = {}
    vmfence = {}
    if CFG.fused:
        gb = bar_at_or_after(first_chunk("K11"))
        vmfence[gb] = ['gst']; fence_count_vm = {'gst': 14}
        after_bar[gb] = flag_store(1)
        fb = bar_at_or_after(first_chunk("O s1 j0"))
        after_bar[fb] = flag_load()
        cb = bar_at_or_after(first_chunk("O s1 j6"))
        after_bar[cb] = flags_nonzero() + [nop(3), raw("s_cbranch_vccz L_gspin", 'branch', ['vcc']), label("L_gback")]
    after_bar[oj2] = [ds_read('ds_read_b128', a(A_PART + i * 4, 4), v(V_XR), i * 1024, tag='pr1') for i in range(8)]
    after_bar[oj4] = [ds_write('ds_write_b128', v(V_XW), v(8 * i, 4), (i - 8) * 1024, tag='ow2') for i in range(8, 16)]
    after_bar[oj6] = [ds_read('ds_read_b128', a(A_PART + i * 4, 4), v(V_XR), (i - 8) * 1024, tag='pr2') for i in range(8, 16)]
    o3 = [salu('s_lshl_b32', s(S_T0), s(S_CH), 13), salu('s_xor_b32', s(S_T2), s(S_T0), 8192)]
    for k in range(4): o3.append(valu('v_add_u32', v(V_TS + 4 + k), s(S_T2), v(V_TS + k)))
    for k in range(4): o3.append(valu('v_add_u32', v(V_TS + k), s(S_T0), v(V_TS + k)))
    spread(o3, M["O_1"] + 8, M["O_1"] + 30, early=False)
    spread(sconv(0), M["O_1"] + LAT, M["O_1"] + 60)
    spread(sconv(1), M["O_2"] + LAT, M["O_2"] + 60)
    spread(sconv(2), M["O_3"] + LAT, M["O_3"] + 40)
    tail = sconv(3)

    if CFG.warm_w:
        w_f1, w_setup, w_issue = warm_weights()
        for item in CFG.warm_main.split('+'):
            if not item: continue
            k, where, off = item.split(':')
            at(w_issue[k], M[where] + int(off))
    STAMP = ["F1_0", "Q_0", "F2_0", "S_0", "S_2", "PV_14", "O_0"]
    if CFG.stamps == 'pro': STAMP = ["F1_0", "F1_1", "F1_2", "F1_3"]
    if CFG.stamps == 'p2': STAMP = ["F1_0"]
    if CFG.stamps == 't': STAMP = ["O_3"]
    if CFG.stamps == 'f1': STAMP = ["F1_0", "F1_1", "F1_2", "F1_3", "Q_0", "Q_1", "Q_2"]
    if CFG.stamps == 'o': STAMP = ["PV_14", "PV_15", "O_0", "O_part", "O_1", "O_2", "O_3"]
    if CFG.stamps == 'q': STAMP = ["Q_0", "Q_1", "Q_2", "Q_3", "F2_0", "F2_2", "S_0"]
    if CFG.stamps == 'a': STAMP = ["S_2", "PV_0", "S_3", "PV_1", "S_4", "S_8", "S_12"]
    sbase = 3 if CFG.stamps == 'pro' else (6 if CFG.stamps == 'p2' else 0)
    if CFG.stamps:
        for k0, nm in enumerate(STAMP):
            k = k0 + sbase
            at([raw(f"s_memrealtime s[{74+2*k}:{75+2*k}]", 'salu')], M[nm])
    side.sort(key=lambda x: (x[0], x[1]))

    P = prologue()
    if CFG.warm_first and CFG.warm_w:
        xl = [x for x in P if x.kind == 'vload' and x.tag == 'x']
        P = [x for x in P if not (x.kind == 'vload' and x.tag == 'x')]
        k = [i for i, x in enumerate(P) if x.text.startswith('s_mov_b32 s11,')][0] + 1
        P = P[:k] + (w_f1 + xl if CFG.warm_first == 1 else xl + w_f1) + P[k:]
    if CFG.stamps:
        P.insert(2, raw("s_memrealtime s[88:89]", 'salu'))
        P.append(raw("s_mov_b32 s67, s88", 'salu'))
    pro_v = []
    if CFG.stamps == 'p2': P.append(raw("s_memrealtime s[74:75]", 'salu'))
    wc = []
    P += wc
    if CFG.warm_w: P += w_setup
    if CFG.fused:
        P += [valu('v_mov_b32', v(V_Z), '0x7ffffff0'), salu('s_lshl_b32', s(S_T2), s(S_W), 6), valu('v_add_u32', v(V_U1), s(S_T2), v(V_LANE)),
              valu('v_cmp_eq_u32', 'vcc', 0, v(V_U1)), nop(1), valu('v_cndmask_b32', v(V_Z), v(V_Z), 0, 'vcc')]
        P += wsflag_store(0, V_Z)
    P += prologue2()
    late = chunk_dma(0, chunks[0]) + chunk_dma(1, chunks[1])
    wl_b = chunk_dma(2, chunks[2]) + chunk_dma(3, chunks[3])
    if CFG.stamps == 'p2': P.append(raw("s_memrealtime s[76:77]", 'salu'))
    if CFG.stamps == 'p2': P.append(raw("s_memrealtime s[78:79]", 'salu'))
    LN = layernorm(late, wl_b)
    if CFG.stamps == 'p2':
        kb = [i for i, x in enumerate(LN) if x.kind == 'barrier'][0]
        LN.insert(kb, raw("s_memrealtime s[84:85]", 'salu'))
        kd = [i for i, x in enumerate(LN) if x.text.startswith('v_add_f32_dpp')][0]
        LN.insert(kd, raw("s_memrealtime s[82:83]", 'salu'))
        LN.insert(10, raw("s_memrealtime s[80:81]", 'salu'))
    if CFG.stamps == 'pro':
        LN.insert(8, raw("s_memrealtime s[76:77]", 'salu'))
        LN.insert(0, raw("s_memrealtime s[74:75]", 'salu'))
        kb = [i for i, x in enumerate(LN) if x.kind == 'barrier'][0]
        LN.insert(kb, raw("s_memrealtime s[78:79]", 'salu'))
    P += LN

    for gi, g in enumerate(groups):
        g.reads = []
        for fi, fr in enumerate(g.frs):
            g.reads += fr(g.bufs[fi], g.chunk % NSLOT, g.chunk)
    st8 = dict(opened=-1, issued=3, rg=0, ri=0, sp=0, prevbar=None)
    dq = []
    xq = []
    gap = [0]
    def emit(x):
        P.append(x); gap[0] += units(x)
    def open_bar(c, mi):
        while dq: emit(dq.pop(0)[1])
        if c in fence:
            for tg in fence[c]:
                have = sum(1 for x in P if x.tag == tg); want = fence_count[tg]
                assert have == want, (tg, have, want)
            P.append(wait_lgkm_tag(fence[c]))
        if c in vmfence:
            for tg in vmfence[c]:
                have = sum(1 for x in P if x.tag == tg); assert have == 14, (tg, have)
            P.append(wait_vm_tag(vmfence[c]))
        cover = list(range(c, nextbar[c]))
        P.append(wait_vm_tag([('dma', cc) for cc in cover])); gap[0] += 1
        emit(barrier())
        st8['opened'] = nextbar[c] - 1
        pb = st8['prevbar']
        lim = 5 if pb is None else pb + NSLOT - 1
        st8['prevbar'] = c
        todo = []
        while st8['issued'] < min(lim, nchunks - 1):
            n = st8['issued'] + 1
            if n in pre_dma: todo += pre_dma[n]
            todo += chunk_dma(n, chunks[n]); st8['issued'] = n
        nd = sum(1 for x in todo if x.kind == 'dma')
        if nd:
            L = max(4, chunk_first_m[nextbar[c]] - chunk_first_m[c] - 2)
            step = L / nd
            k = 0; pend = []
            for x in todo:
                if x.kind == 'dma':
                    pos = mi + 1 + k * step
                    for j, y in enumerate(pend): dq.append([pos - step * (len(pend) - j) / (len(pend) + 1) if k > 0 else mi, y])
                    pend = []
                    dq.append([pos, x]); k += 1
                else: pend.append(x)
        if CFG.fused and st8['issued'] == nchunks - 1 and not st8.get('gl'):
            st8['gl'] = True
            base = (dq[-1][0] if dq else mi) + 1
            gl = part_loads(1, GDST)
            for k, y in enumerate(gl): dq.append([base + k * 0.75, y])
        if c in after_bar: xq.extend(after_bar[c])
    def can_read(gidx, cur):
        g = groups[gidx]
        prevf = g.f0 + len(g.frs) - 1 - CFG.nb
        return prevf < 0 or groups[cur].f0 > prevf
    def issue_reads(cur, maxn, mi):
        n = 0
        while st8['rg'] < len(groups) and n < maxn and can_read(st8['rg'], cur):
            g = groups[st8['rg']]
            if g.chunk > st8['opened']:
                assert g.chunk in barset, g.chunk
                open_bar(g.chunk, mi)
            r = g.reads[st8['ri']]
            emit(r); st8['ri'] += 1; n += 1
            if st8['ri'] == len(g.reads): st8['rg'] += 1; st8['ri'] = 0
        return n
    while st8['rg'] < len(groups) and groups[st8['rg']].f0 + len(groups[st8['rg']].frs) <= CFG.nb: issue_reads(0, 1, 0)
    mi = 0
    for gi, g in enumerate(groups):
        while st8['rg'] <= gi:
            if not issue_reads(gi, 8, mi): raise Exception("cannot issue reads")
        for k, mf in enumerate(g.mf):
            P.append(mf); gap[0] = 0
            last = (k == len(g.mf) - 1)
            if last and gi not in merged: gap[0] += 1
            cur = gi + 1 if (last and gi + 1 < len(groups)) else gi
            nrd = len(groups[min(st8['rg'], len(groups) - 1)].reads)
            issue_reads(cur, 1 if len(g.mf) >= 4 else 2, mi)
            while xq and gap[0] < 2: emit(xq.pop(0))
            while dq and dq[0][0] <= mi: emit(dq.pop(0)[1])
            while st8['sp'] < len(side):
                dl, _, early, x = side[st8['sp']]
                if dl <= mi or (CFG.fill and early is not None and early <= mi and gap[0] + units(x) <= 2):
                    emit(x); st8['sp'] += 1
                else: break
            mi += 1
    while xq: emit(xq.pop(0))
    while st8['sp'] < len(side):
        P.append(side[st8['sp']][3]); st8['sp'] += 1
    while dq: P.append(dq.pop(0)[1])
    P += tail
    if CFG.stamps: P.append(raw("s_memrealtime s[44:45]", 'salu'))
    if CFG.fused: P += fused_tail()
    P.append(raw("s_waitcnt vmcnt(0)", 'wait_raw'))
    if CFG.stamps:
        P.append(raw("s_memrealtime s[46:47]", 'salu'))
        P.append(raw("s_waitcnt lgkmcnt(0)", 'wait_raw'))
        P.append(salu('s_lshl_b32', s(S_T0), s(2), 2)); P.append(salu('s_add_u32', s(S_T0), s(S_T0), s(S_W))); P.append(salu('s_lshl_b32', s(S_T0), s(S_T0), 6))
        P.append(salu('s_add_u32', s(S_T0), s(S_T0), 30 << 20)); P.append(salu('s_mov_b32', s(S_WS + 2), 40 << 20))
        order = [67] + [74 + 2 * k for k in range(7)] + [44, 46, 46, 46]
        for k, r in enumerate(order): P.append(valu('v_mov_b32', v(k), s(r)))
        P.append(valu('v_mov_b32', v(16), 0))
        P.append(raw("s_mov_b64 exec, 1", 'salu'))
        for k in range(3): P.append(vstore('buffer_store_dwordx4', v(4 * k, 4), v(16), s(S_WS, 4), s(S_T0), 16 * k))
        P.append(raw("s_waitcnt vmcnt(0)", 'wait_raw'))
        if CFG.dbgstamps is not False:
            P.append(raw("s_load_dwordx2 s[4:5], s[0:1], 80", 'salu')); P.append(raw("s_waitcnt lgkmcnt(0)", 'wait_raw'))
            P.append(salu('s_mov_b32', s(6), 256)); P.append(salu('s_mov_b32', s(7), '0x00020000'))
            for k in range(1, 11): P.append(valu('v_sub_u32', v(k), v(k), v(0)))
            P.append(salu('s_lshl_b32', s(S_T0), s(2), 2)); P.append(salu('s_add_u32', s(S_T0), s(S_T0), s(S_W)))
            P.append(salu('s_cmp_eq_u32', s(S_T0), int(CFG.dbgstamps))); P.append(raw("s_cbranch_scc0 L_main_end", 'branch'))
            for k in range(3): P.append(vstore('buffer_store_dwordx4', v(4 * k, 4), v(16), s(4, 4), '0', 16 * k))
            P.append(raw("s_waitcnt vmcnt(0)", 'wait_raw'))
    P.append(label("L_main_end")); P.append(raw("s_endpgm", 'branch'))
    for t in range(1, 16):
        P.append(label(f"L_slow_{t}"))
        P.append(raw(f"s_call_b64 s[{S_RET}:{S_RET+1}], L_slowsub_{t & 1}", 'branch', [], [s(S_RET, 2)]))
        P.append(raw(f"s_branch L_back_{t}", 'branch'))
    P += slow_path(0); P += slow_path(1)
    if CFG.fused:
        G = []
        G.append(label("L_gspin")); G.append(raw(f"s_mov_b32 s{S_T1}, {CFG.spin}", 'salu'))
        G.append(label("L_gspin_loop"))
        G.append(raw(f"s_lshl_b32 s{S_T2}, s{S_RB}, 3", 'salu')); G.append(raw(f"v_mov_b32 v{V_U2}, 0", 'salu'))
        G.append(raw(f"buffer_load_dwordx2 v[{V_FL0}:{V_FL0+1}], v{V_U2}, s[{S_DBG}:{S_DBG+3}], s{S_T2} offen sc1", 'salu'))
        G.append(raw("s_waitcnt vmcnt(0)", 'salu'))
        for x in flags_nonzero(): G.append(raw(x.text, 'salu'))
        G.append(raw("s_nop 4", 'salu')); G.append(raw("s_cbranch_vccnz L_gback", 'branch'))
        G.append(raw(f"s_sub_u32 s{S_T1}, s{S_T1}, 1", 'salu')); G.append(raw(f"s_cmp_lg_u32 s{S_T1}, 0", 'salu'))
        G.append(raw("s_cbranch_scc1 L_gspin_loop", 'branch')); G.append(raw("s_branch L_gback", 'branch'))
        P += G
    P.append(label("L_main_code_end"))
    if CFG.stampop != 's_memrealtime':
        for x in P:
            if x.text.startswith('s_memrealtime'): x.text = x.text.replace('s_memrealtime', CFG.stampop)
    Pf, stats = finalize(P)
    if 'nodma' in CFG.abl: Pf = [x for x in Pf if x.kind != 'dma']
    if 'nobar' in CFG.abl: Pf = [x for x in Pf if x.kind != 'barrier']
    if 'novm' in CFG.abl: Pf = [x for x in Pf if not (x.kind == 'wait' and 'vmcnt' in x.text)]
    if 'nolgkm' in CFG.abl:
        k0 = [i for i, x in enumerate(Pf) if x.kind == 'mfma'][0]
        Pf = [x for i, x in enumerate(Pf) if i < k0 or not (x.kind == 'wait' and 'lgkm' in x.text)]
    if 'nostore' in CFG.abl: Pf = [x for x in Pf if not (x.kind == 'vstore' and x.tag in ('gst', 'sst'))]
    return Pf, stats, M, NM

def reduce_kernel():
    P = []; E = P.append
    E(salu('s_cmp_ge_u32', s(2), 448)); E(raw("s_cbranch_scc1 L_red_end", 'branch'))
    if CFG.stamps: E(raw("s_memrealtime s[34:35]", 'salu'))
    E(raw("s_load_dwordx2 s[4:5], s[0:1], 0")); E(raw("s_load_dwordx2 s[6:7], s[0:1], 72")); E(raw("s_load_dwordx2 s[8:9], s[0:1], 88"))
    E(valu('v_and_b32', v(1), 63, v(0))); E(valu('v_lshrrev_b32', v(2), 6, v(0)))
    E(valu('v_lshlrev_b32', v(3), 4, v(1)))
    E(valu('v_readfirstlane_b32', s(20), v(2)))
    E(salu('s_lshl_b32', s(21), s(2), 2)); E(salu('s_add_u32', s(21), s(21), s(20)))
    E(salu('s_mul_hi_u32', s(22), s(21), (2 ** 32 + 55) // 56))
    E(salu('s_mul_i32', s(23), s(22), 56)); E(salu('s_sub_u32', s(23), s(21), s(23)))
    E(raw("s_waitcnt lgkmcnt(0)", 'wait_raw'))
    E(salu('s_mov_b32', s(12), s(8))); E(salu('s_mov_b32', s(13), s(9))); E(salu('s_mov_b32', s(14), 2 * 256 * 57344)); E(salu('s_mov_b32', s(15), '0x00020000'))
    E(salu('s_mul_i32', s(24), s(22), 8 * 57344)); E(salu('s_lshl_b32', s(25), s(23), 10)); E(salu('s_add_u32', s(24), s(24), s(25)))
    for which in range(2):
        for k in range(8):
            E(salu('s_add_u32', s(26), s(24), which * 256 * 57344 + k * 57344))
            E(vload('buffer_load_dwordx4', v(16 + (which * 8 + k) * 4, 4), v(3), s(12, 4), s(26), 0, tag='p'))
    E(salu('s_and_b32', s(27), s(23), 1))
    E(salu('s_lshr_b32', s(28), s(23), 1))
    E(salu('s_cmp_ge_u32', s(28), 14)); E(salu('s_cselect_b32', s(29), 1, 0))
    E(salu('s_mul_i32', s(30), s(29), 14)); E(salu('s_sub_u32', s(28), s(28), s(30)))
    E(salu('s_lshl_b32', s(30), s(22), 6)); E(salu('s_lshl_b32', s(31), s(29), 5)); E(salu('s_add_u32', s(30), s(30), s(31)))
    E(salu('s_lshl_b32', s(31), s(27), 4)); E(salu('s_add_u32', s(30), s(30), s(31)))
    E(salu('s_mul_i32', s(30), s(30), 896)); E(salu('s_lshl_b32', s(31), s(28), 6)); E(salu('s_add_u32', s(30), s(30), s(31)))
    E(valu('v_and_b32', v(4), 15, v(1))); E(valu('v_lshrrev_b32', v(5), 4, v(1)))
    E(salu('s_mov_b32', s(32), 896)); E(valu('v_lshlrev_b32', v(5), 4, v(5))); E(valu('v_mad_u32_u24', v(4), v(4), s(32), v(5)))
    E(salu('s_mov_b32', s(16), s(4))); E(salu('s_mov_b32', s(17), s(5))); E(salu('s_mov_b32', s(18), 2048 * 896)); E(salu('s_mov_b32', s(19), '0x00020000'))
    E(vload('buffer_load_dwordx4', v(8, 4), v(4), s(16, 4), s(30), 0, tag='x'))
    E(salu('s_mov_b32', s(33), '0xffff0000'))
    for which in range(2):
        acc = 80 + 8 * which
        for k in range(8):
            src = 16 + (which * 8 + k) * 4
            for d in range(4):
                E(valu('v_lshlrev_b32', v(96), 16, v(src + d))); E(valu('v_and_b32', v(97), s(33), v(src + d)))
                if k == 0:
                    E(valu('v_mov_b32', v(acc + 2 * d), v(96))); E(valu('v_mov_b32', v(acc + 2 * d + 1), v(97)))
                else:
                    E(valu('v_add_f32', v(acc + 2 * d), v(acc + 2 * d), v(96))); E(valu('v_add_f32', v(acc + 2 * d + 1), v(acc + 2 * d + 1), v(97)))
    for k in range(8): E(valu('v_mul_f32', v(100 + k), lit(-math.log2(math.e)), v(88 + k)))
    for k in range(8): E(valu('v_exp_f32', v(100 + k), v(100 + k)))
    for k in range(8): E(valu('v_add_f32', v(100 + k), '1.0', v(100 + k)))
    for k in range(8): E(valu('v_rcp_f32', v(100 + k), v(100 + k)))
    for k in range(8): E(valu('v_mul_f32', v(88 + k), v(88 + k), v(100 + k)))
    for k in range(8): E(valu('v_mul_f32', v(80 + k), v(80 + k), v(88 + k)))
    for k in range(4): E(valu('v_cvt_pk_bf16_f32', v(108 + k), v(80 + 2 * k), v(81 + 2 * k)))
    E(valu('v_permlane32_swap_b32', v(108), v(110))); E(valu('v_permlane32_swap_b32', v(109), v(111)))
    E(valu('v_permlane16_swap_b32', v(108), v(110))); E(valu('v_permlane16_swap_b32', v(109), v(111)))
    for d in range(4):
        E(valu('v_lshlrev_b32', v(80 + 2 * d), 16, v(108 + d))); E(valu('v_and_b32', v(81 + 2 * d), s(33), v(108 + d)))
        E(valu('v_lshlrev_b32', v(88 + 2 * d), 16, v(8 + d))); E(valu('v_and_b32', v(89 + 2 * d), s(33), v(8 + d)))
    for k in range(8): E(valu('v_add_f32', v(80 + k), v(80 + k), v(88 + k)))
    for k in range(4): E(valu('v_cvt_pk_bf16_f32', v(108 + k), v(80 + 2 * k), v(81 + 2 * k)))
    E(salu('s_mov_b32', s(16), s(6))); E(salu('s_mov_b32', s(17), s(7)))
    E(vstore('buffer_store_dwordx4', v(108, 4), v(4), s(16, 4), s(30), 0))
    E(raw("s_waitcnt vmcnt(0)", 'wait_raw'))
    if CFG.stamps:
        E(raw("s_memrealtime s[36:37]", 'salu')); E(raw("s_waitcnt lgkmcnt(0)", 'wait_raw'))
        E(salu('s_lshl_b32', s(21), s(21), 3)); E(salu('s_add_u32', s(21), s(21), 31 << 20)); E(salu('s_mov_b32', s(14), 40 << 20))
        E(valu('v_mov_b32', v(8), s(34))); E(valu('v_mov_b32', v(9), s(36))); E(valu('v_mov_b32', v(10), 0))
        E(raw("s_mov_b64 exec, 1", 'salu'))
        E(vstore('buffer_store_dwordx2', v(8, 2), v(10), s(12, 4), s(21), 0)); E(raw("s_waitcnt vmcnt(0)", 'wait_raw'))
        if CFG.dbgstamps is not False:
            E(salu('s_cmp_eq_u32', s(2), 447)); E(raw("s_cbranch_scc0 L_red_end", 'branch'))
            E(salu('s_cmp_eq_u32', s(20), 3)); E(raw("s_cbranch_scc0 L_red_end", 'branch'))
            E(raw("s_load_dwordx2 s[4:5], s[0:1], 80", 'salu')); E(raw("s_waitcnt lgkmcnt(0)", 'wait_raw'))
            E(salu('s_mov_b32', s(6), 256)); E(salu('s_mov_b32', s(7), '0x00020000'))
            E(salu('s_mov_b32', s(21), (30 << 20) + int(CFG.dbgstamps) * 64))
            for k in range(3): E(vload('buffer_load_dwordx4', v(16 + 4 * k, 4), v(10), s(12, 4), s(21), 16 * k, 'sc1'))
            E(raw("s_waitcnt vmcnt(0)", 'wait_raw'))
            E(valu('v_mov_b32', v(26), v(8))); E(valu('v_mov_b32', v(27), v(9)))
            for k in range(17, 28): E(valu('v_sub_u32', v(k), v(k), v(16)))
            for k in range(3): E(vstore('buffer_store_dwordx4', v(16 + 4 * k, 4), v(10), s(4, 4), '0', 16 * k))
            E(raw("s_waitcnt vmcnt(0)", 'wait_raw'))
    E(label("L_red_end")); E(raw("s_endpgm", 'branch'))
    Pf, _ = finalize(P)
    return Pf

HEADER = """; Kernarg layout (96 bytes, ptrs only, base s[0:1]):
; Generated by gen/gen.py (hand-written generator).  Two launches:
;  1. fused_main_kernel: workgroup = (64 rows, kv head): LayerNorm, GEGLU FFN slice, q projection, attention, output projection
;     -> bf16 partial sums of s and g in d_ws
; @launch kernel=fused_main_kernel grid=(256,1,1) block=(256,1,1) lds=163840
; @launch kernel=fused_reduce_kernel grid=(448,1,1) block=(256,1,1) lds=0
.amdgcn_target "amdgcn-amd-amdhsa--gfx950"
.text
"""
HEADER_FUSED = """; Kernarg layout (96 bytes, ptrs only, base s[0:1]):
; Generated by gen/gen.py (hand-written generator).
; workgroup = (64 rows, kv head): LayerNorm, GEGLU FFN slice, q projection, attention, output projection -> bf16 partial sums
; of s and g in d_ws (write-through), hand-off flags in d_debug, then every workgroup reduces 1/8 of its row block:
; @launch grid=(256,1,1) block=(256,1,1) lds=163840
.amdgcn_target "amdgcn-amd-amdhsa--gfx950"
.text
"""
def kd(name, nv, acc, ns):
    return f""".section .rodata,"a"
.p2align 6
.amdhsa_kernel {name}
  .amdhsa_next_free_vgpr {nv}
  .amdhsa_next_free_sgpr {ns}
  .amdhsa_accum_offset {acc}
  .amdhsa_group_segment_fixed_size 0
  .amdhsa_kernarg_size 96
  .amdhsa_user_sgpr_count 2
  .amdhsa_user_sgpr_kernarg_segment_ptr 1
  .amdhsa_system_sgpr_workgroup_id_x 1
  .amdhsa_float_denorm_mode_32 3
.end_amdhsa_kernel
"""
def generate():
    Pm, stats, M, NM = build()
    if CFG.fused:
        name = KNAME + "_kernel" if CFG.single_name else MAIN
        t = HEADER_FUSED if CFG.single_name else HEADER_FUSED.replace("; @launch grid=", f"; @launch kernel={MAIN} grid=")
        t += f".globl {name}\n.p2align 8\n.type {name},@function\n{name}:\n" + text(Pm) + "\nL_all_code_end:\n"
        t += kd(name, 512, 256, 102)
        return t, Pm, stats, M, NM
    Pr = reduce_kernel()
    t = HEADER
    t += f".globl {MAIN}\n.p2align 8\n.type {MAIN},@function\n{MAIN}:\n" + text(Pm) + "\n"
    t += f".globl {RED}\n.p2align 8\n.type {RED},@function\n{RED}:\n" + text(Pr) + "\nL_all_code_end:\n"
    t += kd(MAIN, 512, 256, 102) + kd(RED, 112, 112, 40)
    return t, Pm, stats, M, NM

if __name__ == "__main__":
    for arg in sys.argv[2:]:
        k, val = arg.split("=")
        setattr(CFG, k, {"True": True, "False": False}.get(val, int(val) if val.lstrip('-').isdigit() else val))
    t, Pm, stats, M, NM = generate()
    out = sys.argv[1] if len(sys.argv) > 1 else f"cdna_kernels/{KNAME}.s"
    open(out, "w").write(t)
    from collections import Counter
    cn = Counter(i.kind for i in Pm)
    print("instrs:", len(Pm), dict(cn)); print(stats, "NM", NM)
```

```python
import sys, math
from asmlib import *

KNAME = "recurrent_scan__sliding_block_cached__glu_gated_geglu__prompt"
MAIN = "fused_main_kernel"
RED = "fused_reduce_kernel"

class Cfg:
    gl_early = False
    out_flags = ''
    poll_sleep = 1
    single_name = True
    fused = True
    spin = 200000
    dbgstamps = False
    merge_waits = 'all'
    qlds = False
    f1mix = False
    warm_first = 2
    warm_pro = 'f1'
    warm_main = 'wq:F1_2:2+wd:Q_2:2+k:F2_0:2+v:F2_0:9+wo:S_8:2'
    pro_order = 1
    warm_gran = 128
    warm_early = 2
    bar_every = 2
    fill = True
    pkln = True
    warm_code = True
    warm_w = True
    code_bytes = 72 * 1024
    gdma = True
    dma_gap = 4
    abl = ''
    stampop = 's_memrealtime'
    stamps = False
    store_flags = "sc1"
    gstore_flags = None
    debug = None
    nb = 12
CFG = Cfg()

SLOT = 16384; NSLOT = 8; XA = 131072; XSTAGE = 98304; LDS_BYTES = 163840
XROW = 912
AHEAD = 4

S_X, S_F1, S_WQ, S_WD, S_K, S_V, S_WO, S_WS = 4, 8, 12, 16, 20, 24, 28, 32
S_WG, S_WU = 56, 60
S_KVH, S_RB, S_W, S_CH, S_RH, S_PAR, S_WLDS, S_SOFF = 36, 37, 38, 39, 40, 41, 42, 43
S_F1B = 44
S_QB = 48
S_F2B = 49
S_F2C3, S_F2C10, S_F2C11, S_F2C12 = 52, 53, 54, 55
S_KB, S_VB = 56, 57
S_OOWN = 58
S_OPAR = 61
S_KA = 64
S_O3 = 88
S_PB = 89
S_CB = 90
S_HI = 94
S_T0, S_T1, S_T2 = 98, 99, 100
S_THR = 101
S_ONES = 3
S_RET = 64
S_GB = 66

V_S = 128; V_P = 160; V_NEGM = 176; V_T = 184
V_L0, V_L1, V_TS0, V_TS1, V_TM, V_C1 = 192, 193, 194, 195, 196, 197
V_TAC = 200; V_TS = 208; V_TH = 212; V_KA = 216; V_TA = 224
V_DVA = 232; V_DVB = 236
V_L16, V_HW, V_HR, V_R8, V_SC16, V_XW, V_XR = 240, 241, 242, 243, 244, 245, 246
V_RL0, V_RL1 = 247, 248
V_F1H = 128
V_QW, V_QR = 92, 93
V_LANE, V_N16, V_GQ = 249, 250, 251
V_U0, V_U1, V_U2, V_U3 = 252, 253, 254, 255
HIOFF = 65536
SETS = [0, 32, 96]
def accset(gstep): return SETS[gstep % 3]
A_XB = 0; A_H = 0; A_FB = 112; A_Q = 192; A_G = 56; A_PART = 192

C_GELU0 = -2.0 * math.sqrt(2.0 / math.pi) * math.log2(math.e)
C_GELU1 = C_GELU0 * 0.044715
C_QS = math.log2(math.e) / 16.0
import struct
def f2u(x): return struct.unpack("<I", struct.pack("<f", x))[0]
def lit(x): return f"0x{f2u(x):08x}"

class Group:
    def __init__(self, chunk, frs, mk):
        self.chunk = chunk; self.frs = frs; self.mk = mk
class Chunk:
    def __init__(self, name, srd, dv, soff, imm):
        self.name = name; self.srd = srd; self.dv = dv; self.soff = soff; self.imm = imm; self.pair = dv

def tr_reads(addr_lo, off):
    lo, hi = addr_lo
    def f(buf, slot, c):
        ar = lo if slot < 4 else hi
        o = (slot % 4) * SLOT + off
        return [ds_read("ds_read_b64_tr_b16", a(buf, 2), v(ar), o, tag=('rd', c)),
                ds_read("ds_read_b64_tr_b16", a(buf + 2, 2), v(ar), o + 2048, tag=('rd', c))]
    return f
def b128_read(addr_lo, off):
    lo, hi = addr_lo
    def f(buf, slot, c):
        ar = lo if slot < 4 else hi
        o = (slot % 4) * SLOT + off
        return [ds_read("ds_read_b128", a(buf, 4), v(ar), o, tag=('rd', c))]
    return f

def build_main():
    chunks = []; groups = []
    marks = {}
    def mark(n): marks[n] = len(groups)
    def newchunk(*args):
        chunks.append(Chunk(*args)); return len(chunks) - 1
    TAC = lambda tt: (V_TAC + tt, V_TAC + 4 + tt)
    TS = lambda ti: (V_TS + ti, V_TS + 2 + ti)
    TH = (V_TH, V_TH + 1)
    KA = lambda i: (V_KA + i, V_KA + 4 + i)
    TA = lambda tt: (V_TA + tt, V_TA + 4 + tt)
    XB = lambda ks, ct: a(A_XB + (ks * 2 + ct) * 4, 4)

    def pair_mk(accf, Bf, first):
        def mk(fr):
            out = []
            for ct in range(2):
                for i, f in enumerate(fr):
                    d = v(accf(ct), 4)
                    C = '0' if (first and i == 0) else d
                    out.append(mfma(d, a(f, 4), Bf(i, ct), C, need=[a(x, 4) for x in fr] if (ct == 0 and i == 0) else ()))
            return out
        return mk

    def f1_chunk(st, j):
        base = accset(st) if (st < 3 or not CFG.f1mix) else V_F1H
        c = newchunk(f"F1 s{st} j{j}", S_F1, V_DVA, S_F1B + st, j * 64 * 3584)
        if st == 3 and CFG.f1mix: chunks[c].pair = V_DVB
        tis = range(2) if st < 3 else range(1)
        for ti in tis:
            for mat in range(2):
                ad = TS(ti) if st < 3 else TH
                frs = [tr_reads(ad, (ksl * 2 + mat) * 4096) for ksl in range(2)]
                accf = (lambda ct, mat=mat, ti=ti, base=base: base + ((mat * 2 + ti) * 2 + ct) * 4)
                Bf = (lambda i, ct, j=j: XB(2 * j + i, ct))
                groups.append(Group(c, frs, pair_mk(accf, Bf, j == 0)))
    if CFG.f1mix:
        n = 0
        for st in range(3):
            mark(f"F1_{st}")
            for j in range(7):
                f1_chunk(st, j); n += 1
                if n % 3 == 1: f1_chunk(3, n // 3)
        mark("F1_3")
    else:
        for st in range(4):
            mark(f"F1_{st}")
            for j in range(7): f1_chunk(st, j)
    for st in range(4):
        mark(f"Q_{st}")
        base = accset(4 + st)
        for j in range(7):
            c = newchunk(f"Q s{st} j{j}", S_WQ, V_DVB, S_QB, j * 64 * 8192 + st * 128)
            for tt in range(4):
                frs = [tr_reads(TAC(tt), ksl * 4096) for ksl in range(2)]
                accf = (lambda ct, tt=tt, base=base: base + (tt * 2 + ct) * 4)
                Bf = (lambda i, ct, j=j: XB(2 * j + i, ct))
                groups.append(Group(c, frs, pair_mk(accf, Bf, j == 0)))
    HB = lambda ks, ct: a(A_H + (ks * 2 + ct) * 4, 4)
    KR = 32 * 896
    def f2_pair(c, st, ks0, first):
        base = accset(8 + st)
        for tt in range(4):
            frs = [tr_reads(TAC(tt), ksl * 4096) for ksl in range(2)]
            accf = (lambda ct, tt=tt, base=base: base + (tt * 2 + ct) * 4)
            groups.append(Group(c, frs, pair_mk(accf, (lambda i, ct, ks0=ks0: HB(ks0 + i, ct)), first)))
    def f2_single(c, st, ks, item, first):
        base = accset(8 + st)
        for tt in range(4):
            frs = [tr_reads(TAC(tt), item * 4096)]
            accf = (lambda ct, tt=tt, base=base: base + (tt * 2 + ct) * 4)
            groups.append(Group(c, frs, pair_mk(accf, (lambda i, ct, ks=ks: HB(ks, ct)), first)))
    def f2_shared(c, kss, items, first):
        for ti in range(2):
            frs = [tr_reads(TS(ti), it * 4096) for it in items]
            accf = (lambda ct, ti=ti: accset(11) + (ti * 2 + ct) * 4)
            groups.append(Group(c, frs, pair_mk(accf, (lambda i, ct, kss=kss: HB(kss[i], ct)), first)))
    mark("F2_0")
    for i in range(3):
        c = newchunk(f"F2 s0 p{i}", S_WD, V_DVA, S_F2B + 0, 2 * i * KR); f2_pair(c, 0, 2 * i, i == 0)
    c = newchunk("F2 c3", S_WD, V_DVA, S_F2C3, 6 * KR)
    f2_single(c, 0, 6, 0, False)
    mark("F2_1")
    f2_single(c, 1, 6, 1, True)
    for i in range(3):
        c = newchunk(f"F2 s1 p{i}", S_WD, V_DVA, S_F2B + 1, 2 * i * KR); f2_pair(c, 1, 2 * i, False)
    mark("F2_2")
    for i in range(3):
        c = newchunk(f"F2 s2 p{i}", S_WD, V_DVA, S_F2B + 2, 2 * i * KR); f2_pair(c, 2, 2 * i, i == 0)
    c = newchunk("F2 c10", S_WD, V_DVA, S_F2C10, 0)
    f2_single(c, 2, 6, 0, False)
    mark("F2_3")
    f2_shared(c, [0, 1], [1, 3], True)
    c = newchunk("F2 c11", S_WD, V_DVA, S_F2C11, 2 * KR)
    f2_shared(c, [2, 3], [0, 1], False)
    f2_shared(c, [4, 5], [2, 3], False)
    c = newchunk("F2 c12", S_WD, V_DVA, S_F2C12, 0)
    f2_shared(c, [6], [0], False)
    QB = lambda ks, ct: a(A_Q + (ks * 2 + ct) * 4, 4)
    Sreg = lambda t, T, ct: V_S + 16 * (t & 1) + (ct * 2 + T) * 4
    Preg = lambda t, ct: V_P + 8 * (t & 1) + ct * 4
    Oacc = lambda dt, ct: ((dt >> 1) * 2 + ct) * 8 + (dt & 1) * 4
    def S_phase(t):
        mark(f"S_{t}")
        c = newchunk(f"K{t}", S_K, V_DVB, S_KB, t * 16384)
        for T in range(2):
            for kp in range(4):
                frs = [b128_read(KA((2 * kp + i) & 3), T * 8192 + ((2 * kp + i) >> 2) * 256) for i in range(2)]
                def mk(fr, T=T, kp=kp, t=t):
                    out = []
                    for ct in range(2):
                        for i, f in enumerate(fr):
                            d = v(Sreg(t, T, ct), 4)
                            if kp == 0 and i == 0:
                                C = '0' if t < 2 else v(V_NEGM + 4 * ct, 4)
                            else: C = d
                            out.append(mfma(d, a(f, 4), QB(2 * kp + i, ct), C, need=[a(x, 4) for x in fr] if (ct == 0 and i == 0) else ()))
                    return out
                groups.append(Group(c, frs, mk))
    def PV_phase(t):
        mark(f"PV_{t}")
        c = newchunk(f"V{t}", S_V, V_DVA, S_VB, t * 16384)
        for dp in range(8):
            frs = [tr_reads(TA((2 * dp + i) & 3), ((2 * dp + i) >> 2) * 4096) for i in range(2)]
            def mk(fr, dp=dp, t=t):
                out = []
                for i, f in enumerate(fr):
                    for ct in range(2):
                        d = v(Oacc(2 * dp + i, ct), 4)
                        C = '0' if t == 0 else d
                        out.append(mfma(d, a(f, 4), v(Preg(t, ct), 4), C, need=[a(x, 4) for x in fr] if (ct == 0 and i == 0) else ()))
                return out
            groups.append(Group(c, frs, mk))
    S_phase(0); S_phase(1)
    for t in range(1, 15):
        S_phase(t + 1); PV_phase(t - 1)
    PV_phase(14); PV_phase(15)
    OWN = lambda ks, ct: v((ks * 2 + ct) * 8, 4)
    PART = lambda ks, ct: a(A_PART + (ks * 2 + ct) * 4, 4)
    OB = lambda kk, ct: OWN(kk, ct) if kk < 8 else PART(kk - 8, ct)
    OR = 64 * 896
    for st in range(3):
        mark(f"O_{st}")
        base = 128 + 32 * (st & 1)
        for j in range(8):
            if j < 4: c = newchunk(f"O s{st} j{j}", S_WO, V_DVB, S_OOWN + st, j * OR)
            else: c = newchunk(f"O s{st} j{j}", S_WO, V_DVB, S_OPAR + st, (j - 4) * OR)
            if st == 0 and j == 4: mark("O_part")
            for tt in range(4):
                frs = [tr_reads(TAC(tt), ksl * 4096) for ksl in range(2)]
                accf = (lambda ct, tt=tt, base=base: base + (tt * 2 + ct) * 4)
                groups.append(Group(c, frs, pair_mk(accf, (lambda i, ct, j=j: OB(2 * j + i, ct)), j == 0)))
    mark("O_3")
    for j in range(4):
        c = newchunk(f"O s3 j{j}", S_WO, V_DVB, S_O3, j * OR)
        for who in range(2):
            for ti in range(2):
                ad = (V_TS + who * 4 + ti, V_TS + who * 4 + 2 + ti)
                frs = [tr_reads(ad, ksl * 4096) for ksl in range(2)]
                accf = (lambda ct, ti=ti: 160 + (ti * 2 + ct) * 4)
                groups.append(Group(c, frs, pair_mk(accf, (lambda i, ct, j=j, who=who: OB(8 * who + 2 * j + i, ct)), j == 0 and who == 0)))
    mark("END")
    return chunks, groups, marks

def prologue():
    P = []
    E = P.append
    E(salu('s_cmp_ge_u32', s(2), 256)); E(raw("s_cbranch_scc1 L_main_end", 'branch'))
    E(raw(f"s_load_dwordx16 s[{S_KA}:{S_KA+15}], s[0:1], 0"))
    E(raw(f"s_load_dwordx8 s[{S_KA+16}:{S_KA+23}], s[0:1], 64"))
    if CFG.warm_code: P += warm_code()
    E(valu('v_and_b32', v(V_LANE), 63, v(0)))
    E(valu('v_lshrrev_b32', v(V_U0), 6, v(0)))
    E(valu('v_and_b32', v(V_N16), 15, v(V_LANE)))
    E(valu('v_readfirstlane_b32', s(S_W), v(V_U0)))
    E(valu('v_lshrrev_b32', v(V_GQ), 4, v(V_LANE)))
    E(valu('v_lshrrev_b32', v(V_R8), 3, v(V_LANE)))
    E(valu('v_lshlrev_b32', v(V_L16), 4, v(V_LANE)))
    E(salu('s_and_b32', s(S_KVH), s(2), 7)); E(salu('s_lshr_b32', s(S_RB), s(2), 3))
    E(salu('s_and_b32', s(S_PAR), s(S_KVH), 1))
    E(salu('s_and_b32', s(S_RH), s(S_W), 1)); E(salu('s_lshr_b32', s(S_CH), s(S_W), 1))
    E(salu('s_lshl_b32', s(S_WLDS), s(S_W), 12))
    E(valu('v_and_b32', v(V_U1), 7, v(V_LANE)))
    E(valu('v_lshlrev_b32', v(V_U2), 4, v(V_U1)))
    E(salu('s_mov_b32', s(S_T0), 896))
    E(valu('v_mad_u32_u24', v(V_U0), v(V_R8), s(S_T0), v(V_U2)))
    E(raw("s_waitcnt lgkmcnt(0)", 'wait_raw'))
    kx, kk, kv, kwq, kwo, kwg, kwu, kwd, kws = [S_KA + o for o in (0, 2, 4, 6, 8, 12, 14, 16, 22)]
    def srd(dst, ptr, nbytes):
        E(salu('s_mov_b32', s(dst), s(ptr))); E(salu('s_mov_b32', s(dst + 1), s(ptr + 1)))
        E(salu('s_mov_b32', s(dst + 2), nbytes)); E(salu('s_mov_b32', s(dst + 3), '0x00020000'))
    srd(S_X, kx, 2048 * 896)
    E(salu('s_mul_i32', s(S_T0), s(S_RB), 57344)); E(salu('s_mul_i32', s(S_T1), s(S_W), 14336))
    E(salu('s_add_u32', s(S_T0), s(S_T0), s(S_T1))); E(salu('s_add_u32', s(S_T1), s(S_T0), 7168))
    for p in range(2):
        for i in range(7):
            E(vload('buffer_load_dwordx4', v((p * 7 + i) * 4, 4), v(V_U0), s(S_X, 4), s(S_T0 + p), i * 128, tag='x'))
    E(salu('s_cmp_eq_u32', s(S_RH), 0))
    E(salu('s_cselect_b32', s(S_F1), s(kwg), s(kwu))); E(salu('s_cselect_b32', s(S_F1 + 1), s(kwg + 1), s(kwu + 1)))
    E(salu('s_mov_b32', s(S_F1 + 2), 448 * 3584)); E(salu('s_mov_b32', s(S_F1 + 3), '0x00020000'))
    srd(S_WQ, kwq, 448 * 8192); srd(S_WD, kwd, 1792 * 896); srd(S_WO, kwo, 4096 * 896)
    srd(S_WS, kws, 2 * 256 * 57344 + 256 * 128)
    for (dst, ptr) in ((S_K, kk), (S_V, kv)):
        E(salu('s_lshl_b32', s(S_T2), s(S_KVH), 20)); E(salu('s_add_u32', s(S_T2), s(S_T2), 1536 * 512))
        E(salu('s_add_u32', s(dst), s(ptr), s(S_T2))); E(salu('s_addc_u32', s(dst + 1), s(ptr + 1), 0))
        E(salu('s_mov_b32', s(dst + 2), 512 * 512)); E(salu('s_mov_b32', s(dst + 3), '0x00020000'))
    E(valu('v_lshrrev_b32', v(V_U2), 1, v(V_R8))); E(valu('v_and_b32', v(V_U2), 3, v(V_U2)))
    E(valu('v_lshlrev_b32', v(V_U2), 1, v(V_U2))); E(valu('v_xor_b32', v(V_U2), v(V_U2), v(V_U1)))
    E(valu('v_lshlrev_b32', v(V_SC16), 4, v(V_U2)))
    P += dv_setup(V_DVA, 3584)
    E(salu('s_mul_i32', s(S_T0), s(S_KVH), 7)); E(salu('s_lshr_b32', s(S_T0), s(S_T0), 1)); E(salu('s_lshl_b32', s(S_T0), s(S_T0), 7))
    E(salu('s_mul_i32', s(S_T1), s(S_CH), 32 * 3584)); E(salu('s_add_u32', s(S_T0), s(S_T0), s(S_T1)))
    for st in range(4):
        P += sel(S_T1, S_PAR, st * 128, (3 - st) * 128)
        E(salu('s_add_u32', s(S_F1B + st), s(S_T0), s(S_T1)))
    return P

def sel(dst, cond, v0, v1):
    d = (v1 - v0) & 0xffffffff
    return [salu('s_mul_i32', s(dst), s(cond), f"0x{d:x}"), salu('s_add_u32', s(dst), s(dst), v0)]

def dv_setup(dst, stride):
    out = [salu('s_mov_b32', s(S_T2), stride),
           valu('v_mad_u32_u24', v(dst), v(V_R8), s(S_T2), v(V_SC16))]
    for j in range(1, 4):
        out.append(valu('v_add_u32', v(dst + j), j * (8 * stride - 1024), v(dst)))
    return out
def dv_setup_K(dst):
    out = [valu('v_lshrrev_b32', v(V_U0), 5, v(V_LANE)), valu('v_and_b32', v(V_U1), 31, v(V_LANE)),
           salu('s_lshl_b32', s(S_T2), s(S_RH), 3),
           valu('v_xor_b32', v(V_U1), v(V_U1), v(V_U0)),
           valu('v_xor_b32', v(V_U1), s(S_T2), v(V_U1)),
           valu('v_lshlrev_b32', v(V_U0), 9, v(V_U0))]
    for j in range(4):
        out.append(valu('v_xor_b32', v(V_U2), 2 * j, v(V_U1)))
        out.append(valu('v_lshl_add_u32', v(dst + j), v(V_U2), 4, v(V_U0)))
    return out

S_GA = {V_DVA: 68, V_DVB: 70}
S_GC = 72
_last_base = {}
def chunk_dma(c, ch):
    slot = c % NSLOT
    if CFG.gdma:
        out = []
        ga = S_GA[ch.pair]
        if _last_base.get(ch.pair) != (ch.srd, ch.soff):
            _last_base[ch.pair] = (ch.srd, ch.soff)
            out += [salu('s_add_u32', s(ga), s(ch.srd), s(ch.soff)), salu('s_addc_u32', s(ga + 1), s(ch.srd + 1), 0)]
        out += [salu('s_add_u32', 'm0', s(S_WLDS), slot * SLOT),
                salu('s_add_u32', s(S_GC), s(ga), ch.imm), salu('s_addc_u32', s(S_GC + 1), s(ga + 1), 0)]
        for j in range(4): out.append(gdma(v(ch.dv + j), s(S_GC, 2), j * 1024, tag=('dma', c)))
        return out
    out = [salu('s_add_u32', 'm0', s(S_WLDS), slot * SLOT),
           salu('s_add_u32', s(S_SOFF), s(ch.soff), ch.imm)]
    for j in range(4):
        imm = j * 1024
        out.append(dma(v(ch.dv + j), s(ch.srd, 4), s(S_SOFF), imm, tag=('dma', c)))
    return out

V_DUM = 198
def warm_code():
    return [raw("s_getpc_b64 s[92:93]", 'salu', [], [s(92, 2)]), label("L_pc_here"),
            salu('s_and_b32', s(93), s(93), '0xffff'),
            raw("s_mov_b32 s94, L_all_code_end-L_pc_here", 'salu', [], [s(94)]), salu('s_mov_b32', s(95), '0x00020000'),
            salu('s_lshr_b32', s(96), s(2), 3), salu('s_and_b32', s(96), s(96), 3), salu('s_lshl_b32', s(96), s(96), 15),
            valu('v_lshlrev_b32', v(V_U3), 7, v(0)),
            vload('buffer_load_dword', v(198), v(V_U3), s(92, 4), s(96), 0, tag='warm')]
WARM_V = {'wq': 132, 'wd': 133, 'k': 134, 'v': 135, 'wo': 199}
WARM_S = {'wq': 4, 'wd': 5, 'k': 6, 'v': 7, 'wo': 43}
def warm_weights():
    W0, W1, W2 = 88, 89, 90
    T0, T2 = 64, 65
    G = CFG.warm_gran; lg = {64: 6, 128: 7}[G]
    head = [valu('v_mov_b32', v(W2), '0x7ffffff0')]
    setup = {}; issue = {}
    def lin(key, srd, nbytes, base):
        V, T1 = WARM_V[key], WARM_S[key]
        per = -(-nbytes // G // 128)
        o = [base(T1), salu('s_mul_i32', s(T2), s(T0), per * G), salu('s_add_u32', s(T1), s(T1), s(T2)),
             valu('v_lshlrev_b32', v(V), lg, v(V_LANE)),
             valu('v_cmp_gt_u32', 'vcc', per, v(V_LANE)), nop(0), valu('v_cndmask_b32', v(V), v(W2), v(V), 'vcc')]
        setup[key] = o; issue[key] = [vload('buffer_load_dword', v(198), v(V), s(srd, 4), s(T1), 0, tag='warm')]
    def strided(key, V, T1, srd, rowbytes, stride, nwaves, colbase):
        npr = rowbytes // G; lgr = npr.bit_length() - 1
        per = 448 * npr // nwaves
        o = list(colbase)
        o += [salu('s_mul_i32', s(T2), s(T0), per),
              valu('v_add_u32', v(W0), s(T2), v(V_LANE)),
              valu('v_lshrrev_b32', v(W1), lgr, v(W0)), valu('v_and_b32', v(W0), npr - 1, v(W0)),
              salu('s_mov_b32', s(T2), stride), valu('v_lshlrev_b32', v(W0), lg, v(W0)),
              valu('v_mad_u32_u24', v(V), v(W1), s(T2), v(W0)),
              valu('v_cmp_gt_u32', 'vcc', per, v(V_LANE)), nop(0), valu('v_cndmask_b32', v(V), v(W2), v(V), 'vcc')]
        setup[key] = o; issue[key] = [vload('buffer_load_dword', v(198), v(V), s(srd, 4), s(T1), 0, tag='warm')]
    strided('f1', 91, 43, S_F1, 512, 3584, 64,
            [salu('s_mul_i32', s(43), s(S_KVH), 7), salu('s_lshr_b32', s(43), s(43), 1), salu('s_lshl_b32', s(43), s(43), 7)])
    f1 = head + [salu('s_lshl_b32', s(T0), s(S_RB), 1), salu('s_add_u32', s(T0), s(T0), s(S_CH))] + setup.pop('f1') + issue.pop('f1')
    strided('wq', WARM_V['wq'], WARM_S['wq'], S_WQ, 1024, 8192, 128, [salu('s_lshl_b32', s(WARM_S['wq']), s(S_KVH), 10)])
    lin('wd', S_WD, 224 * 896, lambda r: salu('s_mul_i32', s(r), s(S_KVH), 224 * 896))
    lin('k', S_K, 262144, lambda r: salu('s_mov_b32', s(r), 0)); lin('v', S_V, 262144, lambda r: salu('s_mov_b32', s(r), 0))
    lin('wo', S_WO, 512 * 896, lambda r: salu('s_mul_i32', s(r), s(S_KVH), 512 * 896))
    allsetup = head + [salu('s_lshl_b32', s(T0), s(S_RB), 2), salu('s_add_u32', s(T0), s(T0), s(S_W))]
    for k in ('wq', 'wd', 'k', 'v', 'wo'): allsetup += setup[k]
    return f1, allsetup, issue

def prologue2():
    P = []; E = P.append
    E(salu('s_lshl_b32', s(S_T0), s(S_KVH), 1)); E(salu('s_add_u32', s(S_T0), s(S_T0), s(S_CH))); E(salu('s_lshl_b32', s(S_T0), s(S_T0), 9))
    E(salu('s_lshl_b32', s(S_T1), s(S_RH), 18)); E(salu('s_add_u32', s(S_QB), s(S_T0), s(S_T1)))
    KR = 32 * 896
    E(salu('s_mul_i32', s(S_T0), s(S_KVH), 224 * 896))
    E(salu('s_mul_i32', s(S_T1), s(S_RH), KR))
    for st in range(3):
        P += sel(S_T2, S_CH, st * 128, (6 - st) * 128)
        E(salu('s_add_u32', s(S_F2B + st), s(S_T0), s(S_T2))); E(salu('s_add_u32', s(S_F2B + st), s(S_F2B + st), s(S_T1)))
    P += sel(S_T2, S_CH, 0, 6 * 128); P += sel(S_F2C3, S_CH, 128, 5 * 128)
    E(salu('s_cmp_eq_u32', s(S_RH), 0)); E(salu('s_cselect_b32', s(S_T2), s(S_T2), s(S_F2C3)))
    E(salu('s_add_u32', s(S_F2C3), s(S_T0), s(S_T2)))
    P += sel(S_T2, S_CH, 6 * KR + 2 * 128, 6 * KR + 4 * 128); P += sel(S_F2C10, S_CH, 384, KR + 384)
    E(salu('s_cmp_eq_u32', s(S_RH), 0)); E(salu('s_cselect_b32', s(S_T2), s(S_T2), s(S_F2C10)))
    E(salu('s_add_u32', s(S_F2C10), s(S_T0), s(S_T2)))
    E(salu('s_mul_i32', s(S_T2), s(S_W), KR)); E(salu('s_add_u32', s(S_F2C11), s(S_T0), s(S_T2))); E(salu('s_add_u32', s(S_F2C11), s(S_F2C11), 384))
    E(salu('s_add_u32', s(S_F2C12), s(S_T0), 6 * KR + 384))
    E(salu('s_lshl_b32', s(S_KB), s(S_W), 12)); E(salu('s_lshl_b32', s(S_VB), s(S_W), 7))
    E(salu('s_lshl_b32', s(S_T0), s(S_KVH), 9)); E(salu('s_lshl_b32', s(S_T1), s(S_RH), 5)); E(salu('s_add_u32', s(S_T0), s(S_T0), s(S_T1)))
    E(salu('s_lshl_b32', s(S_T1), s(S_CH), 8)); E(salu('s_add_u32', s(S_T1), s(S_T0), s(S_T1))); E(salu('s_mul_i32', s(S_T1), s(S_T1), 896))
    E(salu('s_xor_b32', s(S_T2), s(S_CH), 1)); E(salu('s_lshl_b32', s(S_T2), s(S_T2), 8)); E(salu('s_add_u32', s(S_T0), s(S_T0), s(S_T2))); E(salu('s_mul_i32', s(S_T0), s(S_T0), 896))
    for st in range(3):
        P += sel(S_T2, S_CH, st * 128, (6 - st) * 128)
        E(salu('s_add_u32', s(S_OOWN + st), s(S_T1), s(S_T2))); E(salu('s_add_u32', s(S_OPAR + st), s(S_T0), s(S_T2)))
    E(salu('s_add_u32', s(S_O3), s(S_T1), 384))
    E(salu('s_mul_i32', s(S_T0), s(2), 57344))
    E(salu('s_mul_i32', s(S_T1), s(S_RH), 28672)); E(salu('s_add_u32', s(S_PB), s(S_T0), s(S_T1)))
    E(salu('s_add_u32', s(S_GB), s(S_PB), 256 * 57344))
    for st in range(3):
        P += sel(S_CB + st, S_CH, 2 * st * 2048, (12 - 2 * st) * 2048)
    P += sel(S_CB + 3, S_CH, 6 * 2048, 7 * 2048)
    for st in range(3):
        P += sel(S_T0, S_PAR, 2 * st, 2 * (3 - st) - 1)
        E(salu('s_add_u32', s(S_T0), s(S_T0), s(S_CH))); E(salu('s_lshl_b32', s(S_HI + st), s(S_T0), 12))
    P += sel(S_T0, S_PAR, 6 * 4096, 0)
    E(salu('s_lshl_b32', s(S_T1), s(S_CH), 3)); E(salu('s_add_u32', s(S_HI + 3), s(S_T0), s(S_T1)))
    E(salu('s_mov_b32', s(S_THR), lit(65536.0)))
    E(salu('s_mov_b32', s(S_ONES), '0x3f803f80'))
    E(valu('v_bfe_u32', v(V_U0), v(V_LANE), 2, 2))
    E(valu('v_lshl_add_u32', v(V_U1), v(V_GQ), 2, v(V_U0)))
    E(valu('v_lshrrev_b32', v(V_U2), 1, v(V_U1))); E(valu('v_and_b32', v(V_U2), 3, v(V_U2)))
    E(valu('v_and_b32', v(V_U3), 3, v(V_LANE))); E(valu('v_lshlrev_b32', v(V_U3), 3, v(V_U3)))
    E(valu('v_lshl_add_u32', v(V_U3), v(V_U1), 7, v(V_U3)))
    for tt in range(4):
        E(valu('v_xor_b32', v(V_U0), tt, v(V_U2)))
        E(valu('v_lshl_add_u32', v(V_TA + tt), v(V_U0), 5, v(V_U3)))
        E(valu('v_add_u32', v(V_TA + 4 + tt), HIOFF, v(V_TA + tt)))
    E(salu('s_lshl_b32', s(S_T0), s(S_CH), 13))
    for tt in range(8):
        E(valu('v_add_u32', v(V_TAC + tt), s(S_T0), v(V_TA + tt)))
    E(salu('s_lshl_b32', s(S_T0), s(S_CH), 1))
    for ti in range(2):
        E(salu('s_add_u32', s(S_T1), s(S_T0), ti))
        E(valu('v_xor_b32', v(V_U0), s(S_T1), v(V_U2)))
        E(valu('v_lshl_add_u32', v(V_TS + ti), v(V_U0), 5, v(V_U3)))
        E(valu('v_add_u32', v(V_TS + 2 + ti), HIOFF, v(V_TS + ti)))
    E(salu('s_lshl_b32', s(S_T0), s(S_PAR), 1)); E(salu('s_add_u32', s(S_T1), s(S_T0), s(S_CH)))
    E(valu('v_xor_b32', v(V_U0), s(S_T1), v(V_U2)))
    E(valu('v_lshl_add_u32', v(V_TH), v(V_U0), 5, v(V_U3)))
    E(valu('v_add_u32', v(V_TH + 1), HIOFF, v(V_TH)))
    for i in range(4):
        E(valu('v_add_u32', v(V_U0), 4 * i, v(V_GQ))); E(valu('v_xor_b32', v(V_U0), v(V_U0), v(V_N16)))
        E(valu('v_lshlrev_b32', v(V_U0), 4, v(V_U0)))
        E(valu('v_lshl_add_u32', v(V_KA + i), v(V_N16), 9, v(V_U0)))
        E(valu('v_add_u32', v(V_KA + 4 + i), HIOFF, v(V_KA + i)))
    E(salu('s_lshl_b32', s(S_T0), s(S_RH), 11)); E(salu('s_add_u32', s(S_T0), s(S_T0), XA))
    E(valu('v_add_u32', v(V_HR), s(S_T0), v(V_L16)))
    E(salu('s_lshl_b32', s(S_T0), s(S_W), 13)); E(salu('s_add_u32', s(S_T0), s(S_T0), XA))
    E(valu('v_add_u32', v(V_XW), s(S_T0), v(V_L16)))
    E(salu('s_xor_b32', s(S_T0), s(S_W), 2)); E(salu('s_lshl_b32', s(S_T0), s(S_T0), 13)); E(salu('s_add_u32', s(S_T0), s(S_T0), XA))
    E(valu('v_add_u32', v(V_XR), s(S_T0), v(V_L16)))
    E(valu('v_mov_b32', v(V_C1), lit(C_GELU1)))
    E(salu('s_lshl_b32', s(S_T0), s(S_W), 10)); E(salu('s_add_u32', s(S_T0), s(S_T0), XA + 28672))
    E(valu('v_lshlrev_b32', v(V_U0), 6, v(V_N16))); E(valu('v_add_u32', v(V_U0), s(S_T0), v(V_U0)))
    E(valu('v_lshl_add_u32', v(V_QW), v(V_GQ), 3, v(V_U0))); E(valu('v_lshl_add_u32', v(V_QR), v(V_GQ), 4, v(V_U0)))
    return P

def layernorm(late, wl):
    P = []; E = P.append
    late = list(late); wl = list(wl)
    def drip(q, n=1):
        while q and n > 0:
            x = q.pop(0); E(x)
            if x.kind in ('dma', 'vload'): n -= 1
    ACC = 64
    for p in range(2):
        b = ACC + 4 * p
        for k in range(4): E(valu('v_mov_b32', v(b + k), 0))
        for n in range(28):
            d = p * 28 + n
            E(valu('v_dot2_f32_bf16', v(b + (n & 1)), v(d), s(S_ONES), v(b + (n & 1))))
            E(valu('v_dot2_f32_bf16', v(b + 2 + (n & 1)), v(d), v(d), v(b + 2 + (n & 1))))
            if n % 7 == 3: drip(late)
        E(valu('v_add_f32', v(b), v(b), v(b + 1))); E(valu('v_add_f32', v(b + 2), v(b + 2), v(b + 3)))
    for mods in ("quad_perm:[1,0,3,2] row_mask:0xf bank_mask:0xf", "quad_perm:[2,3,0,1] row_mask:0xf bank_mask:0xf", "row_half_mirror row_mask:0xf bank_mask:0xf"):
        for p in range(2):
            for k in (0, 2):
                r = ACC + 4 * p + k
                E(valu('v_add_f32_dpp', v(r), v(r), v(r), mods=mods))
    for p in range(2):
        b = ACC + 4 * p
        E(valu('v_mul_f32', v(b), lit(1.0 / 448), v(b)))
        E(valu('v_mul_f32', v(b + 2), lit(1.0 / 448), v(b + 2)))
        E(valu('v_fma_f32', v(b + 2), '-' + v(b), v(b), v(b + 2)))
        E(valu('v_max_f32', v(b + 2), 0, v(b + 2)))
        E(valu('v_add_f32', v(b + 2), lit(1e-5), v(b + 2)))
        E(valu('v_rsq_f32', v(b + 2), v(b + 2)))
        E(valu('v_mul_f32', v(b), v(b), v(b + 2)))
        E(valu('v_sub_f32', v(b + 1), 0, v(b)))
    E(valu('v_and_b32', v(V_U0), 7, v(V_LANE)))
    E(valu('v_and_b32', v(V_U1), 3, v(V_U0)))
    E(valu('v_lshrrev_b32', v(V_U0), 2, v(V_U0))); E(valu('v_lshlrev_b32', v(V_U0), 6, v(V_U0)))
    E(valu('v_and_b32', v(V_U2), 1, v(V_U1))); E(valu('v_lshl_add_u32', v(V_U0), v(V_U2), 5, v(V_U0)))
    E(valu('v_lshrrev_b32', v(V_U1), 1, v(V_U1))); E(valu('v_lshl_add_u32', v(V_U0), v(V_U1), 3, v(V_U0)))
    E(salu('s_mov_b32', s(S_T0), XROW)); E(valu('v_mad_u32_u24', v(V_U0), v(V_R8), s(S_T0), v(V_U0)))
    E(salu('s_mul_i32', s(S_T1), s(S_W), 16 * XROW)); E(salu('s_add_u32', s(S_T1), s(S_T1), XSTAGE))
    E(valu('v_add_u32', v(V_U0), s(S_T1), v(V_U0)))
    E(valu('v_add_u32', v(V_U1), 8 * XROW, v(V_U0)))
    E(salu('s_mov_b32', s(S_T2), '0xffff0000'))
    T = 72
    for p in range(2):
        b = ACC + 4 * p
        for i in range(7):
            d0 = (p * 7 + i) * 4
            for k in range(4):
                t = T + 2 * k
                E(valu('v_lshlrev_b32', v(t), 16, v(d0 + k))); E(valu('v_and_b32', v(t + 1), s(S_T2), v(d0 + k)))
            for k in range(4):
                t = T + 2 * k
                if CFG.pkln:
                    x = I(f"v_pk_fma_f32 v[{t}:{t+1}], v[{t}:{t+1}], v[{b+2}:{b+3}], v[{b}:{b+1}] op_sel:[0,0,1] op_sel_hi:[1,0,1]", 'valu',
                          regs(v(t, 2)) + regs(v(b, 4)), regs(v(t, 2)))
                    E(x)
                else:
                    E(valu('v_fma_f32', v(t), v(t), v(b + 2), '-' + v(b))); E(valu('v_fma_f32', v(t + 1), v(t + 1), v(b + 2), '-' + v(b)))
            for k in range(4):
                t = T + 2 * k
                E(valu('v_cvt_pk_bf16_f32', v(d0 + k), v(t), v(t + 1)))
            E(ds_write2_b64(v(V_U0 + p), v(d0, 2), v(d0 + 2, 2), 16 * i, 16 * i + 2, tag='xw'))
            drip(wl)
    drip(late, 99); drip(wl, 99)
    E(wait_lgkm_tag('xw')); E(barrier())
    E(salu('s_lshl_b32', s(S_T0), s(S_RH), 5)); E(valu('v_add_u32', v(V_U0), s(S_T0), v(V_N16)))
    E(salu('s_mov_b32', s(S_T0), XROW)); E(valu('v_lshlrev_b32', v(V_U1), 4, v(V_GQ)))
    E(valu('v_mad_u32_u24', v(V_U0), v(V_U0), s(S_T0), v(V_U1))); E(valu('v_add_u32', v(V_U0), XSTAGE, v(V_U0)))
    for ks in range(14):
        for ct in range(2):
            E(ds_read('ds_read_b128', a(A_XB + (ks * 2 + ct) * 4, 4), v(V_U0), ks * 64 + ct * 16 * XROW, tag='xb'))
    return P

def interleave(*lists):
    out = []; its = [list(l) for l in lists]
    while any(its):
        for l in its:
            if l: out.append(l.pop(0))
    return out

def geglu(st):
    base = accset(st) if (st < 3 or not CFG.f1mix) else V_F1H
    out = []
    tis = range(2) if st < 3 else range(1)
    TT = 64; HP = 80
    out.append(valu('v_add_u32', v(V_HW), s(S_HI + st), v(V_HR)))
    for ct in range(2):
        for ti in tis:
            G = base + ((0 * 2 + ti) * 2 + ct) * 4; U = base + ((1 * 2 + ti) * 2 + ct) * 4
            t = [TT + k for k in range(4)]; e = [TT + 4 + k for k in range(4)]
            for k in range(4): out.append(valu('v_mul_f32', v(t[k]), v(G + k), v(G + k)))
            for k in range(4): out.append(valu('v_fmaak_f32', v(t[k]), v(t[k]), v(V_C1), lit(C_GELU0)))
            for k in range(4): out.append(valu('v_mul_f32', v(t[k]), v(G + k), v(t[k])))
            for k in range(4): out.append(valu('v_exp_f32', v(e[k]), v(t[k])))
            for k in range(4): out.append(valu('v_mul_f32', v(t[k]), v(G + k), v(U + k)))
            for k in range(4): out.append(valu('v_add_f32', v(e[k]), '1.0', v(e[k])))
            for k in range(4): out.append(valu('v_rcp_f32', v(e[k]), v(e[k])))
            hp = HP + ct * 4 + ti * 2
            for k in range(4): out.append(valu('v_mul_f32', v(t[k]), v(t[k]), v(e[k])))
            out.append(valu('v_cvt_pk_bf16_f32', v(hp), v(t[0]), v(t[1]))); out.append(valu('v_cvt_pk_bf16_f32', v(hp + 1), v(t[2]), v(t[3])))
        if st < 3: out.append(ds_write('ds_write_b128', v(V_HW), v(HP + ct * 4, 4), ct * 1024, tag='hw'))
        else: out.append(ds_write('ds_write_b64', v(V_HW), v(HP + ct * 4, 2), ct * 1024, tag='hw'))
    return out

def qconv(st):
    base = accset(4 + st); out = []
    for pp in range(2):
        for ct in range(2):
            X0 = base + ((2 * pp) * 2 + ct) * 4; X1 = base + ((2 * pp + 1) * 2 + ct) * 4
            t = 64 + 8 * ct; h = 80 + 4 * ct
            for k in range(4): out.append(valu('v_mul_f32', v(t + k), lit(C_QS), v(X0 + k)))
            for k in range(4): out.append(valu('v_mul_f32', v(t + 4 + k), lit(C_QS), v(X1 + k)))
            for k in range(4): out.append(valu('v_cvt_pk_bf16_f32', v(h + k), v(t + 2 * k), v(t + 2 * k + 1)))
            if CFG.qlds:
                ks = 2 * st + pp
                out.append(ds_write2_b64(v(V_QW), v(h, 2), v(h + 2, 2), 0, 4, tag='qw'))
                out.append(ds_read('ds_read_b128', a(A_Q + (ks * 2 + ct) * 4, 4), v(V_QR), 0, tag='qr'))
                continue
            out.append(valu('v_permlane32_swap_b32', v(h), v(h + 2))); out.append(valu('v_permlane32_swap_b32', v(h + 1), v(h + 3)))
            out.append(nop(0))
            out.append(valu('v_permlane16_swap_b32', v(h), v(h + 2))); out.append(valu('v_permlane16_swap_b32', v(h + 1), v(h + 3)))
            ks = 2 * st + pp
            for k in range(4): out.append(valu('v_accvgpr_write_b32', a(A_Q + (ks * 2 + ct) * 4 + k), v(h + k)))
    return out

def gconv(st):
    base = accset(8 + st); out = []
    pps = range(2) if st < 3 else range(1)
    for pp in pps:
        for ct in range(2):
            if st < 3: X0 = base + ((2 * pp) * 2 + ct) * 4; X1 = base + ((2 * pp + 1) * 2 + ct) * 4
            else: X0 = base + (0 * 2 + ct) * 4; X1 = base + (1 * 2 + ct) * 4
            h = 80 + 4 * ct
            out.append(valu('v_cvt_pk_bf16_f32', v(h), v(X0), v(X0 + 1))); out.append(valu('v_cvt_pk_bf16_f32', v(h + 1), v(X0 + 2), v(X0 + 3)))
            out.append(valu('v_cvt_pk_bf16_f32', v(h + 2), v(X1), v(X1 + 1))); out.append(valu('v_cvt_pk_bf16_f32', v(h + 3), v(X1 + 2), v(X1 + 3)))
            li = st * 2 + pp
            for k in range(4): out.append(valu('v_accvgpr_write_b32', a(A_G + (li * 2 + ct) * 4 + k), v(h + k)))
    return out
def gstore(li, ct):
    st, pp = li // 2, li % 2
    return [salu('s_add_u32', s(S_T0), s(S_GB), s(S_CB + st)),
            vstore('buffer_store_dwordx4', a(A_G + (li * 2 + ct) * 4, 4), v(V_L16), s(S_WS, 4), s(S_T0), pp * 2048 + ct * 1024, (CFG.gstore_flags if CFG.gstore_flags is not None else CFG.store_flags).replace('_', ' ').strip(), tag='gst')]

def sconv(st):
    base = 128 + 32 * (st & 1); out = []
    pps = range(2) if st < 3 else range(1)
    out.append(salu('s_add_u32', s(S_T1), s(S_PB), s(S_CB + st)))
    n = 0
    for pp in pps:
        for ct in range(2):
            if st < 3: X0 = base + ((2 * pp) * 2 + ct) * 4; X1 = base + ((2 * pp + 1) * 2 + ct) * 4
            else: X0 = 160 + (0 * 2 + ct) * 4; X1 = 160 + (1 * 2 + ct) * 4
            h = 192 + 4 * (n & 1); n += 1
            out.append(valu('v_cvt_pk_bf16_f32', v(h), v(X0), v(X0 + 1))); out.append(valu('v_cvt_pk_bf16_f32', v(h + 1), v(X0 + 2), v(X0 + 3)))
            out.append(valu('v_cvt_pk_bf16_f32', v(h + 2), v(X1), v(X1 + 1))); out.append(valu('v_cvt_pk_bf16_f32', v(h + 3), v(X1 + 2), v(X1 + 3)))
            out.append(vstore('buffer_store_dwordx4', v(h, 4), v(V_L16), s(S_WS, 4), s(S_T1), pp * 2048 + ct * 1024, CFG.store_flags.replace('_', ' ').strip(), tag='sst'))
    return out

def xlane_reduce(op, reg, tmp):
    return [valu('v_mov_b32', v(tmp), v(reg)), nop(0), valu('v_permlane16_swap_b32', v(reg), v(tmp)), nop(0), valu(op, v(reg), v(reg), v(tmp)),
            valu('v_mov_b32', v(tmp), v(reg)), nop(0), valu('v_permlane32_swap_b32', v(reg), v(tmp)), nop(0), valu(op, v(reg), v(reg), v(tmp))]

def Sreg(t, T, ct): return V_S + 16 * (t & 1) + (ct * 2 + T) * 4
def Preg(t, ct): return V_P + 8 * (t & 1) + ct * 4

def softmax_first():
    out = []
    for ct in range(2):
        r = [Sreg(0, 0, ct) + k for k in range(4)] + [Sreg(0, 1, ct) + k for k in range(4)]
        m = V_T + ct
        out.append(valu('v_max3_f32', v(m), v(r[0]), v(r[1]), v(r[2])))
        out.append(valu('v_max3_f32', v(m), v(m), v(r[3]), v(r[4])))
        out.append(valu('v_max3_f32', v(m), v(m), v(r[5]), v(r[6])))
        out.append(valu('v_max_f32', v(m), v(m), v(r[7])))
    a0 = xlane_reduce('v_max_f32', V_T, V_T + 2); a1 = xlane_reduce('v_max_f32', V_T + 1, V_T + 3)
    out += interleave(a0, a1)
    for ct in range(2):
        for k in range(4): out.append(valu('v_sub_f32', v(V_NEGM + 4 * ct + k), 0, v(V_T + ct)))
    for ct in range(2):
        for T in range(2):
            for k in range(4): out.append(valu('v_add_f32', v(Sreg(0, T, ct) + k), v(V_NEGM + 4 * ct), v(Sreg(0, T, ct) + k)))
    out.append(valu('v_mov_b32', v(V_L0), 0)); out.append(valu('v_mov_b32', v(V_L1), 0))
    return out
def s1_fix():
    out = []
    for ct in range(2):
        for T in range(2):
            for k in range(4): out.append(valu('v_add_f32', v(Sreg(1, T, ct) + k), v(V_NEGM + 4 * ct), v(Sreg(1, T, ct) + k)))
    return out
def softmax_body(t):
    out = []
    for ct in range(2):
        ts = V_TS0 + ct
        for T in range(2):
            S = Sreg(t, T, ct); e = V_T + 4 * T
            for k in range(4): out.append(valu('v_exp_f32', v(e + k), v(S + k)))
            if T == 0:
                out.append(valu('v_add_f32', v(ts), v(e), v(e + 1)))
            else:
                out.append(valu('v_add_f32', v(ts), v(ts), v(e)));
            out.append(valu('v_cvt_pk_bf16_f32', v(Preg(t, ct) + 2 * T), v(e), v(e + 1)))
            if T == 1: out.append(valu('v_add_f32', v(ts), v(ts), v(e + 1)))
            out.append(valu('v_add_f32', v(ts), v(ts), v(e + 2)))
            out.append(valu('v_cvt_pk_bf16_f32', v(Preg(t, ct) + 2 * T + 1), v(e + 2), v(e + 3)))
            out.append(valu('v_add_f32', v(ts), v(ts), v(e + 3)))
    return out
def softmax_check(t):
    return [valu('v_max_f32', v(V_TM), v(V_TS0), v(V_TS1)),
            valu('v_cmp_lt_f32', 'vcc', s(S_THR), v(V_TM)),
            raw(f"s_cbranch_vccnz L_slow_{t}", 'branch', ['vcc']),
            label(f"L_back_{t}"),
            valu('v_add_f32', v(V_L0), v(V_L0), v(V_TS0)), valu('v_add_f32', v(V_L1), v(V_L1), v(V_TS1))]

def slow_path(par):
    t = par
    o = []
    o.append(label(f"L_slowsub_{par}"))
    o.append(nop(15))
    for ct in range(2):
        r = [Sreg(t, 0, ct) + k for k in range(4)] + [Sreg(t, 1, ct) + k for k in range(4)]
        m = V_T + ct
        o += [valu('v_max3_f32', v(m), v(r[0]), v(r[1]), v(r[2])), valu('v_max3_f32', v(m), v(m), v(r[3]), v(r[4])),
              valu('v_max3_f32', v(m), v(m), v(r[5]), v(r[6])), valu('v_max_f32', v(m), v(m), v(r[7]))]
        o += xlane_reduce('v_max_f32', m, V_T + 2)
        o.append(valu('v_max_f32', v(m), 0, v(m)))
    for ct in range(2):
        d = V_T + ct; f = V_T + 2 + ct
        o.append(valu('v_sub_f32', v(f), 0, v(d))); o.append(valu('v_exp_f32', v(f), v(f)))
        for k in range(4): o.append(valu('v_sub_f32', v(V_NEGM + 4 * ct + k), v(V_NEGM + 4 * ct + k), v(d)))
        for tt in (t, t + 1):
            for T in range(2):
                for k in range(4): o.append(valu('v_sub_f32', v(Sreg(tt, T, ct) + k), v(Sreg(tt, T, ct) + k), v(d)))
        o.append(valu('v_mul_f32', v(V_L0 + ct), v(V_L0 + ct), v(f)))
        for dt in range(16):
            b = ((dt >> 1) * 2 + ct) * 8 + (dt & 1) * 4
            for k in range(4): o.append(valu('v_mul_f32', v(b + k), v(b + k), v(f)))
    o += softmax_body(t)
    o.append(nop(3))
    o.append(raw(f"s_setpc_b64 s[{S_RET}:{S_RET+1}]", 'branch', [s(S_RET, 2)]))
    return o

def onorm(i):
    ct = i & 1; b = 8 * i; rl = V_RL0 + ct; t = V_T
    out = []
    for k in range(8): out.append(valu('v_mul_f32', v(t + k), v(b + k), v(rl)))
    for k in range(4): out.append(valu('v_cvt_pk_bf16_f32', v(b + k), v(t + 2 * k), v(t + 2 * k + 1)))
    if i < 8: out.append(ds_write('ds_write_b128', v(V_XW), v(b, 4), i * 1024, tag='ow1'))
    return out


FLAGBASE = 2 * 256 * 57344
S_DBG, S_XS, S_OUTS = 12, 16, 20
V_Z = 94
V_FLAG = 241
V_FL0 = 242
S_B0, S_B1 = 50, 51
S_PO0, S_PO1, S_OO0, S_OO1 = 52, 53, 54, 55
S_LO, S_HI16 = 56, 57
def flag_setup():
    a1 = [raw(f"s_load_dwordx2 s[{S_DBG}:{S_DBG+1}], s[0:1], 80", 'salu', [], [s(S_DBG, 2)])]
    a2 = [raw("s_waitcnt lgkmcnt(0)", 'wait_raw'), salu('s_mov_b32', s(S_DBG + 2), 256), salu('s_mov_b32', s(S_DBG + 3), '0x00020000'),
          valu('v_mov_b32', v(V_FLAG), '0x7ffffff0'), valu('v_mov_b32', v(V_U0), s(2)),
          salu('s_lshl_b32', s(S_T2), s(S_W), 6), valu('v_add_u32', v(V_U1), s(S_T2), v(V_LANE)),
          valu('v_cmp_eq_u32', 'vcc', 0, v(V_U1)), nop(1), valu('v_cndmask_b32', v(V_FLAG), v(V_FLAG), v(V_U0), 'vcc')]
    return a1, a2
def flag_store(val):
    return [valu('v_mov_b32', v(V_U1), val),
            vstore('buffer_store_byte', v(V_U1), v(V_FLAG), s(S_DBG, 4), '0', 0, 'sc1', tag='flag')]
def wsflag_store(val, vreg):
    return [salu('s_lshl_b32', s(S_T0), s(2), 7), salu('s_add_u32', s(S_T0), s(S_T0), FLAGBASE), valu('v_mov_b32', v(V_U1), val),
            vstore('buffer_store_dword', v(V_U1), v(vreg), s(S_WS, 4), s(S_T0), 0, 'sc1', tag='wsflag')]
def flag_load():
    return [salu('s_lshl_b32', s(S_T2), s(S_RB), 3), valu('v_mov_b32', v(V_U2), 0),
            vload('buffer_load_dwordx2', v(V_FL0, 2), v(V_U2), s(S_DBG, 4), s(S_T2), 0, 'sc1', tag='fl')]
def flags_nonzero():
    return [valu('v_lshrrev_b32', v(V_U0), 1, v(V_FL0)), valu('v_lshrrev_b32', v(V_U1), 1, v(V_FL0 + 1)),
            valu('v_or_b32', v(V_U0), v(V_U0), v(V_FL0)), valu('v_or_b32', v(V_U1), v(V_U1), v(V_FL0 + 1)),
            valu('v_and_b32', v(V_U0), v(V_U0), v(V_U1)), valu('v_and_b32', v(V_U0), '0x01010101', v(V_U0)),
            valu('v_cmp_eq_u32', 'vcc', '0x01010101', v(V_U0))]
def tail_setup():
    a1 = [raw(f"s_load_dwordx2 s[{S_XS}:{S_XS+1}], s[0:1], 0", 'salu', [], [s(S_XS, 2)]),
          raw(f"s_load_dwordx2 s[{S_OUTS}:{S_OUTS+1}], s[0:1], 72", 'salu', [], [s(S_OUTS, 2)])]
    o = [raw("s_waitcnt lgkmcnt(0)", 'wait_raw')]
    for r in (S_XS, S_OUTS): o += [salu('s_mov_b32', s(r + 2), 2048 * 896), salu('s_mov_b32', s(r + 3), '0x00020000')]
    o += [salu('s_mul_i32', s(S_B0), s(S_KVH), 7), salu('s_add_u32', s(S_B0), s(S_B0), s(S_W)),
          salu('s_add_u32', s(S_B1), s(S_B0), 4), salu('s_cmp_eq_u32', s(S_W), 3), salu('s_cselect_b32', s(S_B1), s(S_B0), s(S_B1))]
    for (b, po, oo) in ((S_B0, S_PO0, S_OO0), (S_B1, S_PO1, S_OO1)):
        o += [salu('s_mul_i32', s(po), s(S_RB), 8 * 57344), salu('s_lshl_b32', s(S_T0), s(b), 10), salu('s_add_u32', s(po), s(po), s(S_T0))]
        o += [salu('s_cmp_ge_u32', s(b), 28), salu('s_cselect_b32', s(S_T0), 1, 0), salu('s_mul_i32', s(S_T1), s(S_T0), 28), salu('s_sub_u32', s(S_T1), s(b), s(S_T1)),
              salu('s_lshl_b32', s(oo), s(S_RB), 6), salu('s_lshl_b32', s(S_T0), s(S_T0), 5), salu('s_add_u32', s(oo), s(oo), s(S_T0)),
              salu('s_and_b32', s(S_T0), s(S_T1), 1), salu('s_lshl_b32', s(S_T0), s(S_T0), 4), salu('s_add_u32', s(oo), s(oo), s(S_T0)),
              salu('s_mul_i32', s(oo), s(oo), 896), salu('s_lshr_b32', s(S_T1), s(S_T1), 1), salu('s_lshl_b32', s(S_T1), s(S_T1), 6), salu('s_add_u32', s(oo), s(oo), s(S_T1))]
    o += [salu('s_mov_b32', s(S_LO), '0x00003f80'), salu('s_mov_b32', s(S_HI16), '0x3f800000')]
    return a1, o
def part_loads(which, dst):
    out = []
    for blk, po in enumerate((S_PO0, S_PO1)):
        for k in range(8):
            out.append(salu('s_add_u32', s(48 + (k & 1)), s(po), which * 256 * 57344 + k * 57344))
            out.append(vload('buffer_load_dwordx4', v(dst(blk, k), 4), v(V_L16), s(S_WS, 4), s(48 + (k & 1)), 0, 'sc1', tag='pl%d' % which))
    return out
def part_sum(dst, acc):
    out = []
    for k in range(8):
        for d in range(4):
            for h, sel_ in enumerate((S_LO, S_HI16)):
                r = acc + 2 * d + h
                out.append(valu('v_dot2_f32_bf16', v(r), v(dst(k) + d), s(sel_), v(r) if k else '0'))
    return out
GDST = lambda blk, k: 8 * (blk * 8 + k) + 4
SDST = lambda blk, k: 128 + (blk * 8 + k) * 4
def fused_tail():
    P = []; E = P.append
    def stamp(k):
        if CFG.stamps == 't': E(raw(f"s_memrealtime s[{74+2*k}:{75+2*k}]", 'salu'))
    stamp(1)
    if CFG.gl_early:
        E(raw("s_waitcnt vmcnt(0)", 'wait_raw'))
    else:
        P += part_loads(1, GDST)
        E(wait_vm_tag(['sst']))
    stamp(2); E(barrier())
    E(valu('v_cmp_gt_u32', 'vcc', 256, v(V_FLAG))); E(valu('v_cndmask_b32', v(V_U0), v(V_FLAG), 0, 'vcc'))
    P += wsflag_store(2, V_U0)
    GA = [200, 208]
    for blk in range(2): P += part_sum(lambda k: GDST(blk, k), GA[blk])
    for blk in range(2):
        g = GA[blk]; t = 216 + 8 * blk
        for k in range(8): E(valu('v_mul_f32', v(t + k), lit(-math.log2(math.e)), v(g + k)))
        for k in range(8): E(valu('v_exp_f32', v(t + k), v(t + k)))
        for k in range(8): E(valu('v_add_f32', v(t + k), '1.0', v(t + k)))
        for k in range(8): E(valu('v_rcp_f32', v(t + k), v(t + k)))
        for k in range(8): E(valu('v_mul_f32', v(g + k), v(g + k), v(t + k)))
    E(salu('s_mov_b32', s(S_T0), 896)); E(valu('v_lshlrev_b32', v(232), 4, v(V_GQ))); E(valu('v_mad_u32_u24', v(232), v(V_N16), s(S_T0), v(232)))
    stamp(3)
    E(salu('s_cmp_eq_u32', s(S_W), 3)); E(raw("s_cbranch_scc0 L_poll_done", 'branch'))
    E(salu('s_mov_b32', s(S_T1), CFG.spin))
    E(salu('s_lshl_b32', s(S_T2), s(S_RB), 10)); E(salu('s_add_u32', s(S_T2), s(S_T2), FLAGBASE))
    E(valu('v_lshlrev_b32', v(V_U2), 7, v(V_LANE))); E(valu('v_mov_b32', v(V_U1), '0x7ffffff0'))
    E(valu('v_cmp_gt_u32', 'vcc', 8, v(V_LANE))); E(valu('v_cndmask_b32', v(V_U2), v(V_U1), v(V_U2), 'vcc'))
    E(label("L_poll"))
    E(raw(f"buffer_load_dword v{V_FL0}, v{V_U2}, s[{S_WS}:{S_WS+3}], s{S_T2} offen sc1", 'salu'))
    E(raw("s_waitcnt vmcnt(0)", 'wait_raw'))
    E(raw(f"v_cmp_eq_u32 vcc, 2, v{V_FL0}", 'salu')); E(raw("s_nop 4", 'salu'))
    E(raw("s_and_b32 s3, vcc_lo, 0xff", 'salu')); E(raw("s_cmp_eq_u32 s3, 0xff", 'salu'))
    E(raw("s_cbranch_scc1 L_poll_done", 'branch'))
    if CFG.poll_sleep: E(raw(f"s_sleep {CFG.poll_sleep}", 'salu'))
    E(raw(f"s_sub_u32 s{S_T1}, s{S_T1}, 1", 'salu')); E(raw(f"s_cmp_lg_u32 s{S_T1}, 0", 'salu')); E(raw("s_cbranch_scc1 L_poll", 'branch'))
    E(label("L_poll_done"))
    E(barrier())
    stamp(4)
    P += part_loads(0, SDST)
    XD = [192, 196]
    for blk, oo in enumerate((S_OO0, S_OO1)): E(vload('buffer_load_dwordx4', v(XD[blk], 4), v(232), s(S_XS, 4), s(oo), 0, tag='xf'))
    E(salu('s_mov_b32', s(S_T2), '0xffff0000'))
    for blk in range(2):
        SA = 8 * blk
        ps = part_sum(lambda k: SDST(blk, k), SA)
        if blk == 0 and CFG.stamps == 't': ps.insert(1, raw("s_memrealtime s[84:85]", 'salu'))
        if blk == 1 and CFG.stamps == 't': ps.append(raw("s_memrealtime s[86:87]", 'salu'))
        P += ps
        g = GA[blk]; h = 16 + 4 * blk; u = 24 + 16 * blk
        for k in range(8): E(valu('v_mul_f32', v(SA + k), v(SA + k), v(g + k)))
        for k in range(4): E(valu('v_cvt_pk_bf16_f32', v(h + k), v(SA + 2 * k), v(SA + 2 * k + 1)))
        E(valu('v_permlane32_swap_b32', v(h), v(h + 2))); E(valu('v_permlane32_swap_b32', v(h + 1), v(h + 3)))
        E(valu('v_permlane16_swap_b32', v(h), v(h + 2))); E(valu('v_permlane16_swap_b32', v(h + 1), v(h + 3)))
        for d in range(4):
            E(valu('v_lshlrev_b32', v(u + 2 * d), 16, v(h + d))); E(valu('v_and_b32', v(u + 2 * d + 1), s(S_T2), v(h + d)))
            E(valu('v_lshlrev_b32', v(u + 8 + 2 * d), 16, v(XD[blk] + d))); E(valu('v_and_b32', v(u + 8 + 2 * d + 1), s(S_T2), v(XD[blk] + d)))
        for k in range(8): E(valu('v_add_f32', v(u + k), v(u + k), v(u + 8 + k)))
        for k in range(4): E(valu('v_cvt_pk_bf16_f32', v(h + k), v(u + 2 * k), v(u + 2 * k + 1)))
        E(vstore('buffer_store_dwordx4', v(h, 4), v(232), s(S_OUTS, 4), s((S_OO0, S_OO1)[blk]), 0, CFG.out_flags))
    return P

def units(x):
    if x.kind == 'trans': return 2
    if x.kind == 'nop': return x.tag + 1
    if x.kind == 'label': return 0
    return 1

def build():
    _last_base.clear()
    chunks, groups, marks = build_main()
    nchunks = len(chunks)
    fcount = 0
    for g in groups:
        g.bufs = []
        for _ in g.frs:
            g.bufs.append(A_FB + 4 * (fcount % CFG.nb)); fcount += 1
        g.f0 = fcount - len(g.frs)
        g.mf = g.mk(g.bufs)
    merged = set()
    if CFG.merge_waits:
        gi = 0
        while gi + 1 < len(groups):
            g, h = groups[gi], groups[gi + 1]
            nm = chunks[g.chunk].name
            on = (CFG.merge_waits == 'all') or (CFG.merge_waits == 'att' and nm[0] in 'KV') or (CFG.merge_waits == 'atto' and nm[0] in 'KVO') or (CFG.merge_waits == 'k' and nm[0] == 'K')
            if on:
                for b in h.bufs: g.mf[0].extra_need |= set(regs(a(b, 4)))
                merged.add(gi)
            gi += 2
    mstart = []; m = 0
    for g in groups:
        mstart.append(m); m += len(g.mf)
    mstart.append(m); NM = m
    M = {k: mstart[i] for k, i in marks.items()}
    chunk_first_m = {}
    for gi, g in enumerate(groups): chunk_first_m.setdefault(g.chunk, mstart[gi])
    chunk_first_m[nchunks] = NM
    def first_chunk(name):
        return min(i for i, c in enumerate(chunks) if c.name.startswith(name))
    forced = {first_chunk("O s0 j0"), first_chunk("O s0 j2"), first_chunk("O s0 j4"), first_chunk("O s0 j6")}
    bars = []; b = 0
    while b < nchunks:
        bars.append(b)
        b += 1 if (CFG.bar_every == 1 or (b + 1) in forced) else 2
    barset = set(bars)
    nextbar = {bb: (bars[i + 1] if i + 1 < len(bars) else nchunks) for i, bb in enumerate(bars)}
    def bar_at_or_after(c):
        return min(bb for bb in bars if bb >= c)

    side = []
    seq = [0]
    def spread(ins, m0, m1, early=True):
        n = len(ins)
        for k, x in enumerate(ins):
            side.append([m0 + (m1 - m0) * k / max(n, 1), seq[0], m0 if early else None, x]); seq[0] += 1
    def at(ins, m0):
        for x in ins:
            side.append([m0, seq[0], None, x]); seq[0] += 1
    LAT = 6
    if CFG.f1mix:
        spread(geglu(0), M["F1_1"] + LAT, M["F1_2"] - 2)
        spread(geglu(1), M["F1_2"] + LAT, M["Q_0"] - 2)
        spread(geglu(2), M["Q_0"] + LAT, M["Q_0"] + 76)
        spread(geglu(3), M["Q_0"] + 78, M["Q_1"] - 6)
    else:
        spread(geglu(0), M["F1_1"] + LAT, M["F1_2"] + 20)
        spread(geglu(1), M["F1_2"] + 24, M["F1_3"] + 10)
        spread(geglu(2), M["F1_3"] + 14, M["Q_0"] + 50)
        spread(geglu(3), M["Q_0"] + 54, M["Q_1"] - 8)
    pre_dma = {}
    pre_dma[first_chunk("Q ")] = dv_setup(V_DVB, 8192)
    pre_dma[first_chunk("F2")] = dv_setup(V_DVA, 896)
    pre_dma[first_chunk("K0")] = dv_setup_K(V_DVB)
    pre_dma[first_chunk("V0")] = dv_setup(V_DVA, 512)
    pre_dma[first_chunk("O ")] = dv_setup(V_DVB, 896)
    qn = ["Q_1", "Q_2", "Q_3", "F2_0"]; qe = ["Q_2", "Q_3", "F2_0", "F2_1"]
    for st in range(4):
        spread(qconv(st), M[qn[st]] + LAT, M[qe[st]] - 8)
    hc = bar_at_or_after(first_chunk("Q s2 j0"))
    fence = {hc: ['hw']}; fence_count = {'hw': 8, 'ow1': 8, 'ow2': 8, 'pr1': 8}
    q3 = first_chunk("Q s3 j0")
    for i in range(7):
        m0 = chunk_first_m[q3 + i // 2 + 1] + 1
        at([ds_read('ds_read_b128', a(A_H + (i * 2 + ct) * 4, 4), v(V_HR), i * 4096 + ct * 1024, tag='hr') for ct in range(2)], m0 + 2 * (i & 1))
    spread(gconv(0), M["F2_1"] + LAT, M["F2_2"] - 8)
    spread(gconv(1), M["F2_2"] + LAT, M["F2_3"] - 8)
    spread(gconv(2), M["F2_3"] + LAT, M["S_0"] + 8)
    spread(gconv(3), M["S_0"] + 12, M["S_1"] - 2)
    spread(softmax_first() + softmax_body(0), M["S_1"] + LAT, M["S_2"] - 2)
    at([valu('v_add_f32', v(V_L0), v(V_L0), v(V_TS0)), valu('v_add_f32', v(V_L1), v(V_L1), v(V_TS1))], M["S_2"] - 1)
    for t in range(1, 16):
        if t < 15: m0, m1 = M[f"S_{t+1}"], (M[f"S_{t+2}"] if t < 14 else M["PV_14"])
        else: m0, m1 = M["PV_14"], M["PV_15"]
        body = softmax_body(t)
        if t == 1: body = s1_fix() + body
        spread(body, m0 + (LAT if t == 1 else 1), m1 - 3)
        at(softmax_check(t), m1 - 1)
    k = 0
    for li in range(7):
        for ct in range(2):
            if CFG.fused: t = 1 + k // 2; off = 8 + 12 * (k & 1)
            else: t = 1 + k; off = 8
            at(gstore(li, ct), M[f"PV_{t-1}"] + off); k += 1
    if CFG.fused:
        fa1, fa2 = flag_setup()
        at(fa1, M["S_2"] + 4); at(fa2, M["S_2"] + 24)
        ta1, ta2 = tail_setup()
        at(ta1, M["O_0"] + 40); at(ta2, M["O_part"] + 20)
    fin = interleave(xlane_reduce('v_add_f32', V_L0, V_T), xlane_reduce('v_add_f32', V_L1, V_T + 1))
    fin += [valu('v_rcp_f32', v(V_RL0), v(V_L0)), valu('v_rcp_f32', v(V_RL1), v(V_L1))]
    spread(fin, M["PV_15"], M["PV_15"] + 10, early=False)
    allnorm = []
    for ks in range(8): allnorm += onorm(2 * ks) + onorm(2 * ks + 1)
    spread(allnorm, M["PV_15"] + 12, M["O_0"] + 28, early=False)
    oj2, oj4, oj6 = first_chunk("O s0 j2"), first_chunk("O s0 j4"), first_chunk("O s0 j6")
    fence[oj2] = ['ow1']; fence[oj4] = ['pr1']; fence[oj6] = ['ow2']
    after_bar = {}
    vmfence = {}
    if CFG.fused:
        gb = bar_at_or_after(first_chunk("K11"))
        vmfence[gb] = ['gst']; fence_count_vm = {'gst': 14}
        after_bar[gb] = flag_store(1)
        fb = bar_at_or_after(first_chunk("O s1 j0"))
        after_bar[fb] = flag_load()
        cb = bar_at_or_after(first_chunk("O s1 j6"))
        after_bar[cb] = flags_nonzero() + [nop(3), raw("s_cbranch_vccz L_gspin", 'branch', ['vcc']), label("L_gback")]
    after_bar[oj2] = [ds_read('ds_read_b128', a(A_PART + i * 4, 4), v(V_XR), i * 1024, tag='pr1') for i in range(8)]
    after_bar[oj4] = [ds_write('ds_write_b128', v(V_XW), v(8 * i, 4), (i - 8) * 1024, tag='ow2') for i in range(8, 16)]
    after_bar[oj6] = [ds_read('ds_read_b128', a(A_PART + i * 4, 4), v(V_XR), (i - 8) * 1024, tag='pr2') for i in range(8, 16)]
    o3 = [salu('s_lshl_b32', s(S_T0), s(S_CH), 13), salu('s_xor_b32', s(S_T2), s(S_T0), 8192)]
    for k in range(4): o3.append(valu('v_add_u32', v(V_TS + 4 + k), s(S_T2), v(V_TS + k)))
    for k in range(4): o3.append(valu('v_add_u32', v(V_TS + k), s(S_T0), v(V_TS + k)))
    spread(o3, M["O_1"] + 8, M["O_1"] + 30, early=False)
    spread(sconv(0), M["O_1"] + LAT, M["O_1"] + 60)
    spread(sconv(1), M["O_2"] + LAT, M["O_2"] + 60)
    spread(sconv(2), M["O_3"] + LAT, M["O_3"] + 40)
    tail = sconv(3)

    if CFG.warm_w:
        w_f1, w_setup, w_issue = warm_weights()
        for item in CFG.warm_main.split('+'):
            if not item: continue
            k, where, off = item.split(':')
            at(w_issue[k], M[where] + int(off))
    STAMP = ["F1_0", "Q_0", "F2_0", "S_0", "S_2", "PV_14", "O_0"]
    if CFG.stamps == 'pro': STAMP = ["F1_0", "F1_1", "F1_2", "F1_3"]
    if CFG.stamps == 'p2': STAMP = ["F1_0"]
    if CFG.stamps == 't': STAMP = ["O_3"]
    if CFG.stamps == 'f1': STAMP = ["F1_0", "F1_1", "F1_2", "F1_3", "Q_0", "Q_1", "Q_2"]
    if CFG.stamps == 'o': STAMP = ["PV_14", "PV_15", "O_0", "O_part", "O_1", "O_2", "O_3"]
    if CFG.stamps == 'q': STAMP = ["Q_0", "Q_1", "Q_2", "Q_3", "F2_0", "F2_2", "S_0"]
    if CFG.stamps == 'a': STAMP = ["S_2", "PV_0", "S_3", "PV_1", "S_4", "S_8", "S_12"]
    sbase = 3 if CFG.stamps == 'pro' else (6 if CFG.stamps == 'p2' else 0)
    if CFG.stamps:
        for k0, nm in enumerate(STAMP):
            k = k0 + sbase
            at([raw(f"s_memrealtime s[{74+2*k}:{75+2*k}]", 'salu')], M[nm])
    side.sort(key=lambda x: (x[0], x[1]))

    P = prologue()
    if CFG.warm_first and CFG.warm_w:
        xl = [x for x in P if x.kind == 'vload' and x.tag == 'x']
        P = [x for x in P if not (x.kind == 'vload' and x.tag == 'x')]
        k = [i for i, x in enumerate(P) if x.text.startswith('s_mov_b32 s11,')][0] + 1
        P = P[:k] + (w_f1 + xl if CFG.warm_first == 1 else xl + w_f1) + P[k:]
    if CFG.stamps:
        P.insert(2, raw("s_memrealtime s[88:89]", 'salu'))
        P.append(raw("s_mov_b32 s67, s88", 'salu'))
    pro_v = []
    if CFG.stamps == 'p2': P.append(raw("s_memrealtime s[74:75]", 'salu'))
    wc = []
    P += wc
    if CFG.warm_w: P += w_setup
    if CFG.fused:
        P += [valu('v_mov_b32', v(V_Z), '0x7ffffff0'), salu('s_lshl_b32', s(S_T2), s(S_W), 6), valu('v_add_u32', v(V_U1), s(S_T2), v(V_LANE)),
              valu('v_cmp_eq_u32', 'vcc', 0, v(V_U1)), nop(1), valu('v_cndmask_b32', v(V_Z), v(V_Z), 0, 'vcc')]
        P += wsflag_store(0, V_Z)
    P += prologue2()
    late = chunk_dma(0, chunks[0]) + chunk_dma(1, chunks[1])
    wl_b = chunk_dma(2, chunks[2]) + chunk_dma(3, chunks[3])
    if CFG.stamps == 'p2': P.append(raw("s_memrealtime s[76:77]", 'salu'))
    if CFG.stamps == 'p2': P.append(raw("s_memrealtime s[78:79]", 'salu'))
    LN = layernorm(late, wl_b)
    if CFG.stamps == 'p2':
        kb = [i for i, x in enumerate(LN) if x.kind == 'barrier'][0]
        LN.insert(kb, raw("s_memrealtime s[84:85]", 'salu'))
        kd = [i for i, x in enumerate(LN) if x.text.startswith('v_add_f32_dpp')][0]
        LN.insert(kd, raw("s_memrealtime s[82:83]", 'salu'))
        LN.insert(10, raw("s_memrealtime s[80:81]", 'salu'))
    if CFG.stamps == 'pro':
        LN.insert(8, raw("s_memrealtime s[76:77]", 'salu'))
        LN.insert(0, raw("s_memrealtime s[74:75]", 'salu'))
        kb = [i for i, x in enumerate(LN) if x.kind == 'barrier'][0]
        LN.insert(kb, raw("s_memrealtime s[78:79]", 'salu'))
    P += LN

    for gi, g in enumerate(groups):
        g.reads = []
        for fi, fr in enumerate(g.frs):
            g.reads += fr(g.bufs[fi], g.chunk % NSLOT, g.chunk)
    st8 = dict(opened=-1, issued=3, rg=0, ri=0, sp=0, prevbar=None)
    dq = []
    xq = []
    gap = [0]
    def emit(x):
        P.append(x); gap[0] += units(x)
    def open_bar(c, mi):
        while dq: emit(dq.pop(0)[1])
        if c in fence:
            for tg in fence[c]:
                have = sum(1 for x in P if x.tag == tg); want = fence_count[tg]
                assert have == want, (tg, have, want)
            P.append(wait_lgkm_tag(fence[c]))
        if c in vmfence:
            for tg in vmfence[c]:
                have = sum(1 for x in P if x.tag == tg); assert have == 14, (tg, have)
            P.append(wait_vm_tag(vmfence[c]))
        cover = list(range(c, nextbar[c]))
        P.append(wait_vm_tag([('dma', cc) for cc in cover])); gap[0] += 1
        emit(barrier())
        st8['opened'] = nextbar[c] - 1
        pb = st8['prevbar']
        lim = 5 if pb is None else pb + NSLOT - 1
        st8['prevbar'] = c
        todo = []
        while st8['issued'] < min(lim, nchunks - 1):
            n = st8['issued'] + 1
            if n in pre_dma: todo += pre_dma[n]
            todo += chunk_dma(n, chunks[n]); st8['issued'] = n
        nd = sum(1 for x in todo if x.kind == 'dma')
        if nd:
            L = max(4, chunk_first_m[nextbar[c]] - chunk_first_m[c] - 2)
            step = L / nd
            k = 0; pend = []
            for x in todo:
                if x.kind == 'dma':
                    pos = mi + 1 + k * step
                    for j, y in enumerate(pend): dq.append([pos - step * (len(pend) - j) / (len(pend) + 1) if k > 0 else mi, y])
                    pend = []
                    dq.append([pos, x]); k += 1
                else: pend.append(x)
        if CFG.fused and CFG.gl_early and st8['issued'] == nchunks - 1 and not st8.get('gl'):
            st8['gl'] = True
            base = (dq[-1][0] if dq else mi) + 1
            gl = part_loads(1, GDST)
            for k, y in enumerate(gl): dq.append([base + k * 0.75, y])
        if c in after_bar: xq.extend(after_bar[c])
    def can_read(gidx, cur):
        g = groups[gidx]
        prevf = g.f0 + len(g.frs) - 1 - CFG.nb
        return prevf < 0 or groups[cur].f0 > prevf
    def issue_reads(cur, maxn, mi):
        n = 0
        while st8['rg'] < len(groups) and n < maxn and can_read(st8['rg'], cur):
            g = groups[st8['rg']]
            if g.chunk > st8['opened']:
                assert g.chunk in barset, g.chunk
                open_bar(g.chunk, mi)
            r = g.reads[st8['ri']]
            emit(r); st8['ri'] += 1; n += 1
            if st8['ri'] == len(g.reads): st8['rg'] += 1; st8['ri'] = 0
        return n
    while st8['rg'] < len(groups) and groups[st8['rg']].f0 + len(groups[st8['rg']].frs) <= CFG.nb: issue_reads(0, 1, 0)
    mi = 0
    for gi, g in enumerate(groups):
        while st8['rg'] <= gi:
            if not issue_reads(gi, 8, mi): raise Exception("cannot issue reads")
        for k, mf in enumerate(g.mf):
            P.append(mf); gap[0] = 0
            last = (k == len(g.mf) - 1)
            if last and gi not in merged: gap[0] += 1
            cur = gi + 1 if (last and gi + 1 < len(groups)) else gi
            nrd = len(groups[min(st8['rg'], len(groups) - 1)].reads)
            issue_reads(cur, 1 if len(g.mf) >= 4 else 2, mi)
            while xq and gap[0] < 2: emit(xq.pop(0))
            while dq and dq[0][0] <= mi: emit(dq.pop(0)[1])
            while st8['sp'] < len(side):
                dl, _, early, x = side[st8['sp']]
                if dl <= mi or (CFG.fill and early is not None and early <= mi and gap[0] + units(x) <= 2):
                    emit(x); st8['sp'] += 1
                else: break
            mi += 1
    while xq: emit(xq.pop(0))
    while st8['sp'] < len(side):
        P.append(side[st8['sp']][3]); st8['sp'] += 1
    while dq: P.append(dq.pop(0)[1])
    P += tail
    if CFG.stamps: P.append(raw("s_memrealtime s[44:45]", 'salu'))
    if CFG.fused: P += fused_tail()
    P.append(raw("s_waitcnt vmcnt(0)", 'wait_raw'))
    if CFG.stamps:
        P.append(raw("s_memrealtime s[46:47]", 'salu'))
        P.append(raw("s_waitcnt lgkmcnt(0)", 'wait_raw'))
        P.append(salu('s_lshl_b32', s(S_T0), s(2), 2)); P.append(salu('s_add_u32', s(S_T0), s(S_T0), s(S_W))); P.append(salu('s_lshl_b32', s(S_T0), s(S_T0), 6))
        P.append(salu('s_add_u32', s(S_T0), s(S_T0), 30 << 20)); P.append(salu('s_mov_b32', s(S_WS + 2), 40 << 20))
        order = [67] + [74 + 2 * k for k in range(7)] + [44, 46, 46, 46]
        for k, r in enumerate(order): P.append(valu('v_mov_b32', v(k), s(r)))
        P.append(valu('v_mov_b32', v(16), 0))
        P.append(raw("s_mov_b64 exec, 1", 'salu'))
        for k in range(3): P.append(vstore('buffer_store_dwordx4', v(4 * k, 4), v(16), s(S_WS, 4), s(S_T0), 16 * k))
        P.append(raw("s_waitcnt vmcnt(0)", 'wait_raw'))
        if CFG.dbgstamps is not False:
            P.append(raw("s_load_dwordx2 s[4:5], s[0:1], 80", 'salu')); P.append(raw("s_waitcnt lgkmcnt(0)", 'wait_raw'))
            P.append(salu('s_mov_b32', s(6), 256)); P.append(salu('s_mov_b32', s(7), '0x00020000'))
            for k in range(1, 11): P.append(valu('v_sub_u32', v(k), v(k), v(0)))
            P.append(salu('s_lshl_b32', s(S_T0), s(2), 2)); P.append(salu('s_add_u32', s(S_T0), s(S_T0), s(S_W)))
            P.append(salu('s_cmp_eq_u32', s(S_T0), int(CFG.dbgstamps))); P.append(raw("s_cbranch_scc0 L_main_end", 'branch'))
            for k in range(3): P.append(vstore('buffer_store_dwordx4', v(4 * k, 4), v(16), s(4, 4), '0', 16 * k))
            P.append(raw("s_waitcnt vmcnt(0)", 'wait_raw'))
    P.append(label("L_main_end")); P.append(raw("s_endpgm", 'branch'))
    for t in range(1, 16):
        P.append(label(f"L_slow_{t}"))
        P.append(raw(f"s_call_b64 s[{S_RET}:{S_RET+1}], L_slowsub_{t & 1}", 'branch', [], [s(S_RET, 2)]))
        P.append(raw(f"s_branch L_back_{t}", 'branch'))
    P += slow_path(0); P += slow_path(1)
    if CFG.fused:
        G = []
        G.append(label("L_gspin")); G.append(raw(f"s_mov_b32 s{S_T1}, {CFG.spin}", 'salu'))
        G.append(label("L_gspin_loop"))
        G.append(raw(f"s_lshl_b32 s{S_T2}, s{S_RB}, 3", 'salu')); G.append(raw(f"v_mov_b32 v{V_U2}, 0", 'salu'))
        G.append(raw(f"buffer_load_dwordx2 v[{V_FL0}:{V_FL0+1}], v{V_U2}, s[{S_DBG}:{S_DBG+3}], s{S_T2} offen sc1", 'salu'))
        G.append(raw("s_waitcnt vmcnt(0)", 'salu'))
        for x in flags_nonzero(): G.append(raw(x.text, 'salu'))
        G.append(raw("s_nop 4", 'salu')); G.append(raw("s_cbranch_vccnz L_gback", 'branch'))
        G.append(raw(f"s_sub_u32 s{S_T1}, s{S_T1}, 1", 'salu')); G.append(raw(f"s_cmp_lg_u32 s{S_T1}, 0", 'salu'))
        G.append(raw("s_cbranch_scc1 L_gspin_loop", 'branch')); G.append(raw("s_branch L_gback", 'branch'))
        P += G
    P.append(label("L_main_code_end"))
    if CFG.stampop != 's_memrealtime':
        for x in P:
            if x.text.startswith('s_memrealtime'): x.text = x.text.replace('s_memrealtime', CFG.stampop)
    Pf, stats = finalize(P)
    if 'nodma' in CFG.abl: Pf = [x for x in Pf if x.kind != 'dma']
    if 'nobar' in CFG.abl: Pf = [x for x in Pf if x.kind != 'barrier']
    if 'novm' in CFG.abl: Pf = [x for x in Pf if not (x.kind == 'wait' and 'vmcnt' in x.text)]
    if 'nolgkm' in CFG.abl:
        k0 = [i for i, x in enumerate(Pf) if x.kind == 'mfma'][0]
        Pf = [x for i, x in enumerate(Pf) if i < k0 or not (x.kind == 'wait' and 'lgkm' in x.text)]
    if 'nostore' in CFG.abl: Pf = [x for x in Pf if not (x.kind == 'vstore' and x.tag in ('gst', 'sst'))]
    return Pf, stats, M, NM

def reduce_kernel():
    P = []; E = P.append
    E(salu('s_cmp_ge_u32', s(2), 448)); E(raw("s_cbranch_scc1 L_red_end", 'branch'))
    if CFG.stamps: E(raw("s_memrealtime s[34:35]", 'salu'))
    E(raw("s_load_dwordx2 s[4:5], s[0:1], 0")); E(raw("s_load_dwordx2 s[6:7], s[0:1], 72")); E(raw("s_load_dwordx2 s[8:9], s[0:1], 88"))
    E(valu('v_and_b32', v(1), 63, v(0))); E(valu('v_lshrrev_b32', v(2), 6, v(0)))
    E(valu('v_lshlrev_b32', v(3), 4, v(1)))
    E(valu('v_readfirstlane_b32', s(20), v(2)))
    E(salu('s_lshl_b32', s(21), s(2), 2)); E(salu('s_add_u32', s(21), s(21), s(20)))
    E(salu('s_mul_hi_u32', s(22), s(21), (2 ** 32 + 55) // 56))
    E(salu('s_mul_i32', s(23), s(22), 56)); E(salu('s_sub_u32', s(23), s(21), s(23)))
    E(raw("s_waitcnt lgkmcnt(0)", 'wait_raw'))
    E(salu('s_mov_b32', s(12), s(8))); E(salu('s_mov_b32', s(13), s(9))); E(salu('s_mov_b32', s(14), 2 * 256 * 57344)); E(salu('s_mov_b32', s(15), '0x00020000'))
    E(salu('s_mul_i32', s(24), s(22), 8 * 57344)); E(salu('s_lshl_b32', s(25), s(23), 10)); E(salu('s_add_u32', s(24), s(24), s(25)))
    for which in range(2):
        for k in range(8):
            E(salu('s_add_u32', s(26), s(24), which * 256 * 57344 + k * 57344))
            E(vload('buffer_load_dwordx4', v(16 + (which * 8 + k) * 4, 4), v(3), s(12, 4), s(26), 0, tag='p'))
    E(salu('s_and_b32', s(27), s(23), 1))
    E(salu('s_lshr_b32', s(28), s(23), 1))
    E(salu('s_cmp_ge_u32', s(28), 14)); E(salu('s_cselect_b32', s(29), 1, 0))
    E(salu('s_mul_i32', s(30), s(29), 14)); E(salu('s_sub_u32', s(28), s(28), s(30)))
    E(salu('s_lshl_b32', s(30), s(22), 6)); E(salu('s_lshl_b32', s(31), s(29), 5)); E(salu('s_add_u32', s(30), s(30), s(31)))
    E(salu('s_lshl_b32', s(31), s(27), 4)); E(salu('s_add_u32', s(30), s(30), s(31)))
    E(salu('s_mul_i32', s(30), s(30), 896)); E(salu('s_lshl_b32', s(31), s(28), 6)); E(salu('s_add_u32', s(30), s(30), s(31)))
    E(valu('v_and_b32', v(4), 15, v(1))); E(valu('v_lshrrev_b32', v(5), 4, v(1)))
    E(salu('s_mov_b32', s(32), 896)); E(valu('v_lshlrev_b32', v(5), 4, v(5))); E(valu('v_mad_u32_u24', v(4), v(4), s(32), v(5)))
    E(salu('s_mov_b32', s(16), s(4))); E(salu('s_mov_b32', s(17), s(5))); E(salu('s_mov_b32', s(18), 2048 * 896)); E(salu('s_mov_b32', s(19), '0x00020000'))
    E(vload('buffer_load_dwordx4', v(8, 4), v(4), s(16, 4), s(30), 0, tag='x'))
    E(salu('s_mov_b32', s(33), '0xffff0000'))
    for which in range(2):
        acc = 80 + 8 * which
        for k in range(8):
            src = 16 + (which * 8 + k) * 4
            for d in range(4):
                E(valu('v_lshlrev_b32', v(96), 16, v(src + d))); E(valu('v_and_b32', v(97), s(33), v(src + d)))
                if k == 0:
                    E(valu('v_mov_b32', v(acc + 2 * d), v(96))); E(valu('v_mov_b32', v(acc + 2 * d + 1), v(97)))
                else:
                    E(valu('v_add_f32', v(acc + 2 * d), v(acc + 2 * d), v(96))); E(valu('v_add_f32', v(acc + 2 * d + 1), v(acc + 2 * d + 1), v(97)))
    for k in range(8): E(valu('v_mul_f32', v(100 + k), lit(-math.log2(math.e)), v(88 + k)))
    for k in range(8): E(valu('v_exp_f32', v(100 + k), v(100 + k)))
    for k in range(8): E(valu('v_add_f32', v(100 + k), '1.0', v(100 + k)))
    for k in range(8): E(valu('v_rcp_f32', v(100 + k), v(100 + k)))
    for k in range(8): E(valu('v_mul_f32', v(88 + k), v(88 + k), v(100 + k)))
    for k in range(8): E(valu('v_mul_f32', v(80 + k), v(80 + k), v(88 + k)))
    for k in range(4): E(valu('v_cvt_pk_bf16_f32', v(108 + k), v(80 + 2 * k), v(81 + 2 * k)))
    E(valu('v_permlane32_swap_b32', v(108), v(110))); E(valu('v_permlane32_swap_b32', v(109), v(111)))
    E(valu('v_permlane16_swap_b32', v(108), v(110))); E(valu('v_permlane16_swap_b32', v(109), v(111)))
    for d in range(4):
        E(valu('v_lshlrev_b32', v(80 + 2 * d), 16, v(108 + d))); E(valu('v_and_b32', v(81 + 2 * d), s(33), v(108 + d)))
        E(valu('v_lshlrev_b32', v(88 + 2 * d), 16, v(8 + d))); E(valu('v_and_b32', v(89 + 2 * d), s(33), v(8 + d)))
    for k in range(8): E(valu('v_add_f32', v(80 + k), v(80 + k), v(88 + k)))
    for k in range(4): E(valu('v_cvt_pk_bf16_f32', v(108 + k), v(80 + 2 * k), v(81 + 2 * k)))
    E(salu('s_mov_b32', s(16), s(6))); E(salu('s_mov_b32', s(17), s(7)))
    E(vstore('buffer_store_dwordx4', v(108, 4), v(4), s(16, 4), s(30), 0))
    E(raw("s_waitcnt vmcnt(0)", 'wait_raw'))
    if CFG.stamps:
        E(raw("s_memrealtime s[36:37]", 'salu')); E(raw("s_waitcnt lgkmcnt(0)", 'wait_raw'))
        E(salu('s_lshl_b32', s(21), s(21), 3)); E(salu('s_add_u32', s(21), s(21), 31 << 20)); E(salu('s_mov_b32', s(14), 40 << 20))
        E(valu('v_mov_b32', v(8), s(34))); E(valu('v_mov_b32', v(9), s(36))); E(valu('v_mov_b32', v(10), 0))
        E(raw("s_mov_b64 exec, 1", 'salu'))
        E(vstore('buffer_store_dwordx2', v(8, 2), v(10), s(12, 4), s(21), 0)); E(raw("s_waitcnt vmcnt(0)", 'wait_raw'))
        if CFG.dbgstamps is not False:
            E(salu('s_cmp_eq_u32', s(2), 447)); E(raw("s_cbranch_scc0 L_red_end", 'branch'))
            E(salu('s_cmp_eq_u32', s(20), 3)); E(raw("s_cbranch_scc0 L_red_end", 'branch'))
            E(raw("s_load_dwordx2 s[4:5], s[0:1], 80", 'salu')); E(raw("s_waitcnt lgkmcnt(0)", 'wait_raw'))
            E(salu('s_mov_b32', s(6), 256)); E(salu('s_mov_b32', s(7), '0x00020000'))
            E(salu('s_mov_b32', s(21), (30 << 20) + int(CFG.dbgstamps) * 64))
            for k in range(3): E(vload('buffer_load_dwordx4', v(16 + 4 * k, 4), v(10), s(12, 4), s(21), 16 * k, 'sc1'))
            E(raw("s_waitcnt vmcnt(0)", 'wait_raw'))
            E(valu('v_mov_b32', v(26), v(8))); E(valu('v_mov_b32', v(27), v(9)))
            for k in range(17, 28): E(valu('v_sub_u32', v(k), v(k), v(16)))
            for k in range(3): E(vstore('buffer_store_dwordx4', v(16 + 4 * k, 4), v(10), s(4, 4), '0', 16 * k))
            E(raw("s_waitcnt vmcnt(0)", 'wait_raw'))
    E(label("L_red_end")); E(raw("s_endpgm", 'branch'))
    Pf, _ = finalize(P)
    return Pf

HEADER = """; Kernarg layout (96 bytes, ptrs only, base s[0:1]):
; Generated by gen/gen.py (hand-written generator).  Two launches:
;  1. fused_main_kernel: workgroup = (64 rows, kv head): LayerNorm, GEGLU FFN slice, q projection, attention, output projection
;     -> bf16 partial sums of s and g in d_ws
; @launch kernel=fused_main_kernel grid=(256,1,1) block=(256,1,1) lds=163840
; @launch kernel=fused_reduce_kernel grid=(448,1,1) block=(256,1,1) lds=0
.amdgcn_target "amdgcn-amd-amdhsa--gfx950"
.text
"""
HEADER_FUSED = """; Kernarg layout (96 bytes, ptrs only, base s[0:1]):
; Generated by gen/gen.py (hand-written generator).
; workgroup = (64 rows, kv head): LayerNorm, GEGLU FFN slice, q projection, attention, output projection -> bf16 partial sums
; of s and g in d_ws (write-through), hand-off flags in d_debug, then every workgroup reduces 1/8 of its row block:
; @launch grid=(256,1,1) block=(256,1,1) lds=163840
.amdgcn_target "amdgcn-amd-amdhsa--gfx950"
.text
"""
def kd(name, nv, acc, ns):
    return f""".section .rodata,"a"
.p2align 6
.amdhsa_kernel {name}
  .amdhsa_next_free_vgpr {nv}
  .amdhsa_next_free_sgpr {ns}
  .amdhsa_accum_offset {acc}
  .amdhsa_group_segment_fixed_size 0
  .amdhsa_kernarg_size 96
  .amdhsa_user_sgpr_count 2
  .amdhsa_user_sgpr_kernarg_segment_ptr 1
  .amdhsa_system_sgpr_workgroup_id_x 1
  .amdhsa_float_denorm_mode_32 3
.end_amdhsa_kernel
"""
def generate():
    Pm, stats, M, NM = build()
    if CFG.fused:
        name = KNAME + "_kernel" if CFG.single_name else MAIN
        t = HEADER_FUSED if CFG.single_name else HEADER_FUSED.replace("; @launch grid=", f"; @launch kernel={MAIN} grid=")
        t += f".globl {name}\n.p2align 8\n.type {name},@function\n{name}:\n" + text(Pm) + "\nL_all_code_end:\n"
        t += kd(name, 512, 256, 102)
        return t, Pm, stats, M, NM
    Pr = reduce_kernel()
    t = HEADER
    t += f".globl {MAIN}\n.p2align 8\n.type {MAIN},@function\n{MAIN}:\n" + text(Pm) + "\n"
    t += f".globl {RED}\n.p2align 8\n.type {RED},@function\n{RED}:\n" + text(Pr) + "\nL_all_code_end:\n"
    t += kd(MAIN, 512, 256, 102) + kd(RED, 112, 112, 40)
    return t, Pm, stats, M, NM

if __name__ == "__main__":
    for arg in sys.argv[2:]:
        k, val = arg.split("=")
        setattr(CFG, k, {"True": True, "False": False}.get(val, int(val) if val.lstrip('-').isdigit() else val))
    t, Pm, stats, M, NM = generate()
    out = sys.argv[1] if len(sys.argv) > 1 else f"cdna_kernels/{KNAME}.s"
    open(out, "w").write(t)
    from collections import Counter
    cn = Counter(i.kind for i in Pm)
    print("instrs:", len(Pm), dict(cn)); print(stats, "NM", NM)
```

```python
import sys, math
from asmlib import *

KNAME = "recurrent_scan__sliding_block_cached__glu_gated_geglu__prompt"
MAIN = "fused_main_kernel"
RED = "fused_reduce_kernel"

class Cfg:
    test_delay = False
    gl_early = False
    out_flags = ''
    poll_sleep = 1
    single_name = True
    fused = True
    spin = 200000
    dbgstamps = False
    merge_waits = 'all'
    qlds = False
    f1mix = False
    warm_first = 2
    warm_pro = 'f1'
    warm_main = 'wq:F1_2:2+wd:Q_2:2+k:F2_0:2+v:F2_0:9+wo:S_8:2'
    pro_order = 1
    warm_gran = 128
    warm_early = 2
    bar_every = 2
    fill = True
    pkln = True
    warm_code = True
    warm_w = True
    code_bytes = 72 * 1024
    gdma = True
    dma_gap = 4
    abl = ''
    stampop = 's_memrealtime'
    stamps = False
    store_flags = "sc1"
    gstore_flags = None
    debug = None
    nb = 12
CFG = Cfg()

SLOT = 16384; NSLOT = 8; XA = 131072; XSTAGE = 98304; LDS_BYTES = 163840
XROW = 912
AHEAD = 4

S_X, S_F1, S_WQ, S_WD, S_K, S_V, S_WO, S_WS = 4, 8, 12, 16, 20, 24, 28, 32
S_WG, S_WU = 56, 60
S_KVH, S_RB, S_W, S_CH, S_RH, S_PAR, S_WLDS, S_SOFF = 36, 37, 38, 39, 40, 41, 42, 43
S_F1B = 44
S_QB = 48
S_F2B = 49
S_F2C3, S_F2C10, S_F2C11, S_F2C12 = 52, 53, 54, 55
S_KB, S_VB = 56, 57
S_OOWN = 58
S_OPAR = 61
S_KA = 64
S_O3 = 88
S_PB = 89
S_CB = 90
S_HI = 94
S_T0, S_T1, S_T2 = 98, 99, 100
S_THR = 101
S_ONES = 3
S_RET = 64
S_GB = 66

V_S = 128; V_P = 160; V_NEGM = 176; V_T = 184
V_L0, V_L1, V_TS0, V_TS1, V_TM, V_C1 = 192, 193, 194, 195, 196, 197
V_TAC = 200; V_TS = 208; V_TH = 212; V_KA = 216; V_TA = 224
V_DVA = 232; V_DVB = 236
V_L16, V_HW, V_HR, V_R8, V_SC16, V_XW, V_XR = 240, 241, 242, 243, 244, 245, 246
V_RL0, V_RL1 = 247, 248
V_F1H = 128
V_QW, V_QR = 92, 93
V_LANE, V_N16, V_GQ = 249, 250, 251
V_U0, V_U1, V_U2, V_U3 = 252, 253, 254, 255
HIOFF = 65536
SETS = [0, 32, 96]
def accset(gstep): return SETS[gstep % 3]
A_XB = 0; A_H = 0; A_FB = 112; A_Q = 192; A_G = 56; A_PART = 192

C_GELU0 = -2.0 * math.sqrt(2.0 / math.pi) * math.log2(math.e)
C_GELU1 = C_GELU0 * 0.044715
C_QS = math.log2(math.e) / 16.0
import struct
def f2u(x): return struct.unpack("<I", struct.pack("<f", x))[0]
def lit(x): return f"0x{f2u(x):08x}"

class Group:
    def __init__(self, chunk, frs, mk):
        self.chunk = chunk; self.frs = frs; self.mk = mk
class Chunk:
    def __init__(self, name, srd, dv, soff, imm):
        self.name = name; self.srd = srd; self.dv = dv; self.soff = soff; self.imm = imm; self.pair = dv

def tr_reads(addr_lo, off):
    lo, hi = addr_lo
    def f(buf, slot, c):
        ar = lo if slot < 4 else hi
        o = (slot % 4) * SLOT + off
        return [ds_read("ds_read_b64_tr_b16", a(buf, 2), v(ar), o, tag=('rd', c)),
                ds_read("ds_read_b64_tr_b16", a(buf + 2, 2), v(ar), o + 2048, tag=('rd', c))]
    return f
def b128_read(addr_lo, off):
    lo, hi = addr_lo
    def f(buf, slot, c):
        ar = lo if slot < 4 else hi
        o = (slot % 4) * SLOT + off
        return [ds_read("ds_read_b128", a(buf, 4), v(ar), o, tag=('rd', c))]
    return f

def build_main():
    chunks = []; groups = []
    marks = {}
    def mark(n): marks[n] = len(groups)
    def newchunk(*args):
        chunks.append(Chunk(*args)); return len(chunks) - 1
    TAC = lambda tt: (V_TAC + tt, V_TAC + 4 + tt)
    TS = lambda ti: (V_TS + ti, V_TS + 2 + ti)
    TH = (V_TH, V_TH + 1)
    KA = lambda i: (V_KA + i, V_KA + 4 + i)
    TA = lambda tt: (V_TA + tt, V_TA + 4 + tt)
    XB = lambda ks, ct: a(A_XB + (ks * 2 + ct) * 4, 4)

    def pair_mk(accf, Bf, first):
        def mk(fr):
            out = []
            for ct in range(2):
                for i, f in enumerate(fr):
                    d = v(accf(ct), 4)
                    C = '0' if (first and i == 0) else d
                    out.append(mfma(d, a(f, 4), Bf(i, ct), C, need=[a(x, 4) for x in fr] if (ct == 0 and i == 0) else ()))
            return out
        return mk

    def f1_chunk(st, j):
        base = accset(st) if (st < 3 or not CFG.f1mix) else V_F1H
        c = newchunk(f"F1 s{st} j{j}", S_F1, V_DVA, S_F1B + st, j * 64 * 3584)
        if st == 3 and CFG.f1mix: chunks[c].pair = V_DVB
        tis = range(2) if st < 3 else range(1)
        for ti in tis:
            for mat in range(2):
                ad = TS(ti) if st < 3 else TH
                frs = [tr_reads(ad, (ksl * 2 + mat) * 4096) for ksl in range(2)]
                accf = (lambda ct, mat=mat, ti=ti, base=base: base + ((mat * 2 + ti) * 2 + ct) * 4)
                Bf = (lambda i, ct, j=j: XB(2 * j + i, ct))
                groups.append(Group(c, frs, pair_mk(accf, Bf, j == 0)))
    if CFG.f1mix:
        n = 0
        for st in range(3):
            mark(f"F1_{st}")
            for j in range(7):
                f1_chunk(st, j); n += 1
                if n % 3 == 1: f1_chunk(3, n // 3)
        mark("F1_3")
    else:
        for st in range(4):
            mark(f"F1_{st}")
            for j in range(7): f1_chunk(st, j)
    for st in range(4):
        mark(f"Q_{st}")
        base = accset(4 + st)
        for j in range(7):
            c = newchunk(f"Q s{st} j{j}", S_WQ, V_DVB, S_QB, j * 64 * 8192 + st * 128)
            for tt in range(4):
                frs = [tr_reads(TAC(tt), ksl * 4096) for ksl in range(2)]
                accf = (lambda ct, tt=tt, base=base: base + (tt * 2 + ct) * 4)
                Bf = (lambda i, ct, j=j: XB(2 * j + i, ct))
                groups.append(Group(c, frs, pair_mk(accf, Bf, j == 0)))
    HB = lambda ks, ct: a(A_H + (ks * 2 + ct) * 4, 4)
    KR = 32 * 896
    def f2_pair(c, st, ks0, first):
        base = accset(8 + st)
        for tt in range(4):
            frs = [tr_reads(TAC(tt), ksl * 4096) for ksl in range(2)]
            accf = (lambda ct, tt=tt, base=base: base + (tt * 2 + ct) * 4)
            groups.append(Group(c, frs, pair_mk(accf, (lambda i, ct, ks0=ks0: HB(ks0 + i, ct)), first)))
    def f2_single(c, st, ks, item, first):
        base = accset(8 + st)
        for tt in range(4):
            frs = [tr_reads(TAC(tt), item * 4096)]
            accf = (lambda ct, tt=tt, base=base: base + (tt * 2 + ct) * 4)
            groups.append(Group(c, frs, pair_mk(accf, (lambda i, ct, ks=ks: HB(ks, ct)), first)))
    def f2_shared(c, kss, items, first):
        for ti in range(2):
            frs = [tr_reads(TS(ti), it * 4096) for it in items]
            accf = (lambda ct, ti=ti: accset(11) + (ti * 2 + ct) * 4)
            groups.append(Group(c, frs, pair_mk(accf, (lambda i, ct, kss=kss: HB(kss[i], ct)), first)))
    mark("F2_0")
    for i in range(3):
        c = newchunk(f"F2 s0 p{i}", S_WD, V_DVA, S_F2B + 0, 2 * i * KR); f2_pair(c, 0, 2 * i, i == 0)
    c = newchunk("F2 c3", S_WD, V_DVA, S_F2C3, 6 * KR)
    f2_single(c, 0, 6, 0, False)
    mark("F2_1")
    f2_single(c, 1, 6, 1, True)
    for i in range(3):
        c = newchunk(f"F2 s1 p{i}", S_WD, V_DVA, S_F2B + 1, 2 * i * KR); f2_pair(c, 1, 2 * i, False)
    mark("F2_2")
    for i in range(3):
        c = newchunk(f"F2 s2 p{i}", S_WD, V_DVA, S_F2B + 2, 2 * i * KR); f2_pair(c, 2, 2 * i, i == 0)
    c = newchunk("F2 c10", S_WD, V_DVA, S_F2C10, 0)
    f2_single(c, 2, 6, 0, False)
    mark("F2_3")
    f2_shared(c, [0, 1], [1, 3], True)
    c = newchunk("F2 c11", S_WD, V_DVA, S_F2C11, 2 * KR)
    f2_shared(c, [2, 3], [0, 1], False)
    f2_shared(c, [4, 5], [2, 3], False)
    c = newchunk("F2 c12", S_WD, V_DVA, S_F2C12, 0)
    f2_shared(c, [6], [0], False)
    QB = lambda ks, ct: a(A_Q + (ks * 2 + ct) * 4, 4)
    Sreg = lambda t, T, ct: V_S + 16 * (t & 1) + (ct * 2 + T) * 4
    Preg = lambda t, ct: V_P + 8 * (t & 1) + ct * 4
    Oacc = lambda dt, ct: ((dt >> 1) * 2 + ct) * 8 + (dt & 1) * 4
    def S_phase(t):
        mark(f"S_{t}")
        c = newchunk(f"K{t}", S_K, V_DVB, S_KB, t * 16384)
        for T in range(2):
            for kp in range(4):
                frs = [b128_read(KA((2 * kp + i) & 3), T * 8192 + ((2 * kp + i) >> 2) * 256) for i in range(2)]
                def mk(fr, T=T, kp=kp, t=t):
                    out = []
                    for ct in range(2):
                        for i, f in enumerate(fr):
                            d = v(Sreg(t, T, ct), 4)
                            if kp == 0 and i == 0:
                                C = '0' if t < 2 else v(V_NEGM + 4 * ct, 4)
                            else: C = d
                            out.append(mfma(d, a(f, 4), QB(2 * kp + i, ct), C, need=[a(x, 4) for x in fr] if (ct == 0 and i == 0) else ()))
                    return out
                groups.append(Group(c, frs, mk))
    def PV_phase(t):
        mark(f"PV_{t}")
        c = newchunk(f"V{t}", S_V, V_DVA, S_VB, t * 16384)
        for dp in range(8):
            frs = [tr_reads(TA((2 * dp + i) & 3), ((2 * dp + i) >> 2) * 4096) for i in range(2)]
            def mk(fr, dp=dp, t=t):
                out = []
                for i, f in enumerate(fr):
                    for ct in range(2):
                        d = v(Oacc(2 * dp + i, ct), 4)
                        C = '0' if t == 0 else d
                        out.append(mfma(d, a(f, 4), v(Preg(t, ct), 4), C, need=[a(x, 4) for x in fr] if (ct == 0 and i == 0) else ()))
                return out
            groups.append(Group(c, frs, mk))
    S_phase(0); S_phase(1)
    for t in range(1, 15):
        S_phase(t + 1); PV_phase(t - 1)
    PV_phase(14); PV_phase(15)
    OWN = lambda ks, ct: v((ks * 2 + ct) * 8, 4)
    PART = lambda ks, ct: a(A_PART + (ks * 2 + ct) * 4, 4)
    OB = lambda kk, ct: OWN(kk, ct) if kk < 8 else PART(kk - 8, ct)
    OR = 64 * 896
    for st in range(3):
        mark(f"O_{st}")
        base = 128 + 32 * (st & 1)
        for j in range(8):
            if j < 4: c = newchunk(f"O s{st} j{j}", S_WO, V_DVB, S_OOWN + st, j * OR)
            else: c = newchunk(f"O s{st} j{j}", S_WO, V_DVB, S_OPAR + st, (j - 4) * OR)
            if st == 0 and j == 4: mark("O_part")
            for tt in range(4):
                frs = [tr_reads(TAC(tt), ksl * 4096) for ksl in range(2)]
                accf = (lambda ct, tt=tt, base=base: base + (tt * 2 + ct) * 4)
                groups.append(Group(c, frs, pair_mk(accf, (lambda i, ct, j=j: OB(2 * j + i, ct)), j == 0)))
    mark("O_3")
    for j in range(4):
        c = newchunk(f"O s3 j{j}", S_WO, V_DVB, S_O3, j * OR)
        for who in range(2):
            for ti in range(2):
                ad = (V_TS + who * 4 + ti, V_TS + who * 4 + 2 + ti)
                frs = [tr_reads(ad, ksl * 4096) for ksl in range(2)]
                accf = (lambda ct, ti=ti: 160 + (ti * 2 + ct) * 4)
                groups.append(Group(c, frs, pair_mk(accf, (lambda i, ct, j=j, who=who: OB(8 * who + 2 * j + i, ct)), j == 0 and who == 0)))
    mark("END")
    return chunks, groups, marks

def prologue():
    P = []
    E = P.append
    E(salu('s_cmp_ge_u32', s(2), 256)); E(raw("s_cbranch_scc1 L_main_end", 'branch'))
    E(raw(f"s_load_dwordx16 s[{S_KA}:{S_KA+15}], s[0:1], 0"))
    E(raw(f"s_load_dwordx8 s[{S_KA+16}:{S_KA+23}], s[0:1], 64"))
    if CFG.test_delay is not False:
        E(salu('s_and_b32', s(3), s(2), 7)); E(salu('s_cmp_eq_u32', s(3), int(CFG.test_delay))); E(raw("s_cbranch_scc0 L_nodelay", 'branch'))
        E(salu('s_mov_b32', s(3), 12)); E(label("L_delay")); E(raw("s_sleep 64", 'salu')); E(raw("s_sub_u32 s3, s3, 1", 'salu')); E(raw("s_cmp_lg_u32 s3, 0", 'salu'))
        E(raw("s_cbranch_scc1 L_delay", 'branch')); E(label("L_nodelay"))
    if CFG.warm_code: P += warm_code()
    E(valu('v_and_b32', v(V_LANE), 63, v(0)))
    E(valu('v_lshrrev_b32', v(V_U0), 6, v(0)))
    E(valu('v_and_b32', v(V_N16), 15, v(V_LANE)))
    E(valu('v_readfirstlane_b32', s(S_W), v(V_U0)))
    E(valu('v_lshrrev_b32', v(V_GQ), 4, v(V_LANE)))
    E(valu('v_lshrrev_b32', v(V_R8), 3, v(V_LANE)))
    E(valu('v_lshlrev_b32', v(V_L16), 4, v(V_LANE)))
    E(salu('s_and_b32', s(S_KVH), s(2), 7)); E(salu('s_lshr_b32', s(S_RB), s(2), 3))
    E(salu('s_and_b32', s(S_PAR), s(S_KVH), 1))
    E(salu('s_and_b32', s(S_RH), s(S_W), 1)); E(salu('s_lshr_b32', s(S_CH), s(S_W), 1))
    E(salu('s_lshl_b32', s(S_WLDS), s(S_W), 12))
    E(valu('v_and_b32', v(V_U1), 7, v(V_LANE)))
    E(valu('v_lshlrev_b32', v(V_U2), 4, v(V_U1)))
    E(salu('s_mov_b32', s(S_T0), 896))
    E(valu('v_mad_u32_u24', v(V_U0), v(V_R8), s(S_T0), v(V_U2)))
    E(raw("s_waitcnt lgkmcnt(0)", 'wait_raw'))
    kx, kk, kv, kwq, kwo, kwg, kwu, kwd, kws = [S_KA + o for o in (0, 2, 4, 6, 8, 12, 14, 16, 22)]
    def srd(dst, ptr, nbytes):
        E(salu('s_mov_b32', s(dst), s(ptr))); E(salu('s_mov_b32', s(dst + 1), s(ptr + 1)))
        E(salu('s_mov_b32', s(dst + 2), nbytes)); E(salu('s_mov_b32', s(dst + 3), '0x00020000'))
    srd(S_X, kx, 2048 * 896)
    E(salu('s_mul_i32', s(S_T0), s(S_RB), 57344)); E(salu('s_mul_i32', s(S_T1), s(S_W), 14336))
    E(salu('s_add_u32', s(S_T0), s(S_T0), s(S_T1))); E(salu('s_add_u32', s(S_T1), s(S_T0), 7168))
    for p in range(2):
        for i in range(7):
            E(vload('buffer_load_dwordx4', v((p * 7 + i) * 4, 4), v(V_U0), s(S_X, 4), s(S_T0 + p), i * 128, tag='x'))
    E(salu('s_cmp_eq_u32', s(S_RH), 0))
    E(salu('s_cselect_b32', s(S_F1), s(kwg), s(kwu))); E(salu('s_cselect_b32', s(S_F1 + 1), s(kwg + 1), s(kwu + 1)))
    E(salu('s_mov_b32', s(S_F1 + 2), 448 * 3584)); E(salu('s_mov_b32', s(S_F1 + 3), '0x00020000'))
    srd(S_WQ, kwq, 448 * 8192); srd(S_WD, kwd, 1792 * 896); srd(S_WO, kwo, 4096 * 896)
    srd(S_WS, kws, 2 * 256 * 57344 + 256 * 128)
    for (dst, ptr) in ((S_K, kk), (S_V, kv)):
        E(salu('s_lshl_b32', s(S_T2), s(S_KVH), 20)); E(salu('s_add_u32', s(S_T2), s(S_T2), 1536 * 512))
        E(salu('s_add_u32', s(dst), s(ptr), s(S_T2))); E(salu('s_addc_u32', s(dst + 1), s(ptr + 1), 0))
        E(salu('s_mov_b32', s(dst + 2), 512 * 512)); E(salu('s_mov_b32', s(dst + 3), '0x00020000'))
    E(valu('v_lshrrev_b32', v(V_U2), 1, v(V_R8))); E(valu('v_and_b32', v(V_U2), 3, v(V_U2)))
    E(valu('v_lshlrev_b32', v(V_U2), 1, v(V_U2))); E(valu('v_xor_b32', v(V_U2), v(V_U2), v(V_U1)))
    E(valu('v_lshlrev_b32', v(V_SC16), 4, v(V_U2)))
    P += dv_setup(V_DVA, 3584)
    E(salu('s_mul_i32', s(S_T0), s(S_KVH), 7)); E(salu('s_lshr_b32', s(S_T0), s(S_T0), 1)); E(salu('s_lshl_b32', s(S_T0), s(S_T0), 7))
    E(salu('s_mul_i32', s(S_T1), s(S_CH), 32 * 3584)); E(salu('s_add_u32', s(S_T0), s(S_T0), s(S_T1)))
    for st in range(4):
        P += sel(S_T1, S_PAR, st * 128, (3 - st) * 128)
        E(salu('s_add_u32', s(S_F1B + st), s(S_T0), s(S_T1)))
    return P

def sel(dst, cond, v0, v1):
    d = (v1 - v0) & 0xffffffff
    return [salu('s_mul_i32', s(dst), s(cond), f"0x{d:x}"), salu('s_add_u32', s(dst), s(dst), v0)]

def dv_setup(dst, stride):
    out = [salu('s_mov_b32', s(S_T2), stride),
           valu('v_mad_u32_u24', v(dst), v(V_R8), s(S_T2), v(V_SC16))]
    for j in range(1, 4):
        out.append(valu('v_add_u32', v(dst + j), j * (8 * stride - 1024), v(dst)))
    return out
def dv_setup_K(dst):
    out = [valu('v_lshrrev_b32', v(V_U0), 5, v(V_LANE)), valu('v_and_b32', v(V_U1), 31, v(V_LANE)),
           salu('s_lshl_b32', s(S_T2), s(S_RH), 3),
           valu('v_xor_b32', v(V_U1), v(V_U1), v(V_U0)),
           valu('v_xor_b32', v(V_U1), s(S_T2), v(V_U1)),
           valu('v_lshlrev_b32', v(V_U0), 9, v(V_U0))]
    for j in range(4):
        out.append(valu('v_xor_b32', v(V_U2), 2 * j, v(V_U1)))
        out.append(valu('v_lshl_add_u32', v(dst + j), v(V_U2), 4, v(V_U0)))
    return out

S_GA = {V_DVA: 68, V_DVB: 70}
S_GC = 72
_last_base = {}
def chunk_dma(c, ch):
    slot = c % NSLOT
    if CFG.gdma:
        out = []
        ga = S_GA[ch.pair]
        if _last_base.get(ch.pair) != (ch.srd, ch.soff):
            _last_base[ch.pair] = (ch.srd, ch.soff)
            out += [salu('s_add_u32', s(ga), s(ch.srd), s(ch.soff)), salu('s_addc_u32', s(ga + 1), s(ch.srd + 1), 0)]
        out += [salu('s_add_u32', 'm0', s(S_WLDS), slot * SLOT),
                salu('s_add_u32', s(S_GC), s(ga), ch.imm), salu('s_addc_u32', s(S_GC + 1), s(ga + 1), 0)]
        for j in range(4): out.append(gdma(v(ch.dv + j), s(S_GC, 2), j * 1024, tag=('dma', c)))
        return out
    out = [salu('s_add_u32', 'm0', s(S_WLDS), slot * SLOT),
           salu('s_add_u32', s(S_SOFF), s(ch.soff), ch.imm)]
    for j in range(4):
        imm = j * 1024
        out.append(dma(v(ch.dv + j), s(ch.srd, 4), s(S_SOFF), imm, tag=('dma', c)))
    return out

V_DUM = 198
def warm_code():
    return [raw("s_getpc_b64 s[92:93]", 'salu', [], [s(92, 2)]), label("L_pc_here"),
            salu('s_and_b32', s(93), s(93), '0xffff'),
            raw("s_mov_b32 s94, L_all_code_end-L_pc_here", 'salu', [], [s(94)]), salu('s_mov_b32', s(95), '0x00020000'),
            salu('s_lshr_b32', s(96), s(2), 3), salu('s_and_b32', s(96), s(96), 3), salu('s_lshl_b32', s(96), s(96), 15),
            valu('v_lshlrev_b32', v(V_U3), 7, v(0)),
            vload('buffer_load_dword', v(198), v(V_U3), s(92, 4), s(96), 0, tag='warm')]
WARM_V = {'wq': 132, 'wd': 133, 'k': 134, 'v': 135, 'wo': 199}
WARM_S = {'wq': 4, 'wd': 5, 'k': 6, 'v': 7, 'wo': 43}
def warm_weights():
    W0, W1, W2 = 88, 89, 90
    T0, T2 = 64, 65
    G = CFG.warm_gran; lg = {64: 6, 128: 7}[G]
    head = [valu('v_mov_b32', v(W2), '0x7ffffff0')]
    setup = {}; issue = {}
    def lin(key, srd, nbytes, base):
        V, T1 = WARM_V[key], WARM_S[key]
        per = -(-nbytes // G // 128)
        o = [base(T1), salu('s_mul_i32', s(T2), s(T0), per * G), salu('s_add_u32', s(T1), s(T1), s(T2)),
             valu('v_lshlrev_b32', v(V), lg, v(V_LANE)),
             valu('v_cmp_gt_u32', 'vcc', per, v(V_LANE)), nop(0), valu('v_cndmask_b32', v(V), v(W2), v(V), 'vcc')]
        setup[key] = o; issue[key] = [vload('buffer_load_dword', v(198), v(V), s(srd, 4), s(T1), 0, tag='warm')]
    def strided(key, V, T1, srd, rowbytes, stride, nwaves, colbase):
        npr = rowbytes // G; lgr = npr.bit_length() - 1
        per = 448 * npr // nwaves
        o = list(colbase)
        o += [salu('s_mul_i32', s(T2), s(T0), per),
              valu('v_add_u32', v(W0), s(T2), v(V_LANE)),
              valu('v_lshrrev_b32', v(W1), lgr, v(W0)), valu('v_and_b32', v(W0), npr - 1, v(W0)),
              salu('s_mov_b32', s(T2), stride), valu('v_lshlrev_b32', v(W0), lg, v(W0)),
              valu('v_mad_u32_u24', v(V), v(W1), s(T2), v(W0)),
              valu('v_cmp_gt_u32', 'vcc', per, v(V_LANE)), nop(0), valu('v_cndmask_b32', v(V), v(W2), v(V), 'vcc')]
        setup[key] = o; issue[key] = [vload('buffer_load_dword', v(198), v(V), s(srd, 4), s(T1), 0, tag='warm')]
    strided('f1', 91, 43, S_F1, 512, 3584, 64,
            [salu('s_mul_i32', s(43), s(S_KVH), 7), salu('s_lshr_b32', s(43), s(43), 1), salu('s_lshl_b32', s(43), s(43), 7)])
    f1 = head + [salu('s_lshl_b32', s(T0), s(S_RB), 1), salu('s_add_u32', s(T0), s(T0), s(S_CH))] + setup.pop('f1') + issue.pop('f1')
    strided('wq', WARM_V['wq'], WARM_S['wq'], S_WQ, 1024, 8192, 128, [salu('s_lshl_b32', s(WARM_S['wq']), s(S_KVH), 10)])
    lin('wd', S_WD, 224 * 896, lambda r: salu('s_mul_i32', s(r), s(S_KVH), 224 * 896))
    lin('k', S_K, 262144, lambda r: salu('s_mov_b32', s(r), 0)); lin('v', S_V, 262144, lambda r: salu('s_mov_b32', s(r), 0))
    lin('wo', S_WO, 512 * 896, lambda r: salu('s_mul_i32', s(r), s(S_KVH), 512 * 896))
    allsetup = head + [salu('s_lshl_b32', s(T0), s(S_RB), 2), salu('s_add_u32', s(T0), s(T0), s(S_W))]
    for k in ('wq', 'wd', 'k', 'v', 'wo'): allsetup += setup[k]
    return f1, allsetup, issue

def prologue2():
    P = []; E = P.append
    E(salu('s_lshl_b32', s(S_T0), s(S_KVH), 1)); E(salu('s_add_u32', s(S_T0), s(S_T0), s(S_CH))); E(salu('s_lshl_b32', s(S_T0), s(S_T0), 9))
    E(salu('s_lshl_b32', s(S_T1), s(S_RH), 18)); E(salu('s_add_u32', s(S_QB), s(S_T0), s(S_T1)))
    KR = 32 * 896
    E(salu('s_mul_i32', s(S_T0), s(S_KVH), 224 * 896))
    E(salu('s_mul_i32', s(S_T1), s(S_RH), KR))
    for st in range(3):
        P += sel(S_T2, S_CH, st * 128, (6 - st) * 128)
        E(salu('s_add_u32', s(S_F2B + st), s(S_T0), s(S_T2))); E(salu('s_add_u32', s(S_F2B + st), s(S_F2B + st), s(S_T1)))
    P += sel(S_T2, S_CH, 0, 6 * 128); P += sel(S_F2C3, S_CH, 128, 5 * 128)
    E(salu('s_cmp_eq_u32', s(S_RH), 0)); E(salu('s_cselect_b32', s(S_T2), s(S_T2), s(S_F2C3)))
    E(salu('s_add_u32', s(S_F2C3), s(S_T0), s(S_T2)))
    P += sel(S_T2, S_CH, 6 * KR + 2 * 128, 6 * KR + 4 * 128); P += sel(S_F2C10, S_CH, 384, KR + 384)
    E(salu('s_cmp_eq_u32', s(S_RH), 0)); E(salu('s_cselect_b32', s(S_T2), s(S_T2), s(S_F2C10)))
    E(salu('s_add_u32', s(S_F2C10), s(S_T0), s(S_T2)))
    E(salu('s_mul_i32', s(S_T2), s(S_W), KR)); E(salu('s_add_u32', s(S_F2C11), s(S_T0), s(S_T2))); E(salu('s_add_u32', s(S_F2C11), s(S_F2C11), 384))
    E(salu('s_add_u32', s(S_F2C12), s(S_T0), 6 * KR + 384))
    E(salu('s_lshl_b32', s(S_KB), s(S_W), 12)); E(salu('s_lshl_b32', s(S_VB), s(S_W), 7))
    E(salu('s_lshl_b32', s(S_T0), s(S_KVH), 9)); E(salu('s_lshl_b32', s(S_T1), s(S_RH), 5)); E(salu('s_add_u32', s(S_T0), s(S_T0), s(S_T1)))
    E(salu('s_lshl_b32', s(S_T1), s(S_CH), 8)); E(salu('s_add_u32', s(S_T1), s(S_T0), s(S_T1))); E(salu('s_mul_i32', s(S_T1), s(S_T1), 896))
    E(salu('s_xor_b32', s(S_T2), s(S_CH), 1)); E(salu('s_lshl_b32', s(S_T2), s(S_T2), 8)); E(salu('s_add_u32', s(S_T0), s(S_T0), s(S_T2))); E(salu('s_mul_i32', s(S_T0), s(S_T0), 896))
    for st in range(3):
        P += sel(S_T2, S_CH, st * 128, (6 - st) * 128)
        E(salu('s_add_u32', s(S_OOWN + st), s(S_T1), s(S_T2))); E(salu('s_add_u32', s(S_OPAR + st), s(S_T0), s(S_T2)))
    E(salu('s_add_u32', s(S_O3), s(S_T1), 384))
    E(salu('s_mul_i32', s(S_T0), s(2), 57344))
    E(salu('s_mul_i32', s(S_T1), s(S_RH), 28672)); E(salu('s_add_u32', s(S_PB), s(S_T0), s(S_T1)))
    E(salu('s_add_u32', s(S_GB), s(S_PB), 256 * 57344))
    for st in range(3):
        P += sel(S_CB + st, S_CH, 2 * st * 2048, (12 - 2 * st) * 2048)
    P += sel(S_CB + 3, S_CH, 6 * 2048, 7 * 2048)
    for st in range(3):
        P += sel(S_T0, S_PAR, 2 * st, 2 * (3 - st) - 1)
        E(salu('s_add_u32', s(S_T0), s(S_T0), s(S_CH))); E(salu('s_lshl_b32', s(S_HI + st), s(S_T0), 12))
    P += sel(S_T0, S_PAR, 6 * 4096, 0)
    E(salu('s_lshl_b32', s(S_T1), s(S_CH), 3)); E(salu('s_add_u32', s(S_HI + 3), s(S_T0), s(S_T1)))
    E(salu('s_mov_b32', s(S_THR), lit(65536.0)))
    E(salu('s_mov_b32', s(S_ONES), '0x3f803f80'))
    E(valu('v_bfe_u32', v(V_U0), v(V_LANE), 2, 2))
    E(valu('v_lshl_add_u32', v(V_U1), v(V_GQ), 2, v(V_U0)))
    E(valu('v_lshrrev_b32', v(V_U2), 1, v(V_U1))); E(valu('v_and_b32', v(V_U2), 3, v(V_U2)))
    E(valu('v_and_b32', v(V_U3), 3, v(V_LANE))); E(valu('v_lshlrev_b32', v(V_U3), 3, v(V_U3)))
    E(valu('v_lshl_add_u32', v(V_U3), v(V_U1), 7, v(V_U3)))
    for tt in range(4):
        E(valu('v_xor_b32', v(V_U0), tt, v(V_U2)))
        E(valu('v_lshl_add_u32', v(V_TA + tt), v(V_U0), 5, v(V_U3)))
        E(valu('v_add_u32', v(V_TA + 4 + tt), HIOFF, v(V_TA + tt)))
    E(salu('s_lshl_b32', s(S_T0), s(S_CH), 13))
    for tt in range(8):
        E(valu('v_add_u32', v(V_TAC + tt), s(S_T0), v(V_TA + tt)))
    E(salu('s_lshl_b32', s(S_T0), s(S_CH), 1))
    for ti in range(2):
        E(salu('s_add_u32', s(S_T1), s(S_T0), ti))
        E(valu('v_xor_b32', v(V_U0), s(S_T1), v(V_U2)))
        E(valu('v_lshl_add_u32', v(V_TS + ti), v(V_U0), 5, v(V_U3)))
        E(valu('v_add_u32', v(V_TS + 2 + ti), HIOFF, v(V_TS + ti)))
    E(salu('s_lshl_b32', s(S_T0), s(S_PAR), 1)); E(salu('s_add_u32', s(S_T1), s(S_T0), s(S_CH)))
    E(valu('v_xor_b32', v(V_U0), s(S_T1), v(V_U2)))
    E(valu('v_lshl_add_u32', v(V_TH), v(V_U0), 5, v(V_U3)))
    E(valu('v_add_u32', v(V_TH + 1), HIOFF, v(V_TH)))
    for i in range(4):
        E(valu('v_add_u32', v(V_U0), 4 * i, v(V_GQ))); E(valu('v_xor_b32', v(V_U0), v(V_U0), v(V_N16)))
        E(valu('v_lshlrev_b32', v(V_U0), 4, v(V_U0)))
        E(valu('v_lshl_add_u32', v(V_KA + i), v(V_N16), 9, v(V_U0)))
        E(valu('v_add_u32', v(V_KA + 4 + i), HIOFF, v(V_KA + i)))
    E(salu('s_lshl_b32', s(S_T0), s(S_RH), 11)); E(salu('s_add_u32', s(S_T0), s(S_T0), XA))
    E(valu('v_add_u32', v(V_HR), s(S_T0), v(V_L16)))
    E(salu('s_lshl_b32', s(S_T0), s(S_W), 13)); E(salu('s_add_u32', s(S_T0), s(S_T0), XA))
    E(valu('v_add_u32', v(V_XW), s(S_T0), v(V_L16)))
    E(salu('s_xor_b32', s(S_T0), s(S_W), 2)); E(salu('s_lshl_b32', s(S_T0), s(S_T0), 13)); E(salu('s_add_u32', s(S_T0), s(S_T0), XA))
    E(valu('v_add_u32', v(V_XR), s(S_T0), v(V_L16)))
    E(valu('v_mov_b32', v(V_C1), lit(C_GELU1)))
    E(salu('s_lshl_b32', s(S_T0), s(S_W), 10)); E(salu('s_add_u32', s(S_T0), s(S_T0), XA + 28672))
    E(valu('v_lshlrev_b32', v(V_U0), 6, v(V_N16))); E(valu('v_add_u32', v(V_U0), s(S_T0), v(V_U0)))
    E(valu('v_lshl_add_u32', v(V_QW), v(V_GQ), 3, v(V_U0))); E(valu('v_lshl_add_u32', v(V_QR), v(V_GQ), 4, v(V_U0)))
    return P

def layernorm(late, wl):
    P = []; E = P.append
    late = list(late); wl = list(wl)
    def drip(q, n=1):
        while q and n > 0:
            x = q.pop(0); E(x)
            if x.kind in ('dma', 'vload'): n -= 1
    ACC = 64
    for p in range(2):
        b = ACC + 4 * p
        for k in range(4): E(valu('v_mov_b32', v(b + k), 0))
        for n in range(28):
            d = p * 28 + n
            E(valu('v_dot2_f32_bf16', v(b + (n & 1)), v(d), s(S_ONES), v(b + (n & 1))))
            E(valu('v_dot2_f32_bf16', v(b + 2 + (n & 1)), v(d), v(d), v(b + 2 + (n & 1))))
            if n % 7 == 3: drip(late)
        E(valu('v_add_f32', v(b), v(b), v(b + 1))); E(valu('v_add_f32', v(b + 2), v(b + 2), v(b + 3)))
    for mods in ("quad_perm:[1,0,3,2] row_mask:0xf bank_mask:0xf", "quad_perm:[2,3,0,1] row_mask:0xf bank_mask:0xf", "row_half_mirror row_mask:0xf bank_mask:0xf"):
        for p in range(2):
            for k in (0, 2):
                r = ACC + 4 * p + k
                E(valu('v_add_f32_dpp', v(r), v(r), v(r), mods=mods))
    for p in range(2):
        b = ACC + 4 * p
        E(valu('v_mul_f32', v(b), lit(1.0 / 448), v(b)))
        E(valu('v_mul_f32', v(b + 2), lit(1.0 / 448), v(b + 2)))
        E(valu('v_fma_f32', v(b + 2), '-' + v(b), v(b), v(b + 2)))
        E(valu('v_max_f32', v(b + 2), 0, v(b + 2)))
        E(valu('v_add_f32', v(b + 2), lit(1e-5), v(b + 2)))
        E(valu('v_rsq_f32', v(b + 2), v(b + 2)))
        E(valu('v_mul_f32', v(b), v(b), v(b + 2)))
        E(valu('v_sub_f32', v(b + 1), 0, v(b)))
    E(valu('v_and_b32', v(V_U0), 7, v(V_LANE)))
    E(valu('v_and_b32', v(V_U1), 3, v(V_U0)))
    E(valu('v_lshrrev_b32', v(V_U0), 2, v(V_U0))); E(valu('v_lshlrev_b32', v(V_U0), 6, v(V_U0)))
    E(valu('v_and_b32', v(V_U2), 1, v(V_U1))); E(valu('v_lshl_add_u32', v(V_U0), v(V_U2), 5, v(V_U0)))
    E(valu('v_lshrrev_b32', v(V_U1), 1, v(V_U1))); E(valu('v_lshl_add_u32', v(V_U0), v(V_U1), 3, v(V_U0)))
    E(salu('s_mov_b32', s(S_T0), XROW)); E(valu('v_mad_u32_u24', v(V_U0), v(V_R8), s(S_T0), v(V_U0)))
    E(salu('s_mul_i32', s(S_T1), s(S_W), 16 * XROW)); E(salu('s_add_u32', s(S_T1), s(S_T1), XSTAGE))
    E(valu('v_add_u32', v(V_U0), s(S_T1), v(V_U0)))
    E(valu('v_add_u32', v(V_U1), 8 * XROW, v(V_U0)))
    E(salu('s_mov_b32', s(S_T2), '0xffff0000'))
    T = 72
    for p in range(2):
        b = ACC + 4 * p
        for i in range(7):
            d0 = (p * 7 + i) * 4
            for k in range(4):
                t = T + 2 * k
                E(valu('v_lshlrev_b32', v(t), 16, v(d0 + k))); E(valu('v_and_b32', v(t + 1), s(S_T2), v(d0 + k)))
            for k in range(4):
                t = T + 2 * k
                if CFG.pkln:
                    x = I(f"v_pk_fma_f32 v[{t}:{t+1}], v[{t}:{t+1}], v[{b+2}:{b+3}], v[{b}:{b+1}] op_sel:[0,0,1] op_sel_hi:[1,0,1]", 'valu',
                          regs(v(t, 2)) + regs(v(b, 4)), regs(v(t, 2)))
                    E(x)
                else:
                    E(valu('v_fma_f32', v(t), v(t), v(b + 2), '-' + v(b))); E(valu('v_fma_f32', v(t + 1), v(t + 1), v(b + 2), '-' + v(b)))
            for k in range(4):
                t = T + 2 * k
                E(valu('v_cvt_pk_bf16_f32', v(d0 + k), v(t), v(t + 1)))
            E(ds_write2_b64(v(V_U0 + p), v(d0, 2), v(d0 + 2, 2), 16 * i, 16 * i + 2, tag='xw'))
            drip(wl)
    drip(late, 99); drip(wl, 99)
    E(wait_lgkm_tag('xw')); E(barrier())
    E(salu('s_lshl_b32', s(S_T0), s(S_RH), 5)); E(valu('v_add_u32', v(V_U0), s(S_T0), v(V_N16)))
    E(salu('s_mov_b32', s(S_T0), XROW)); E(valu('v_lshlrev_b32', v(V_U1), 4, v(V_GQ)))
    E(valu('v_mad_u32_u24', v(V_U0), v(V_U0), s(S_T0), v(V_U1))); E(valu('v_add_u32', v(V_U0), XSTAGE, v(V_U0)))
    for ks in range(14):
        for ct in range(2):
            E(ds_read('ds_read_b128', a(A_XB + (ks * 2 + ct) * 4, 4), v(V_U0), ks * 64 + ct * 16 * XROW, tag='xb'))
    return P

def interleave(*lists):
    out = []; its = [list(l) for l in lists]
    while any(its):
        for l in its:
            if l: out.append(l.pop(0))
    return out

def geglu(st):
    base = accset(st) if (st < 3 or not CFG.f1mix) else V_F1H
    out = []
    tis = range(2) if st < 3 else range(1)
    TT = 64; HP = 80
    out.append(valu('v_add_u32', v(V_HW), s(S_HI + st), v(V_HR)))
    for ct in range(2):
        for ti in tis:
            G = base + ((0 * 2 + ti) * 2 + ct) * 4; U = base + ((1 * 2 + ti) * 2 + ct) * 4
            t = [TT + k for k in range(4)]; e = [TT + 4 + k for k in range(4)]
            for k in range(4): out.append(valu('v_mul_f32', v(t[k]), v(G + k), v(G + k)))
            for k in range(4): out.append(valu('v_fmaak_f32', v(t[k]), v(t[k]), v(V_C1), lit(C_GELU0)))
            for k in range(4): out.append(valu('v_mul_f32', v(t[k]), v(G + k), v(t[k])))
            for k in range(4): out.append(valu('v_exp_f32', v(e[k]), v(t[k])))
            for k in range(4): out.append(valu('v_mul_f32', v(t[k]), v(G + k), v(U + k)))
            for k in range(4): out.append(valu('v_add_f32', v(e[k]), '1.0', v(e[k])))
            for k in range(4): out.append(valu('v_rcp_f32', v(e[k]), v(e[k])))
            hp = HP + ct * 4 + ti * 2
            for k in range(4): out.append(valu('v_mul_f32', v(t[k]), v(t[k]), v(e[k])))
            out.append(valu('v_cvt_pk_bf16_f32', v(hp), v(t[0]), v(t[1]))); out.append(valu('v_cvt_pk_bf16_f32', v(hp + 1), v(t[2]), v(t[3])))
        if st < 3: out.append(ds_write('ds_write_b128', v(V_HW), v(HP + ct * 4, 4), ct * 1024, tag='hw'))
        else: out.append(ds_write('ds_write_b64', v(V_HW), v(HP + ct * 4, 2), ct * 1024, tag='hw'))
    return out

def qconv(st):
    base = accset(4 + st); out = []
    for pp in range(2):
        for ct in range(2):
            X0 = base + ((2 * pp) * 2 + ct) * 4; X1 = base + ((2 * pp + 1) * 2 + ct) * 4
            t = 64 + 8 * ct; h = 80 + 4 * ct
            for k in range(4): out.append(valu('v_mul_f32', v(t + k), lit(C_QS), v(X0 + k)))
            for k in range(4): out.append(valu('v_mul_f32', v(t + 4 + k), lit(C_QS), v(X1 + k)))
            for k in range(4): out.append(valu('v_cvt_pk_bf16_f32', v(h + k), v(t + 2 * k), v(t + 2 * k + 1)))
            if CFG.qlds:
                ks = 2 * st + pp
                out.append(ds_write2_b64(v(V_QW), v(h, 2), v(h + 2, 2), 0, 4, tag='qw'))
                out.append(ds_read('ds_read_b128', a(A_Q + (ks * 2 + ct) * 4, 4), v(V_QR), 0, tag='qr'))
                continue
            out.append(valu('v_permlane32_swap_b32', v(h), v(h + 2))); out.append(valu('v_permlane32_swap_b32', v(h + 1), v(h + 3)))
            out.append(nop(0))
            out.append(valu('v_permlane16_swap_b32', v(h), v(h + 2))); out.append(valu('v_permlane16_swap_b32', v(h + 1), v(h + 3)))
            ks = 2 * st + pp
            for k in range(4): out.append(valu('v_accvgpr_write_b32', a(A_Q + (ks * 2 + ct) * 4 + k), v(h + k)))
    return out

def gconv(st):
    base = accset(8 + st); out = []
    pps = range(2) if st < 3 else range(1)
    for pp in pps:
        for ct in range(2):
            if st < 3: X0 = base + ((2 * pp) * 2 + ct) * 4; X1 = base + ((2 * pp + 1) * 2 + ct) * 4
            else: X0 = base + (0 * 2 + ct) * 4; X1 = base + (1 * 2 + ct) * 4
            h = 80 + 4 * ct
            out.append(valu('v_cvt_pk_bf16_f32', v(h), v(X0), v(X0 + 1))); out.append(valu('v_cvt_pk_bf16_f32', v(h + 1), v(X0 + 2), v(X0 + 3)))
            out.append(valu('v_cvt_pk_bf16_f32', v(h + 2), v(X1), v(X1 + 1))); out.append(valu('v_cvt_pk_bf16_f32', v(h + 3), v(X1 + 2), v(X1 + 3)))
            li = st * 2 + pp
            for k in range(4): out.append(valu('v_accvgpr_write_b32', a(A_G + (li * 2 + ct) * 4 + k), v(h + k)))
    return out
def gstore(li, ct):
    st, pp = li // 2, li % 2
    return [salu('s_add_u32', s(S_T0), s(S_GB), s(S_CB + st)),
            vstore('buffer_store_dwordx4', a(A_G + (li * 2 + ct) * 4, 4), v(V_L16), s(S_WS, 4), s(S_T0), pp * 2048 + ct * 1024, (CFG.gstore_flags if CFG.gstore_flags is not None else CFG.store_flags).replace('_', ' ').strip(), tag='gst')]

def sconv(st):
    base = 128 + 32 * (st & 1); out = []
    pps = range(2) if st < 3 else range(1)
    out.append(salu('s_add_u32', s(S_T1), s(S_PB), s(S_CB + st)))
    n = 0
    for pp in pps:
        for ct in range(2):
            if st < 3: X0 = base + ((2 * pp) * 2 + ct) * 4; X1 = base + ((2 * pp + 1) * 2 + ct) * 4
            else: X0 = 160 + (0 * 2 + ct) * 4; X1 = 160 + (1 * 2 + ct) * 4
            h = 192 + 4 * (n & 1); n += 1
            out.append(valu('v_cvt_pk_bf16_f32', v(h), v(X0), v(X0 + 1))); out.append(valu('v_cvt_pk_bf16_f32', v(h + 1), v(X0 + 2), v(X0 + 3)))
            out.append(valu('v_cvt_pk_bf16_f32', v(h + 2), v(X1), v(X1 + 1))); out.append(valu('v_cvt_pk_bf16_f32', v(h + 3), v(X1 + 2), v(X1 + 3)))
            out.append(vstore('buffer_store_dwordx4', v(h, 4), v(V_L16), s(S_WS, 4), s(S_T1), pp * 2048 + ct * 1024, CFG.store_flags.replace('_', ' ').strip(), tag='sst'))
    return out

def xlane_reduce(op, reg, tmp):
    return [valu('v_mov_b32', v(tmp), v(reg)), nop(0), valu('v_permlane16_swap_b32', v(reg), v(tmp)), nop(0), valu(op, v(reg), v(reg), v(tmp)),
            valu('v_mov_b32', v(tmp), v(reg)), nop(0), valu('v_permlane32_swap_b32', v(reg), v(tmp)), nop(0), valu(op, v(reg), v(reg), v(tmp))]

def Sreg(t, T, ct): return V_S + 16 * (t & 1) + (ct * 2 + T) * 4
def Preg(t, ct): return V_P + 8 * (t & 1) + ct * 4

def softmax_first():
    out = []
    for ct in range(2):
        r = [Sreg(0, 0, ct) + k for k in range(4)] + [Sreg(0, 1, ct) + k for k in range(4)]
        m = V_T + ct
        out.append(valu('v_max3_f32', v(m), v(r[0]), v(r[1]), v(r[2])))
        out.append(valu('v_max3_f32', v(m), v(m), v(r[3]), v(r[4])))
        out.append(valu('v_max3_f32', v(m), v(m), v(r[5]), v(r[6])))
        out.append(valu('v_max_f32', v(m), v(m), v(r[7])))
    a0 = xlane_reduce('v_max_f32', V_T, V_T + 2); a1 = xlane_reduce('v_max_f32', V_T + 1, V_T + 3)
    out += interleave(a0, a1)
    for ct in range(2):
        for k in range(4): out.append(valu('v_sub_f32', v(V_NEGM + 4 * ct + k), 0, v(V_T + ct)))
    for ct in range(2):
        for T in range(2):
            for k in range(4): out.append(valu('v_add_f32', v(Sreg(0, T, ct) + k), v(V_NEGM + 4 * ct), v(Sreg(0, T, ct) + k)))
    out.append(valu('v_mov_b32', v(V_L0), 0)); out.append(valu('v_mov_b32', v(V_L1), 0))
    return out
def s1_fix():
    out = []
    for ct in range(2):
        for T in range(2):
            for k in range(4): out.append(valu('v_add_f32', v(Sreg(1, T, ct) + k), v(V_NEGM + 4 * ct), v(Sreg(1, T, ct) + k)))
    return out
def softmax_body(t):
    out = []
    for ct in range(2):
        ts = V_TS0 + ct
        for T in range(2):
            S = Sreg(t, T, ct); e = V_T + 4 * T
            for k in range(4): out.append(valu('v_exp_f32', v(e + k), v(S + k)))
            if T == 0:
                out.append(valu('v_add_f32', v(ts), v(e), v(e + 1)))
            else:
                out.append(valu('v_add_f32', v(ts), v(ts), v(e)));
            out.append(valu('v_cvt_pk_bf16_f32', v(Preg(t, ct) + 2 * T), v(e), v(e + 1)))
            if T == 1: out.append(valu('v_add_f32', v(ts), v(ts), v(e + 1)))
            out.append(valu('v_add_f32', v(ts), v(ts), v(e + 2)))
            out.append(valu('v_cvt_pk_bf16_f32', v(Preg(t, ct) + 2 * T + 1), v(e + 2), v(e + 3)))
            out.append(valu('v_add_f32', v(ts), v(ts), v(e + 3)))
    return out
def softmax_check(t):
    return [valu('v_max_f32', v(V_TM), v(V_TS0), v(V_TS1)),
            valu('v_cmp_lt_f32', 'vcc', s(S_THR), v(V_TM)),
            raw(f"s_cbranch_vccnz L_slow_{t}", 'branch', ['vcc']),
            label(f"L_back_{t}"),
            valu('v_add_f32', v(V_L0), v(V_L0), v(V_TS0)), valu('v_add_f32', v(V_L1), v(V_L1), v(V_TS1))]

def slow_path(par):
    t = par
    o = []
    o.append(label(f"L_slowsub_{par}"))
    o.append(nop(15))
    for ct in range(2):
        r = [Sreg(t, 0, ct) + k for k in range(4)] + [Sreg(t, 1, ct) + k for k in range(4)]
        m = V_T + ct
        o += [valu('v_max3_f32', v(m), v(r[0]), v(r[1]), v(r[2])), valu('v_max3_f32', v(m), v(m), v(r[3]), v(r[4])),
              valu('v_max3_f32', v(m), v(m), v(r[5]), v(r[6])), valu('v_max_f32', v(m), v(m), v(r[7]))]
        o += xlane_reduce('v_max_f32', m, V_T + 2)
        o.append(valu('v_max_f32', v(m), 0, v(m)))
    for ct in range(2):
        d = V_T + ct; f = V_T + 2 + ct
        o.append(valu('v_sub_f32', v(f), 0, v(d))); o.append(valu('v_exp_f32', v(f), v(f)))
        for k in range(4): o.append(valu('v_sub_f32', v(V_NEGM + 4 * ct + k), v(V_NEGM + 4 * ct + k), v(d)))
        for tt in (t, t + 1):
            for T in range(2):
                for k in range(4): o.append(valu('v_sub_f32', v(Sreg(tt, T, ct) + k), v(Sreg(tt, T, ct) + k), v(d)))
        o.append(valu('v_mul_f32', v(V_L0 + ct), v(V_L0 + ct), v(f)))
        for dt in range(16):
            b = ((dt >> 1) * 2 + ct) * 8 + (dt & 1) * 4
            for k in range(4): o.append(valu('v_mul_f32', v(b + k), v(b + k), v(f)))
    o += softmax_body(t)
    o.append(nop(3))
    o.append(raw(f"s_setpc_b64 s[{S_RET}:{S_RET+1}]", 'branch', [s(S_RET, 2)]))
    return o

def onorm(i):
    ct = i & 1; b = 8 * i; rl = V_RL0 + ct; t = V_T
    out = []
    for k in range(8): out.append(valu('v_mul_f32', v(t + k), v(b + k), v(rl)))
    for k in range(4): out.append(valu('v_cvt_pk_bf16_f32', v(b + k), v(t + 2 * k), v(t + 2 * k + 1)))
    if i < 8: out.append(ds_write('ds_write_b128', v(V_XW), v(b, 4), i * 1024, tag='ow1'))
    return out


FLAGBASE = 2 * 256 * 57344
S_DBG, S_XS, S_OUTS = 12, 16, 20
V_Z = 94
V_FLAG = 241
V_FL0 = 242
S_B0, S_B1 = 50, 51
S_PO0, S_PO1, S_OO0, S_OO1 = 52, 53, 54, 55
S_LO, S_HI16 = 56, 57
def flag_setup():
    a1 = [raw(f"s_load_dwordx2 s[{S_DBG}:{S_DBG+1}], s[0:1], 80", 'salu', [], [s(S_DBG, 2)])]
    a2 = [raw("s_waitcnt lgkmcnt(0)", 'wait_raw'), salu('s_mov_b32', s(S_DBG + 2), 256), salu('s_mov_b32', s(S_DBG + 3), '0x00020000'),
          valu('v_mov_b32', v(V_FLAG), '0x7ffffff0'), valu('v_mov_b32', v(V_U0), s(2)),
          salu('s_lshl_b32', s(S_T2), s(S_W), 6), valu('v_add_u32', v(V_U1), s(S_T2), v(V_LANE)),
          valu('v_cmp_eq_u32', 'vcc', 0, v(V_U1)), nop(1), valu('v_cndmask_b32', v(V_FLAG), v(V_FLAG), v(V_U0), 'vcc')]
    return a1, a2
def flag_store(val):
    return [valu('v_mov_b32', v(V_U1), val),
            vstore('buffer_store_byte', v(V_U1), v(V_FLAG), s(S_DBG, 4), '0', 0, 'sc1', tag='flag')]
def wsflag_store(val, vreg):
    return [salu('s_lshl_b32', s(S_T0), s(2), 7), salu('s_add_u32', s(S_T0), s(S_T0), FLAGBASE), valu('v_mov_b32', v(V_U1), val),
            vstore('buffer_store_dword', v(V_U1), v(vreg), s(S_WS, 4), s(S_T0), 0, 'sc1', tag='wsflag')]
def flag_load():
    return [salu('s_lshl_b32', s(S_T2), s(S_RB), 3), valu('v_mov_b32', v(V_U2), 0),
            vload('buffer_load_dwordx2', v(V_FL0, 2), v(V_U2), s(S_DBG, 4), s(S_T2), 0, 'sc1', tag='fl')]
def flags_nonzero():
    return [valu('v_lshrrev_b32', v(V_U0), 1, v(V_FL0)), valu('v_lshrrev_b32', v(V_U1), 1, v(V_FL0 + 1)),
            valu('v_or_b32', v(V_U0), v(V_U0), v(V_FL0)), valu('v_or_b32', v(V_U1), v(V_U1), v(V_FL0 + 1)),
            valu('v_and_b32', v(V_U0), v(V_U0), v(V_U1)), valu('v_and_b32', v(V_U0), '0x01010101', v(V_U0)),
            valu('v_cmp_eq_u32', 'vcc', '0x01010101', v(V_U0))]
def tail_setup():
    a1 = [raw(f"s_load_dwordx2 s[{S_XS}:{S_XS+1}], s[0:1], 0", 'salu', [], [s(S_XS, 2)]),
          raw(f"s_load_dwordx2 s[{S_OUTS}:{S_OUTS+1}], s[0:1], 72", 'salu', [], [s(S_OUTS, 2)])]
    o = [raw("s_waitcnt lgkmcnt(0)", 'wait_raw')]
    for r in (S_XS, S_OUTS): o += [salu('s_mov_b32', s(r + 2), 2048 * 896), salu('s_mov_b32', s(r + 3), '0x00020000')]
    o += [salu('s_mul_i32', s(S_B0), s(S_KVH), 7), salu('s_add_u32', s(S_B0), s(S_B0), s(S_W)),
          salu('s_add_u32', s(S_B1), s(S_B0), 4), salu('s_cmp_eq_u32', s(S_W), 3), salu('s_cselect_b32', s(S_B1), s(S_B0), s(S_B1))]
    for (b, po, oo) in ((S_B0, S_PO0, S_OO0), (S_B1, S_PO1, S_OO1)):
        o += [salu('s_mul_i32', s(po), s(S_RB), 8 * 57344), salu('s_lshl_b32', s(S_T0), s(b), 10), salu('s_add_u32', s(po), s(po), s(S_T0))]
        o += [salu('s_cmp_ge_u32', s(b), 28), salu('s_cselect_b32', s(S_T0), 1, 0), salu('s_mul_i32', s(S_T1), s(S_T0), 28), salu('s_sub_u32', s(S_T1), s(b), s(S_T1)),
              salu('s_lshl_b32', s(oo), s(S_RB), 6), salu('s_lshl_b32', s(S_T0), s(S_T0), 5), salu('s_add_u32', s(oo), s(oo), s(S_T0)),
              salu('s_and_b32', s(S_T0), s(S_T1), 1), salu('s_lshl_b32', s(S_T0), s(S_T0), 4), salu('s_add_u32', s(oo), s(oo), s(S_T0)),
              salu('s_mul_i32', s(oo), s(oo), 896), salu('s_lshr_b32', s(S_T1), s(S_T1), 1), salu('s_lshl_b32', s(S_T1), s(S_T1), 6), salu('s_add_u32', s(oo), s(oo), s(S_T1))]
    o += [salu('s_mov_b32', s(S_LO), '0x00003f80'), salu('s_mov_b32', s(S_HI16), '0x3f800000')]
    return a1, o
def part_loads(which, dst):
    out = []
    for blk, po in enumerate((S_PO0, S_PO1)):
        for k in range(8):
            out.append(salu('s_add_u32', s(48 + (k & 1)), s(po), which * 256 * 57344 + k * 57344))
            out.append(vload('buffer_load_dwordx4', v(dst(blk, k), 4), v(V_L16), s(S_WS, 4), s(48 + (k & 1)), 0, 'sc1', tag='pl%d' % which))
    return out
def part_sum(dst, acc):
    out = []
    for k in range(8):
        for d in range(4):
            for h, sel_ in enumerate((S_LO, S_HI16)):
                r = acc + 2 * d + h
                out.append(valu('v_dot2_f32_bf16', v(r), v(dst(k) + d), s(sel_), v(r) if k else '0'))
    return out
GDST = lambda blk, k: 8 * (blk * 8 + k) + 4
SDST = lambda blk, k: 128 + (blk * 8 + k) * 4
def fused_tail():
    P = []; E = P.append
    def stamp(k):
        if CFG.stamps == 't': E(raw(f"s_memrealtime s[{74+2*k}:{75+2*k}]", 'salu'))
    stamp(1)
    if CFG.gl_early:
        E(raw("s_waitcnt vmcnt(0)", 'wait_raw'))
    else:
        P += part_loads(1, GDST)
        E(wait_vm_tag(['sst']))
    stamp(2); E(barrier())
    E(valu('v_cmp_gt_u32', 'vcc', 256, v(V_FLAG))); E(valu('v_cndmask_b32', v(V_U0), v(V_FLAG), 0, 'vcc'))
    P += wsflag_store(2, V_U0)
    GA = [200, 208]
    for blk in range(2): P += part_sum(lambda k: GDST(blk, k), GA[blk])
    for blk in range(2):
        g = GA[blk]; t = 216 + 8 * blk
        for k in range(8): E(valu('v_mul_f32', v(t + k), lit(-math.log2(math.e)), v(g + k)))
        for k in range(8): E(valu('v_exp_f32', v(t + k), v(t + k)))
        for k in range(8): E(valu('v_add_f32', v(t + k), '1.0', v(t + k)))
        for k in range(8): E(valu('v_rcp_f32', v(t + k), v(t + k)))
        for k in range(8): E(valu('v_mul_f32', v(g + k), v(g + k), v(t + k)))
    E(salu('s_mov_b32', s(S_T0), 896)); E(valu('v_lshlrev_b32', v(232), 4, v(V_GQ))); E(valu('v_mad_u32_u24', v(232), v(V_N16), s(S_T0), v(232)))
    stamp(3)
    E(salu('s_cmp_eq_u32', s(S_W), 3)); E(raw("s_cbranch_scc0 L_poll_done", 'branch'))
    E(salu('s_mov_b32', s(S_T1), CFG.spin))
    E(salu('s_lshl_b32', s(S_T2), s(S_RB), 10)); E(salu('s_add_u32', s(S_T2), s(S_T2), FLAGBASE))
    E(valu('v_lshlrev_b32', v(V_U2), 7, v(V_LANE))); E(valu('v_mov_b32', v(V_U1), '0x7ffffff0'))
    E(valu('v_cmp_gt_u32', 'vcc', 8, v(V_LANE))); E(valu('v_cndmask_b32', v(V_U2), v(V_U1), v(V_U2), 'vcc'))
    E(label("L_poll"))
    E(raw(f"buffer_load_dword v{V_FL0}, v{V_U2}, s[{S_WS}:{S_WS+3}], s{S_T2} offen sc1", 'salu'))
    E(raw("s_waitcnt vmcnt(0)", 'wait_raw'))
    E(raw(f"v_cmp_eq_u32 vcc, 2, v{V_FL0}", 'salu')); E(raw("s_nop 4", 'salu'))
    E(raw("s_and_b32 s3, vcc_lo, 0xff", 'salu')); E(raw("s_cmp_eq_u32 s3, 0xff", 'salu'))
    E(raw("s_cbranch_scc1 L_poll_done", 'branch'))
    if CFG.poll_sleep: E(raw(f"s_sleep {CFG.poll_sleep}", 'salu'))
    E(raw(f"s_sub_u32 s{S_T1}, s{S_T1}, 1", 'salu')); E(raw(f"s_cmp_lg_u32 s{S_T1}, 0", 'salu')); E(raw("s_cbranch_scc1 L_poll", 'branch'))
    E(label("L_poll_done"))
    E(barrier())
    stamp(4)
    P += part_loads(0, SDST)
    XD = [192, 196]
    for blk, oo in enumerate((S_OO0, S_OO1)): E(vload('buffer_load_dwordx4', v(XD[blk], 4), v(232), s(S_XS, 4), s(oo), 0, tag='xf'))
    E(salu('s_mov_b32', s(S_T2), '0xffff0000'))
    for blk in range(2):
        SA = 8 * blk
        ps = part_sum(lambda k: SDST(blk, k), SA)
        if blk == 0 and CFG.stamps == 't': ps.insert(1, raw("s_memrealtime s[84:85]", 'salu'))
        if blk == 1 and CFG.stamps == 't': ps.append(raw("s_memrealtime s[86:87]", 'salu'))
        P += ps
        g = GA[blk]; h = 16 + 4 * blk; u = 24 + 16 * blk
        for k in range(8): E(valu('v_mul_f32', v(SA + k), v(SA + k), v(g + k)))
        for k in range(4): E(valu('v_cvt_pk_bf16_f32', v(h + k), v(SA + 2 * k), v(SA + 2 * k + 1)))
        E(valu('v_permlane32_swap_b32', v(h), v(h + 2))); E(valu('v_permlane32_swap_b32', v(h + 1), v(h + 3)))
        E(valu('v_permlane16_swap_b32', v(h), v(h + 2))); E(valu('v_permlane16_swap_b32', v(h + 1), v(h + 3)))
        for d in range(4):
            E(valu('v_lshlrev_b32', v(u + 2 * d), 16, v(h + d))); E(valu('v_and_b32', v(u + 2 * d + 1), s(S_T2), v(h + d)))
            E(valu('v_lshlrev_b32', v(u + 8 + 2 * d), 16, v(XD[blk] + d))); E(valu('v_and_b32', v(u + 8 + 2 * d + 1), s(S_T2), v(XD[blk] + d)))
        for k in range(8): E(valu('v_add_f32', v(u + k), v(u + k), v(u + 8 + k)))
        for k in range(4): E(valu('v_cvt_pk_bf16_f32', v(h + k), v(u + 2 * k), v(u + 2 * k + 1)))
        E(vstore('buffer_store_dwordx4', v(h, 4), v(232), s(S_OUTS, 4), s((S_OO0, S_OO1)[blk]), 0, CFG.out_flags))
    return P

def units(x):
    if x.kind == 'trans': return 2
    if x.kind == 'nop': return x.tag + 1
    if x.kind == 'label': return 0
    return 1

def build():
    _last_base.clear()
    chunks, groups, marks = build_main()
    nchunks = len(chunks)
    fcount = 0
    for g in groups:
        g.bufs = []
        for _ in g.frs:
            g.bufs.append(A_FB + 4 * (fcount % CFG.nb)); fcount += 1
        g.f0 = fcount - len(g.frs)
        g.mf = g.mk(g.bufs)
    merged = set()
    if CFG.merge_waits:
        gi = 0
        while gi + 1 < len(groups):
            g, h = groups[gi], groups[gi + 1]
            nm = chunks[g.chunk].name
            on = (CFG.merge_waits == 'all') or (CFG.merge_waits == 'att' and nm[0] in 'KV') or (CFG.merge_waits == 'atto' and nm[0] in 'KVO') or (CFG.merge_waits == 'k' and nm[0] == 'K')
            if on:
                for b in h.bufs: g.mf[0].extra_need |= set(regs(a(b, 4)))
                merged.add(gi)
            gi += 2
    mstart = []; m = 0
    for g in groups:
        mstart.append(m); m += len(g.mf)
    mstart.append(m); NM = m
    M = {k: mstart[i] for k, i in marks.items()}
    chunk_first_m = {}
    for gi, g in enumerate(groups): chunk_first_m.setdefault(g.chunk, mstart[gi])
    chunk_first_m[nchunks] = NM
    def first_chunk(name):
        return min(i for i, c in enumerate(chunks) if c.name.startswith(name))
    forced = {first_chunk("O s0 j0"), first_chunk("O s0 j2"), first_chunk("O s0 j4"), first_chunk("O s0 j6")}
    bars = []; b = 0
    while b < nchunks:
        bars.append(b)
        b += 1 if (CFG.bar_every == 1 or (b + 1) in forced) else 2
    barset = set(bars)
    nextbar = {bb: (bars[i + 1] if i + 1 < len(bars) else nchunks) for i, bb in enumerate(bars)}
    def bar_at_or_after(c):
        return min(bb for bb in bars if bb >= c)

    side = []
    seq = [0]
    def spread(ins, m0, m1, early=True):
        n = len(ins)
        for k, x in enumerate(ins):
            side.append([m0 + (m1 - m0) * k / max(n, 1), seq[0], m0 if early else None, x]); seq[0] += 1
    def at(ins, m0):
        for x in ins:
            side.append([m0, seq[0], None, x]); seq[0] += 1
    LAT = 6
    if CFG.f1mix:
        spread(geglu(0), M["F1_1"] + LAT, M["F1_2"] - 2)
        spread(geglu(1), M["F1_2"] + LAT, M["Q_0"] - 2)
        spread(geglu(2), M["Q_0"] + LAT, M["Q_0"] + 76)
        spread(geglu(3), M["Q_0"] + 78, M["Q_1"] - 6)
    else:
        spread(geglu(0), M["F1_1"] + LAT, M["F1_2"] + 20)
        spread(geglu(1), M["F1_2"] + 24, M["F1_3"] + 10)
        spread(geglu(2), M["F1_3"] + 14, M["Q_0"] + 50)
        spread(geglu(3), M["Q_0"] + 54, M["Q_1"] - 8)
    pre_dma = {}
    pre_dma[first_chunk("Q ")] = dv_setup(V_DVB, 8192)
    pre_dma[first_chunk("F2")] = dv_setup(V_DVA, 896)
    pre_dma[first_chunk("K0")] = dv_setup_K(V_DVB)
    pre_dma[first_chunk("V0")] = dv_setup(V_DVA, 512)
    pre_dma[first_chunk("O ")] = dv_setup(V_DVB, 896)
    qn = ["Q_1", "Q_2", "Q_3", "F2_0"]; qe = ["Q_2", "Q_3", "F2_0", "F2_1"]
    for st in range(4):
        spread(qconv(st), M[qn[st]] + LAT, M[qe[st]] - 8)
    hc = bar_at_or_after(first_chunk("Q s2 j0"))
    fence = {hc: ['hw']}; fence_count = {'hw': 8, 'ow1': 8, 'ow2': 8, 'pr1': 8}
    q3 = first_chunk("Q s3 j0")
    for i in range(7):
        m0 = chunk_first_m[q3 + i // 2 + 1] + 1
        at([ds_read('ds_read_b128', a(A_H + (i * 2 + ct) * 4, 4), v(V_HR), i * 4096 + ct * 1024, tag='hr') for ct in range(2)], m0 + 2 * (i & 1))
    spread(gconv(0), M["F2_1"] + LAT, M["F2_2"] - 8)
    spread(gconv(1), M["F2_2"] + LAT, M["F2_3"] - 8)
    spread(gconv(2), M["F2_3"] + LAT, M["S_0"] + 8)
    spread(gconv(3), M["S_0"] + 12, M["S_1"] - 2)
    spread(softmax_first() + softmax_body(0), M["S_1"] + LAT, M["S_2"] - 2)
    at([valu('v_add_f32', v(V_L0), v(V_L0), v(V_TS0)), valu('v_add_f32', v(V_L1), v(V_L1), v(V_TS1))], M["S_2"] - 1)
    for t in range(1, 16):
        if t < 15: m0, m1 = M[f"S_{t+1}"], (M[f"S_{t+2}"] if t < 14 else M["PV_14"])
        else: m0, m1 = M["PV_14"], M["PV_15"]
        body = softmax_body(t)
        if t == 1: body = s1_fix() + body
        spread(body, m0 + (LAT if t == 1 else 1), m1 - 3)
        at(softmax_check(t), m1 - 1)
    k = 0
    for li in range(7):
        for ct in range(2):
            if CFG.fused: t = 1 + k // 2; off = 8 + 12 * (k & 1)
            else: t = 1 + k; off = 8
            at(gstore(li, ct), M[f"PV_{t-1}"] + off); k += 1
    if CFG.fused:
        fa1, fa2 = flag_setup()
        at(fa1, M["S_2"] + 4); at(fa2, M["S_2"] + 24)
        ta1, ta2 = tail_setup()
        at(ta1, M["O_0"] + 40); at(ta2, M["O_part"] + 20)
    fin = interleave(xlane_reduce('v_add_f32', V_L0, V_T), xlane_reduce('v_add_f32', V_L1, V_T + 1))
    fin += [valu('v_rcp_f32', v(V_RL0), v(V_L0)), valu('v_rcp_f32', v(V_RL1), v(V_L1))]
    spread(fin, M["PV_15"], M["PV_15"] + 10, early=False)
    allnorm = []
    for ks in range(8): allnorm += onorm(2 * ks) + onorm(2 * ks + 1)
    spread(allnorm, M["PV_15"] + 12, M["O_0"] + 28, early=False)
    oj2, oj4, oj6 = first_chunk("O s0 j2"), first_chunk("O s0 j4"), first_chunk("O s0 j6")
    fence[oj2] = ['ow1']; fence[oj4] = ['pr1']; fence[oj6] = ['ow2']
    after_bar = {}
    vmfence = {}
    if CFG.fused:
        gb = bar_at_or_after(first_chunk("K11"))
        vmfence[gb] = ['gst']; fence_count_vm = {'gst': 14}
        after_bar[gb] = flag_store(1)
        fb = bar_at_or_after(first_chunk("O s1 j0"))
        after_bar[fb] = flag_load()
        cb = bar_at_or_after(first_chunk("O s1 j6"))
        after_bar[cb] = flags_nonzero() + [nop(3), raw("s_cbranch_vccz L_gspin\nL_gback:", 'branch', ['vcc'])]
    after_bar[oj2] = [ds_read('ds_read_b128', a(A_PART + i * 4, 4), v(V_XR), i * 1024, tag='pr1') for i in range(8)]
    after_bar[oj4] = [ds_write('ds_write_b128', v(V_XW), v(8 * i, 4), (i - 8) * 1024, tag='ow2') for i in range(8, 16)]
    after_bar[oj6] = [ds_read('ds_read_b128', a(A_PART + i * 4, 4), v(V_XR), (i - 8) * 1024, tag='pr2') for i in range(8, 16)]
    o3 = [salu('s_lshl_b32', s(S_T0), s(S_CH), 13), salu('s_xor_b32', s(S_T2), s(S_T0), 8192)]
    for k in range(4): o3.append(valu('v_add_u32', v(V_TS + 4 + k), s(S_T2), v(V_TS + k)))
    for k in range(4): o3.append(valu('v_add_u32', v(V_TS + k), s(S_T0), v(V_TS + k)))
    spread(o3, M["O_1"] + 8, M["O_1"] + 30, early=False)
    spread(sconv(0), M["O_1"] + LAT, M["O_1"] + 60)
    spread(sconv(1), M["O_2"] + LAT, M["O_2"] + 60)
    spread(sconv(2), M["O_3"] + LAT, M["O_3"] + 40)
    tail = sconv(3)

    if CFG.warm_w:
        w_f1, w_setup, w_issue = warm_weights()
        for item in CFG.warm_main.split('+'):
            if not item: continue
            k, where, off = item.split(':')
            at(w_issue[k], M[where] + int(off))
    STAMP = ["F1_0", "Q_0", "F2_0", "S_0", "S_2", "PV_14", "O_0"]
    if CFG.stamps == 'pro': STAMP = ["F1_0", "F1_1", "F1_2", "F1_3"]
    if CFG.stamps == 'p2': STAMP = ["F1_0"]
    if CFG.stamps == 't': STAMP = ["O_3"]
    if CFG.stamps == 'f1': STAMP = ["F1_0", "F1_1", "F1_2", "F1_3", "Q_0", "Q_1", "Q_2"]
    if CFG.stamps == 'o': STAMP = ["PV_14", "PV_15", "O_0", "O_part", "O_1", "O_2", "O_3"]
    if CFG.stamps == 'q': STAMP = ["Q_0", "Q_1", "Q_2", "Q_3", "F2_0", "F2_2", "S_0"]
    if CFG.stamps == 'a': STAMP = ["S_2", "PV_0", "S_3", "PV_1", "S_4", "S_8", "S_12"]
    sbase = 3 if CFG.stamps == 'pro' else (6 if CFG.stamps == 'p2' else 0)
    if CFG.stamps:
        for k0, nm in enumerate(STAMP):
            k = k0 + sbase
            at([raw(f"s_memrealtime s[{74+2*k}:{75+2*k}]", 'salu')], M[nm])
    side.sort(key=lambda x: (x[0], x[1]))

    P = prologue()
    if CFG.warm_first and CFG.warm_w:
        xl = [x for x in P if x.kind == 'vload' and x.tag == 'x']
        P = [x for x in P if not (x.kind == 'vload' and x.tag == 'x')]
        k = [i for i, x in enumerate(P) if x.text.startswith('s_mov_b32 s11,')][0] + 1
        P = P[:k] + (w_f1 + xl if CFG.warm_first == 1 else xl + w_f1) + P[k:]
    if CFG.stamps:
        P.insert(2, raw("s_memrealtime s[88:89]", 'salu'))
        P.append(raw("s_mov_b32 s67, s88", 'salu'))
    pro_v = []
    if CFG.stamps == 'p2': P.append(raw("s_memrealtime s[74:75]", 'salu'))
    wc = []
    P += wc
    if CFG.warm_w: P += w_setup
    if CFG.fused:
        P += [valu('v_mov_b32', v(V_Z), '0x7ffffff0'), salu('s_lshl_b32', s(S_T2), s(S_W), 6), valu('v_add_u32', v(V_U1), s(S_T2), v(V_LANE)),
              valu('v_cmp_eq_u32', 'vcc', 0, v(V_U1)), nop(1), valu('v_cndmask_b32', v(V_Z), v(V_Z), 0, 'vcc')]
        P += wsflag_store(0, V_Z)
    P += prologue2()
    late = chunk_dma(0, chunks[0]) + chunk_dma(1, chunks[1])
    wl_b = chunk_dma(2, chunks[2]) + chunk_dma(3, chunks[3])
    if CFG.stamps == 'p2': P.append(raw("s_memrealtime s[76:77]", 'salu'))
    if CFG.stamps == 'p2': P.append(raw("s_memrealtime s[78:79]", 'salu'))
    LN = layernorm(late, wl_b)
    if CFG.stamps == 'p2':
        kb = [i for i, x in enumerate(LN) if x.kind == 'barrier'][0]
        LN.insert(kb, raw("s_memrealtime s[84:85]", 'salu'))
        kd = [i for i, x in enumerate(LN) if x.text.startswith('v_add_f32_dpp')][0]
        LN.insert(kd, raw("s_memrealtime s[82:83]", 'salu'))
        LN.insert(10, raw("s_memrealtime s[80:81]", 'salu'))
    if CFG.stamps == 'pro':
        LN.insert(8, raw("s_memrealtime s[76:77]", 'salu'))
        LN.insert(0, raw("s_memrealtime s[74:75]", 'salu'))
        kb = [i for i, x in enumerate(LN) if x.kind == 'barrier'][0]
        LN.insert(kb, raw("s_memrealtime s[78:79]", 'salu'))
    P += LN

    for gi, g in enumerate(groups):
        g.reads = []
        for fi, fr in enumerate(g.frs):
            g.reads += fr(g.bufs[fi], g.chunk % NSLOT, g.chunk)
    st8 = dict(opened=-1, issued=3, rg=0, ri=0, sp=0, prevbar=None)
    dq = []
    xq = []
    gap = [0]
    def emit(x):
        P.append(x); gap[0] += units(x)
    def open_bar(c, mi):
        while dq: emit(dq.pop(0)[1])
        if c in fence:
            for tg in fence[c]:
                have = sum(1 for x in P if x.tag == tg); want = fence_count[tg]
                assert have == want, (tg, have, want)
            P.append(wait_lgkm_tag(fence[c]))
        if c in vmfence:
            for tg in vmfence[c]:
                have = sum(1 for x in P if x.tag == tg); assert have == 14, (tg, have)
            P.append(wait_vm_tag(vmfence[c]))
        pb0 = st8['prevbar']
        lim0 = 5 if pb0 is None else pb0 + NSLOT - 1
        P.append(wait_lgkm_tag([('rd', cc) for cc in range(max(0, lim0 - NSLOT - 3), lim0 - NSLOT + 1)]))
        cover = list(range(c, nextbar[c]))
        P.append(wait_vm_tag([('dma', cc) for cc in cover])); gap[0] += 1
        emit(barrier())
        st8['opened'] = nextbar[c] - 1
        pb = st8['prevbar']
        lim = 5 if pb is None else pb + NSLOT - 1
        st8['prevbar'] = c
        todo = []
        while st8['issued'] < min(lim, nchunks - 1):
            n = st8['issued'] + 1
            if n in pre_dma: todo += pre_dma[n]
            todo += chunk_dma(n, chunks[n]); st8['issued'] = n
        nd = sum(1 for x in todo if x.kind == 'dma')
        if nd:
            L = max(4, chunk_first_m[nextbar[c]] - chunk_first_m[c] - 2)
            step = L / nd
            k = 0; pend = []
            for x in todo:
                if x.kind == 'dma':
                    pos = mi + 1 + k * step
                    for j, y in enumerate(pend): dq.append([pos - step * (len(pend) - j) / (len(pend) + 1) if k > 0 else mi, y])
                    pend = []
                    dq.append([pos, x]); k += 1
                else: pend.append(x)
        if CFG.fused and CFG.gl_early and st8['issued'] == nchunks - 1 and not st8.get('gl'):
            st8['gl'] = True
            base = (dq[-1][0] if dq else mi) + 1
            gl = part_loads(1, GDST)
            for k, y in enumerate(gl): dq.append([base + k * 0.75, y])
        if c in after_bar: xq.extend(after_bar[c])
    def can_read(gidx, cur):
        g = groups[gidx]
        prevf = g.f0 + len(g.frs) - 1 - CFG.nb
        return prevf < 0 or groups[cur].f0 > prevf
    def issue_reads(cur, maxn, mi):
        n = 0
        while st8['rg'] < len(groups) and n < maxn and can_read(st8['rg'], cur):
            g = groups[st8['rg']]
            if g.chunk > st8['opened']:
                assert g.chunk in barset, g.chunk
                open_bar(g.chunk, mi)
            r = g.reads[st8['ri']]
            emit(r); st8['ri'] += 1; n += 1
            if st8['ri'] == len(g.reads): st8['rg'] += 1; st8['ri'] = 0
        return n
    while st8['rg'] < len(groups) and groups[st8['rg']].f0 + len(groups[st8['rg']].frs) <= CFG.nb: issue_reads(0, 1, 0)
    mi = 0
    for gi, g in enumerate(groups):
        while st8['rg'] <= gi:
            if not issue_reads(gi, 8, mi): raise Exception("cannot issue reads")
        for k, mf in enumerate(g.mf):
            P.append(mf); gap[0] = 0
            last = (k == len(g.mf) - 1)
            if last and gi not in merged: gap[0] += 1
            cur = gi + 1 if (last and gi + 1 < len(groups)) else gi
            nrd = len(groups[min(st8['rg'], len(groups) - 1)].reads)
            issue_reads(cur, 1 if len(g.mf) >= 4 else 2, mi)
            while xq and gap[0] < 2: emit(xq.pop(0))
            while dq and dq[0][0] <= mi: emit(dq.pop(0)[1])
            while st8['sp'] < len(side):
                dl, _, early, x = side[st8['sp']]
                if dl <= mi or (CFG.fill and early is not None and early <= mi and gap[0] + units(x) <= 2):
                    emit(x); st8['sp'] += 1
                else: break
            mi += 1
    while xq: emit(xq.pop(0))
    while st8['sp'] < len(side):
        P.append(side[st8['sp']][3]); st8['sp'] += 1
    while dq: P.append(dq.pop(0)[1])
    P += tail
    if CFG.stamps: P.append(raw("s_memrealtime s[44:45]", 'salu'))
    if CFG.fused: P += fused_tail()
    P.append(raw("s_waitcnt vmcnt(0)", 'wait_raw'))
    if CFG.stamps:
        P.append(raw("s_memrealtime s[46:47]", 'salu'))
        P.append(raw("s_waitcnt lgkmcnt(0)", 'wait_raw'))
        P.append(salu('s_lshl_b32', s(S_T0), s(2), 2)); P.append(salu('s_add_u32', s(S_T0), s(S_T0), s(S_W))); P.append(salu('s_lshl_b32', s(S_T0), s(S_T0), 6))
        P.append(salu('s_add_u32', s(S_T0), s(S_T0), 30 << 20)); P.append(salu('s_mov_b32', s(S_WS + 2), 40 << 20))
        order = [67] + [74 + 2 * k for k in range(7)] + [44, 46, 46, 46]
        for k, r in enumerate(order): P.append(valu('v_mov_b32', v(k), s(r)))
        P.append(valu('v_mov_b32', v(16), 0))
        P.append(raw("s_mov_b64 exec, 1", 'salu'))
        for k in range(3): P.append(vstore('buffer_store_dwordx4', v(4 * k, 4), v(16), s(S_WS, 4), s(S_T0), 16 * k))
        P.append(raw("s_waitcnt vmcnt(0)", 'wait_raw'))
        if CFG.dbgstamps is not False:
            P.append(raw("s_load_dwordx2 s[4:5], s[0:1], 80", 'salu')); P.append(raw("s_waitcnt lgkmcnt(0)", 'wait_raw'))
            P.append(salu('s_mov_b32', s(6), 256)); P.append(salu('s_mov_b32', s(7), '0x00020000'))
            for k in range(1, 11): P.append(valu('v_sub_u32', v(k), v(k), v(0)))
            P.append(salu('s_lshl_b32', s(S_T0), s(2), 2)); P.append(salu('s_add_u32', s(S_T0), s(S_T0), s(S_W)))
            P.append(salu('s_cmp_eq_u32', s(S_T0), int(CFG.dbgstamps))); P.append(raw("s_cbranch_scc0 L_main_end", 'branch'))
            for k in range(3): P.append(vstore('buffer_store_dwordx4', v(4 * k, 4), v(16), s(4, 4), '0', 16 * k))
            P.append(raw("s_waitcnt vmcnt(0)", 'wait_raw'))
    P.append(label("L_main_end")); P.append(raw("s_endpgm", 'branch'))
    for t in range(1, 16):
        P.append(label(f"L_slow_{t}"))
        P.append(raw(f"s_call_b64 s[{S_RET}:{S_RET+1}], L_slowsub_{t & 1}", 'branch', [], [s(S_RET, 2)]))
        P.append(raw(f"s_branch L_back_{t}", 'branch'))
    P += slow_path(0); P += slow_path(1)
    if CFG.fused:
        G = []
        G.append(label("L_gspin")); G.append(raw(f"s_mov_b32 s{S_T1}, {CFG.spin}", 'salu'))
        G.append(label("L_gspin_loop"))
        G.append(raw(f"s_lshl_b32 s{S_T2}, s{S_RB}, 3", 'salu')); G.append(raw(f"v_mov_b32 v{V_U2}, 0", 'salu'))
        G.append(raw(f"buffer_load_dwordx2 v[{V_FL0}:{V_FL0+1}], v{V_U2}, s[{S_DBG}:{S_DBG+3}], s{S_T2} offen sc1", 'salu'))
        G.append(raw("s_waitcnt vmcnt(0)", 'salu'))
        for x in flags_nonzero(): G.append(raw(x.text, 'salu'))
        G.append(raw("s_nop 4", 'salu')); G.append(raw("s_cbranch_vccnz L_gback", 'branch'))
        G.append(raw(f"s_sub_u32 s{S_T1}, s{S_T1}, 1", 'salu')); G.append(raw(f"s_cmp_lg_u32 s{S_T1}, 0", 'salu'))
        G.append(raw("s_cbranch_scc1 L_gspin_loop", 'branch')); G.append(raw("s_branch L_gback", 'branch'))
        P += G
    P.append(label("L_main_code_end"))
    if CFG.stampop != 's_memrealtime':
        for x in P:
            if x.text.startswith('s_memrealtime'): x.text = x.text.replace('s_memrealtime', CFG.stampop)
    Pf, stats = finalize(P)
    if 'nodma' in CFG.abl: Pf = [x for x in Pf if x.kind != 'dma']
    if 'nobar' in CFG.abl: Pf = [x for x in Pf if x.kind != 'barrier']
    if 'novm' in CFG.abl: Pf = [x for x in Pf if not (x.kind == 'wait' and 'vmcnt' in x.text)]
    if 'nolgkm' in CFG.abl:
        k0 = [i for i, x in enumerate(Pf) if x.kind == 'mfma'][0]
        Pf = [x for i, x in enumerate(Pf) if i < k0 or not (x.kind == 'wait' and 'lgkm' in x.text)]
    if 'nostore' in CFG.abl: Pf = [x for x in Pf if not (x.kind == 'vstore' and x.tag in ('gst', 'sst'))]
    return Pf, stats, M, NM

def reduce_kernel():
    P = []; E = P.append
    E(salu('s_cmp_ge_u32', s(2), 448)); E(raw("s_cbranch_scc1 L_red_end", 'branch'))
    if CFG.stamps: E(raw("s_memrealtime s[34:35]", 'salu'))
    E(raw("s_load_dwordx2 s[4:5], s[0:1], 0")); E(raw("s_load_dwordx2 s[6:7], s[0:1], 72")); E(raw("s_load_dwordx2 s[8:9], s[0:1], 88"))
    E(valu('v_and_b32', v(1), 63, v(0))); E(valu('v_lshrrev_b32', v(2), 6, v(0)))
    E(valu('v_lshlrev_b32', v(3), 4, v(1)))
    E(valu('v_readfirstlane_b32', s(20), v(2)))
    E(salu('s_lshl_b32', s(21), s(2), 2)); E(salu('s_add_u32', s(21), s(21), s(20)))
    E(salu('s_mul_hi_u32', s(22), s(21), (2 ** 32 + 55) // 56))
    E(salu('s_mul_i32', s(23), s(22), 56)); E(salu('s_sub_u32', s(23), s(21), s(23)))
    E(raw("s_waitcnt lgkmcnt(0)", 'wait_raw'))
    E(salu('s_mov_b32', s(12), s(8))); E(salu('s_mov_b32', s(13), s(9))); E(salu('s_mov_b32', s(14), 2 * 256 * 57344)); E(salu('s_mov_b32', s(15), '0x00020000'))
    E(salu('s_mul_i32', s(24), s(22), 8 * 57344)); E(salu('s_lshl_b32', s(25), s(23), 10)); E(salu('s_add_u32', s(24), s(24), s(25)))
    for which in range(2):
        for k in range(8):
            E(salu('s_add_u32', s(26), s(24), which * 256 * 57344 + k * 57344))
            E(vload('buffer_load_dwordx4', v(16 + (which * 8 + k) * 4, 4), v(3), s(12, 4), s(26), 0, tag='p'))
    E(salu('s_and_b32', s(27), s(23), 1))
    E(salu('s_lshr_b32', s(28), s(23), 1))
    E(salu('s_cmp_ge_u32', s(28), 14)); E(salu('s_cselect_b32', s(29), 1, 0))
    E(salu('s_mul_i32', s(30), s(29), 14)); E(salu('s_sub_u32', s(28), s(28), s(30)))
    E(salu('s_lshl_b32', s(30), s(22), 6)); E(salu('s_lshl_b32', s(31), s(29), 5)); E(salu('s_add_u32', s(30), s(30), s(31)))
    E(salu('s_lshl_b32', s(31), s(27), 4)); E(salu('s_add_u32', s(30), s(30), s(31)))
    E(salu('s_mul_i32', s(30), s(30), 896)); E(salu('s_lshl_b32', s(31), s(28), 6)); E(salu('s_add_u32', s(30), s(30), s(31)))
    E(valu('v_and_b32', v(4), 15, v(1))); E(valu('v_lshrrev_b32', v(5), 4, v(1)))
    E(salu('s_mov_b32', s(32), 896)); E(valu('v_lshlrev_b32', v(5), 4, v(5))); E(valu('v_mad_u32_u24', v(4), v(4), s(32), v(5)))
    E(salu('s_mov_b32', s(16), s(4))); E(salu('s_mov_b32', s(17), s(5))); E(salu('s_mov_b32', s(18), 2048 * 896)); E(salu('s_mov_b32', s(19), '0x00020000'))
    E(vload('buffer_load_dwordx4', v(8, 4), v(4), s(16, 4), s(30), 0, tag='x'))
    E(salu('s_mov_b32', s(33), '0xffff0000'))
    for which in range(2):
        acc = 80 + 8 * which
        for k in range(8):
            src = 16 + (which * 8 + k) * 4
            for d in range(4):
                E(valu('v_lshlrev_b32', v(96), 16, v(src + d))); E(valu('v_and_b32', v(97), s(33), v(src + d)))
                if k == 0:
                    E(valu('v_mov_b32', v(acc + 2 * d), v(96))); E(valu('v_mov_b32', v(acc + 2 * d + 1), v(97)))
                else:
                    E(valu('v_add_f32', v(acc + 2 * d), v(acc + 2 * d), v(96))); E(valu('v_add_f32', v(acc + 2 * d + 1), v(acc + 2 * d + 1), v(97)))
    for k in range(8): E(valu('v_mul_f32', v(100 + k), lit(-math.log2(math.e)), v(88 + k)))
    for k in range(8): E(valu('v_exp_f32', v(100 + k), v(100 + k)))
    for k in range(8): E(valu('v_add_f32', v(100 + k), '1.0', v(100 + k)))
    for k in range(8): E(valu('v_rcp_f32', v(100 + k), v(100 + k)))
    for k in range(8): E(valu('v_mul_f32', v(88 + k), v(88 + k), v(100 + k)))
    for k in range(8): E(valu('v_mul_f32', v(80 + k), v(80 + k), v(88 + k)))
    for k in range(4): E(valu('v_cvt_pk_bf16_f32', v(108 + k), v(80 + 2 * k), v(81 + 2 * k)))
    E(valu('v_permlane32_swap_b32', v(108), v(110))); E(valu('v_permlane32_swap_b32', v(109), v(111)))
    E(valu('v_permlane16_swap_b32', v(108), v(110))); E(valu('v_permlane16_swap_b32', v(109), v(111)))
    for d in range(4):
        E(valu('v_lshlrev_b32', v(80 + 2 * d), 16, v(108 + d))); E(valu('v_and_b32', v(81 + 2 * d), s(33), v(108 + d)))
        E(valu('v_lshlrev_b32', v(88 + 2 * d), 16, v(8 + d))); E(valu('v_and_b32', v(89 + 2 * d), s(33), v(8 + d)))
    for k in range(8): E(valu('v_add_f32', v(80 + k), v(80 + k), v(88 + k)))
    for k in range(4): E(valu('v_cvt_pk_bf16_f32', v(108 + k), v(80 + 2 * k), v(81 + 2 * k)))
    E(salu('s_mov_b32', s(16), s(6))); E(salu('s_mov_b32', s(17), s(7)))
    E(vstore('buffer_store_dwordx4', v(108, 4), v(4), s(16, 4), s(30), 0))
    E(raw("s_waitcnt vmcnt(0)", 'wait_raw'))
    if CFG.stamps:
        E(raw("s_memrealtime s[36:37]", 'salu')); E(raw("s_waitcnt lgkmcnt(0)", 'wait_raw'))
        E(salu('s_lshl_b32', s(21), s(21), 3)); E(salu('s_add_u32', s(21), s(21), 31 << 20)); E(salu('s_mov_b32', s(14), 40 << 20))
        E(valu('v_mov_b32', v(8), s(34))); E(valu('v_mov_b32', v(9), s(36))); E(valu('v_mov_b32', v(10), 0))
        E(raw("s_mov_b64 exec, 1", 'salu'))
        E(vstore('buffer_store_dwordx2', v(8, 2), v(10), s(12, 4), s(21), 0)); E(raw("s_waitcnt vmcnt(0)", 'wait_raw'))
        if CFG.dbgstamps is not False:
            E(salu('s_cmp_eq_u32', s(2), 447)); E(raw("s_cbranch_scc0 L_red_end", 'branch'))
            E(salu('s_cmp_eq_u32', s(20), 3)); E(raw("s_cbranch_scc0 L_red_end", 'branch'))
            E(raw("s_load_dwordx2 s[4:5], s[0:1], 80", 'salu')); E(raw("s_waitcnt lgkmcnt(0)", 'wait_raw'))
            E(salu('s_mov_b32', s(6), 256)); E(salu('s_mov_b32', s(7), '0x00020000'))
            E(salu('s_mov_b32', s(21), (30 << 20) + int(CFG.dbgstamps) * 64))
            for k in range(3): E(vload('buffer_load_dwordx4', v(16 + 4 * k, 4), v(10), s(12, 4), s(21), 16 * k, 'sc1'))
            E(raw("s_waitcnt vmcnt(0)", 'wait_raw'))
            E(valu('v_mov_b32', v(26), v(8))); E(valu('v_mov_b32', v(27), v(9)))
            for k in range(17, 28): E(valu('v_sub_u32', v(k), v(k), v(16)))
            for k in range(3): E(vstore('buffer_store_dwordx4', v(16 + 4 * k, 4), v(10), s(4, 4), '0', 16 * k))
            E(raw("s_waitcnt vmcnt(0)", 'wait_raw'))
    E(label("L_red_end")); E(raw("s_endpgm", 'branch'))
    Pf, _ = finalize(P)
    return Pf

HEADER = """; Kernarg layout (96 bytes, ptrs only, base s[0:1]):
; Generated by gen/gen.py (hand-written generator).  Two launches:
;  1. fused_main_kernel: workgroup = (64 rows, kv head): LayerNorm, GEGLU FFN slice, q projection, attention, output projection
;     -> bf16 partial sums of s and g in d_ws
; @launch kernel=fused_main_kernel grid=(256,1,1) block=(256,1,1) lds=163840
; @launch kernel=fused_reduce_kernel grid=(448,1,1) block=(256,1,1) lds=0
.amdgcn_target "amdgcn-amd-amdhsa--gfx950"
.text
"""
HEADER_FUSED = """; Kernarg layout (96 bytes, ptrs only, base s[0:1]):
; Generated by gen/gen.py (hand-written generator).
; workgroup = (64 rows, kv head): LayerNorm, GEGLU FFN slice, q projection, attention, output projection -> bf16 partial sums
; of s and g in d_ws (write-through), hand-off flags in d_debug, then every workgroup reduces 1/8 of its row block:
; @launch grid=(256,1,1) block=(256,1,1) lds=163840
.amdgcn_target "amdgcn-amd-amdhsa--gfx950"
.text
"""
def kd(name, nv, acc, ns):
    return f""".section .rodata,"a"
.p2align 6
.amdhsa_kernel {name}
  .amdhsa_next_free_vgpr {nv}
  .amdhsa_next_free_sgpr {ns}
  .amdhsa_accum_offset {acc}
  .amdhsa_group_segment_fixed_size 0
  .amdhsa_kernarg_size 96
  .amdhsa_user_sgpr_count 2
  .amdhsa_user_sgpr_kernarg_segment_ptr 1
  .amdhsa_system_sgpr_workgroup_id_x 1
  .amdhsa_float_denorm_mode_32 3
.end_amdhsa_kernel
"""
def generate():
    Pm, stats, M, NM = build()
    if CFG.fused:
        name = KNAME + "_kernel" if CFG.single_name else MAIN
        t = HEADER_FUSED if CFG.single_name else HEADER_FUSED.replace("; @launch grid=", f"; @launch kernel={MAIN} grid=")
        t += f".globl {name}\n.p2align 8\n.type {name},@function\n{name}:\n" + text(Pm) + "\nL_all_code_end:\n"
        t += kd(name, 512, 256, 102)
        return t, Pm, stats, M, NM
    Pr = reduce_kernel()
    t = HEADER
    t += f".globl {MAIN}\n.p2align 8\n.type {MAIN},@function\n{MAIN}:\n" + text(Pm) + "\n"
    t += f".globl {RED}\n.p2align 8\n.type {RED},@function\n{RED}:\n" + text(Pr) + "\nL_all_code_end:\n"
    t += kd(MAIN, 512, 256, 102) + kd(RED, 112, 112, 40)
    return t, Pm, stats, M, NM

if __name__ == "__main__":
    for arg in sys.argv[2:]:
        k, val = arg.split("=")
        setattr(CFG, k, {"True": True, "False": False}.get(val, int(val) if val.lstrip('-').isdigit() else val))
    t, Pm, stats, M, NM = generate()
    out = sys.argv[1] if len(sys.argv) > 1 else f"cdna_kernels/{KNAME}.s"
    open(out, "w").write(t)
    from collections import Counter
    cn = Counter(i.kind for i in Pm)
    print("instrs:", len(Pm), dict(cn)); print(stats, "NM", NM)
```

```python
import sys, math
from asmlib import *

KNAME = "recurrent_scan__sliding_block_cached__glu_gated_geglu__prompt"
MAIN = "fused_main_kernel"
RED = "fused_reduce_kernel"

class Cfg:
    xq_pace = 3
    gl_att = False
    test_delay = False
    gl_early = False
    out_flags = ''
    poll_sleep = 1
    single_name = True
    fused = True
    spin = 200000
    dbgstamps = False
    merge_waits = 'all'
    qlds = False
    f1mix = False
    warm_first = 2
    warm_pro = 'f1'
    warm_main = 'wq:F1_2:2+wd:Q_2:2+k:F2_0:2+v:F2_0:9+wo:S_8:2'
    pro_order = 1
    warm_gran = 128
    warm_early = 2
    bar_every = 2
    fill = True
    pkln = True
    warm_code = True
    warm_w = True
    code_bytes = 72 * 1024
    gdma = True
    dma_gap = 4
    abl = ''
    stampop = 's_memrealtime'
    stamps = False
    store_flags = "sc1"
    gstore_flags = None
    debug = None
    nb = 12
CFG = Cfg()

SLOT = 16384; NSLOT = 8; XA = 131072; XSTAGE = 98304; LDS_BYTES = 163840
XROW = 912
AHEAD = 4

S_X, S_F1, S_WQ, S_WD, S_K, S_V, S_WO, S_WS = 4, 8, 12, 16, 20, 24, 28, 32
S_WG, S_WU = 56, 60
S_KVH, S_RB, S_W, S_CH, S_RH, S_PAR, S_WLDS, S_SOFF = 36, 37, 38, 39, 40, 41, 42, 43
S_F1B = 44
S_QB = 48
S_F2B = 49
S_F2C3, S_F2C10, S_F2C11, S_F2C12 = 52, 53, 54, 55
S_KB, S_VB = 56, 57
S_OOWN = 58
S_OPAR = 61
S_KA = 64
S_O3 = 88
S_PB = 89
S_CB = 90
S_HI = 94
S_T0, S_T1, S_T2 = 98, 99, 100
S_THR = 101
S_ONES = 3
S_RET = 64
S_GB = 66

V_S = 128; V_P = 160; V_NEGM = 176; V_T = 184
V_L0, V_L1, V_TS0, V_TS1, V_TM, V_C1 = 192, 193, 194, 195, 196, 197
V_TAC = 200; V_TS = 208; V_TH = 212; V_KA = 216; V_TA = 224
V_DVA = 232; V_DVB = 236
V_L16, V_HW, V_HR, V_R8, V_SC16, V_XW, V_XR = 240, 241, 242, 243, 244, 245, 246
V_RL0, V_RL1 = 247, 248
V_F1H = 128
V_QW, V_QR = 92, 93
V_LANE, V_N16, V_GQ = 249, 250, 251
V_U0, V_U1, V_U2, V_U3 = 252, 253, 254, 255
HIOFF = 65536
SETS = [0, 32, 96]
def accset(gstep): return SETS[gstep % 3]
A_XB = 0; A_H = 0; A_FB = 112; A_Q = 192; A_G = 56; A_PART = 192

C_GELU0 = -2.0 * math.sqrt(2.0 / math.pi) * math.log2(math.e)
C_GELU1 = C_GELU0 * 0.044715
C_QS = math.log2(math.e) / 16.0
import struct
def f2u(x): return struct.unpack("<I", struct.pack("<f", x))[0]
def lit(x): return f"0x{f2u(x):08x}"

class Group:
    def __init__(self, chunk, frs, mk):
        self.chunk = chunk; self.frs = frs; self.mk = mk
class Chunk:
    def __init__(self, name, srd, dv, soff, imm):
        self.name = name; self.srd = srd; self.dv = dv; self.soff = soff; self.imm = imm; self.pair = dv

def tr_reads(addr_lo, off):
    lo, hi = addr_lo
    def f(buf, slot, c):
        ar = lo if slot < 4 else hi
        o = (slot % 4) * SLOT + off
        return [ds_read("ds_read_b64_tr_b16", a(buf, 2), v(ar), o, tag=('rd', c)),
                ds_read("ds_read_b64_tr_b16", a(buf + 2, 2), v(ar), o + 2048, tag=('rd', c))]
    return f
def b128_read(addr_lo, off):
    lo, hi = addr_lo
    def f(buf, slot, c):
        ar = lo if slot < 4 else hi
        o = (slot % 4) * SLOT + off
        return [ds_read("ds_read_b128", a(buf, 4), v(ar), o, tag=('rd', c))]
    return f

def build_main():
    chunks = []; groups = []
    marks = {}
    def mark(n): marks[n] = len(groups)
    def newchunk(*args):
        chunks.append(Chunk(*args)); return len(chunks) - 1
    TAC = lambda tt: (V_TAC + tt, V_TAC + 4 + tt)
    TS = lambda ti: (V_TS + ti, V_TS + 2 + ti)
    TH = (V_TH, V_TH + 1)
    KA = lambda i: (V_KA + i, V_KA + 4 + i)
    TA = lambda tt: (V_TA + tt, V_TA + 4 + tt)
    XB = lambda ks, ct: a(A_XB + (ks * 2 + ct) * 4, 4)

    def pair_mk(accf, Bf, first):
        def mk(fr):
            out = []
            for ct in range(2):
                for i, f in enumerate(fr):
                    d = v(accf(ct), 4)
                    C = '0' if (first and i == 0) else d
                    out.append(mfma(d, a(f, 4), Bf(i, ct), C, need=[a(x, 4) for x in fr] if (ct == 0 and i == 0) else ()))
            return out
        return mk

    def f1_chunk(st, j):
        base = accset(st) if (st < 3 or not CFG.f1mix) else V_F1H
        c = newchunk(f"F1 s{st} j{j}", S_F1, V_DVA, S_F1B + st, j * 64 * 3584)
        if st == 3 and CFG.f1mix: chunks[c].pair = V_DVB
        tis = range(2) if st < 3 else range(1)
        for ti in tis:
            for mat in range(2):
                ad = TS(ti) if st < 3 else TH
                frs = [tr_reads(ad, (ksl * 2 + mat) * 4096) for ksl in range(2)]
                accf = (lambda ct, mat=mat, ti=ti, base=base: base + ((mat * 2 + ti) * 2 + ct) * 4)
                Bf = (lambda i, ct, j=j: XB(2 * j + i, ct))
                groups.append(Group(c, frs, pair_mk(accf, Bf, j == 0)))
    if CFG.f1mix:
        n = 0
        for st in range(3):
            mark(f"F1_{st}")
            for j in range(7):
                f1_chunk(st, j); n += 1
                if n % 3 == 1: f1_chunk(3, n // 3)
        mark("F1_3")
    else:
        for st in range(4):
            mark(f"F1_{st}")
            for j in range(7): f1_chunk(st, j)
    for st in range(4):
        mark(f"Q_{st}")
        base = accset(4 + st)
        for j in range(7):
            c = newchunk(f"Q s{st} j{j}", S_WQ, V_DVB, S_QB, j * 64 * 8192 + st * 128)
            for tt in range(4):
                frs = [tr_reads(TAC(tt), ksl * 4096) for ksl in range(2)]
                accf = (lambda ct, tt=tt, base=base: base + (tt * 2 + ct) * 4)
                Bf = (lambda i, ct, j=j: XB(2 * j + i, ct))
                groups.append(Group(c, frs, pair_mk(accf, Bf, j == 0)))
    HB = lambda ks, ct: a(A_H + (ks * 2 + ct) * 4, 4)
    KR = 32 * 896
    def f2_pair(c, st, ks0, first):
        base = accset(8 + st)
        for tt in range(4):
            frs = [tr_reads(TAC(tt), ksl * 4096) for ksl in range(2)]
            accf = (lambda ct, tt=tt, base=base: base + (tt * 2 + ct) * 4)
            groups.append(Group(c, frs, pair_mk(accf, (lambda i, ct, ks0=ks0: HB(ks0 + i, ct)), first)))
    def f2_single(c, st, ks, item, first):
        base = accset(8 + st)
        for tt in range(4):
            frs = [tr_reads(TAC(tt), item * 4096)]
            accf = (lambda ct, tt=tt, base=base: base + (tt * 2 + ct) * 4)
            groups.append(Group(c, frs, pair_mk(accf, (lambda i, ct, ks=ks: HB(ks, ct)), first)))
    def f2_shared(c, kss, items, first):
        for ti in range(2):
            frs = [tr_reads(TS(ti), it * 4096) for it in items]
            accf = (lambda ct, ti=ti: accset(11) + (ti * 2 + ct) * 4)
            groups.append(Group(c, frs, pair_mk(accf, (lambda i, ct, kss=kss: HB(kss[i], ct)), first)))
    mark("F2_0")
    for i in range(3):
        c = newchunk(f"F2 s0 p{i}", S_WD, V_DVA, S_F2B + 0, 2 * i * KR); f2_pair(c, 0, 2 * i, i == 0)
    c = newchunk("F2 c3", S_WD, V_DVA, S_F2C3, 6 * KR)
    f2_single(c, 0, 6, 0, False)
    mark("F2_1")
    f2_single(c, 1, 6, 1, True)
    for i in range(3):
        c = newchunk(f"F2 s1 p{i}", S_WD, V_DVA, S_F2B + 1, 2 * i * KR); f2_pair(c, 1, 2 * i, False)
    mark("F2_2")
    for i in range(3):
        c = newchunk(f"F2 s2 p{i}", S_WD, V_DVA, S_F2B + 2, 2 * i * KR); f2_pair(c, 2, 2 * i, i == 0)
    c = newchunk("F2 c10", S_WD, V_DVA, S_F2C10, 0)
    f2_single(c, 2, 6, 0, False)
    mark("F2_3")
    f2_shared(c, [0, 1], [1, 3], True)
    c = newchunk("F2 c11", S_WD, V_DVA, S_F2C11, 2 * KR)
    f2_shared(c, [2, 3], [0, 1], False)
    f2_shared(c, [4, 5], [2, 3], False)
    c = newchunk("F2 c12", S_WD, V_DVA, S_F2C12, 0)
    f2_shared(c, [6], [0], False)
    QB = lambda ks, ct: a(A_Q + (ks * 2 + ct) * 4, 4)
    Sreg = lambda t, T, ct: V_S + 16 * (t & 1) + (ct * 2 + T) * 4
    Preg = lambda t, ct: V_P + 8 * (t & 1) + ct * 4
    Oacc = lambda dt, ct: ((dt >> 1) * 2 + ct) * 8 + (dt & 1) * 4
    def S_phase(t):
        mark(f"S_{t}")
        c = newchunk(f"K{t}", S_K, V_DVB, S_KB, t * 16384)
        for T in range(2):
            for kp in range(4):
                frs = [b128_read(KA((2 * kp + i) & 3), T * 8192 + ((2 * kp + i) >> 2) * 256) for i in range(2)]
                def mk(fr, T=T, kp=kp, t=t):
                    out = []
                    for ct in range(2):
                        for i, f in enumerate(fr):
                            d = v(Sreg(t, T, ct), 4)
                            if kp == 0 and i == 0:
                                C = '0' if t < 2 else v(V_NEGM + 4 * ct, 4)
                            else: C = d
                            out.append(mfma(d, a(f, 4), QB(2 * kp + i, ct), C, need=[a(x, 4) for x in fr] if (ct == 0 and i == 0) else ()))
                    return out
                groups.append(Group(c, frs, mk))
    def PV_phase(t):
        mark(f"PV_{t}")
        c = newchunk(f"V{t}", S_V, V_DVA, S_VB, t * 16384)
        for dp in range(8):
            frs = [tr_reads(TA((2 * dp + i) & 3), ((2 * dp + i) >> 2) * 4096) for i in range(2)]
            def mk(fr, dp=dp, t=t):
                out = []
                for i, f in enumerate(fr):
                    for ct in range(2):
                        d = v(Oacc(2 * dp + i, ct), 4)
                        C = '0' if t == 0 else d
                        out.append(mfma(d, a(f, 4), v(Preg(t, ct), 4), C, need=[a(x, 4) for x in fr] if (ct == 0 and i == 0) else ()))
                return out
            groups.append(Group(c, frs, mk))
    S_phase(0); S_phase(1)
    for t in range(1, 15):
        S_phase(t + 1); PV_phase(t - 1)
    PV_phase(14); PV_phase(15)
    OWN = lambda ks, ct: v((ks * 2 + ct) * 8, 4)
    PART = lambda ks, ct: a(A_PART + (ks * 2 + ct) * 4, 4)
    OB = lambda kk, ct: OWN(kk, ct) if kk < 8 else PART(kk - 8, ct)
    OR = 64 * 896
    for st in range(3):
        mark(f"O_{st}")
        base = 128 + 32 * (st & 1)
        for j in range(8):
            if j < 4: c = newchunk(f"O s{st} j{j}", S_WO, V_DVB, S_OOWN + st, j * OR)
            else: c = newchunk(f"O s{st} j{j}", S_WO, V_DVB, S_OPAR + st, (j - 4) * OR)
            if st == 0 and j == 4: mark("O_part")
            for tt in range(4):
                frs = [tr_reads(TAC(tt), ksl * 4096) for ksl in range(2)]
                accf = (lambda ct, tt=tt, base=base: base + (tt * 2 + ct) * 4)
                groups.append(Group(c, frs, pair_mk(accf, (lambda i, ct, j=j: OB(2 * j + i, ct)), j == 0)))
    mark("O_3")
    for j in range(4):
        c = newchunk(f"O s3 j{j}", S_WO, V_DVB, S_O3, j * OR)
        for who in range(2):
            for ti in range(2):
                ad = (V_TS + who * 4 + ti, V_TS + who * 4 + 2 + ti)
                frs = [tr_reads(ad, ksl * 4096) for ksl in range(2)]
                accf = (lambda ct, ti=ti: 160 + (ti * 2 + ct) * 4)
                groups.append(Group(c, frs, pair_mk(accf, (lambda i, ct, j=j, who=who: OB(8 * who + 2 * j + i, ct)), j == 0 and who == 0)))
    mark("END")
    return chunks, groups, marks

def prologue():
    P = []
    E = P.append
    E(salu('s_cmp_ge_u32', s(2), 256)); E(raw("s_cbranch_scc1 L_main_end", 'branch'))
    E(raw(f"s_load_dwordx16 s[{S_KA}:{S_KA+15}], s[0:1], 0"))
    E(raw(f"s_load_dwordx8 s[{S_KA+16}:{S_KA+23}], s[0:1], 64"))
    if CFG.test_delay is not False:
        E(salu('s_and_b32', s(3), s(2), 7)); E(salu('s_cmp_eq_u32', s(3), int(CFG.test_delay))); E(raw("s_cbranch_scc0 L_nodelay", 'branch'))
        E(salu('s_mov_b32', s(3), 12)); E(label("L_delay")); E(raw("s_sleep 64", 'salu')); E(raw("s_sub_u32 s3, s3, 1", 'salu')); E(raw("s_cmp_lg_u32 s3, 0", 'salu'))
        E(raw("s_cbranch_scc1 L_delay", 'branch')); E(label("L_nodelay"))
    if CFG.warm_code: P += warm_code()
    E(valu('v_and_b32', v(V_LANE), 63, v(0)))
    E(valu('v_lshrrev_b32', v(V_U0), 6, v(0)))
    E(valu('v_and_b32', v(V_N16), 15, v(V_LANE)))
    E(valu('v_readfirstlane_b32', s(S_W), v(V_U0)))
    E(valu('v_lshrrev_b32', v(V_GQ), 4, v(V_LANE)))
    E(valu('v_lshrrev_b32', v(V_R8), 3, v(V_LANE)))
    E(valu('v_lshlrev_b32', v(V_L16), 4, v(V_LANE)))
    E(salu('s_and_b32', s(S_KVH), s(2), 7)); E(salu('s_lshr_b32', s(S_RB), s(2), 3))
    E(salu('s_and_b32', s(S_PAR), s(S_KVH), 1))
    E(salu('s_and_b32', s(S_RH), s(S_W), 1)); E(salu('s_lshr_b32', s(S_CH), s(S_W), 1))
    E(salu('s_lshl_b32', s(S_WLDS), s(S_W), 12))
    E(valu('v_and_b32', v(V_U1), 7, v(V_LANE)))
    E(valu('v_lshlrev_b32', v(V_U2), 4, v(V_U1)))
    E(salu('s_mov_b32', s(S_T0), 896))
    E(valu('v_mad_u32_u24', v(V_U0), v(V_R8), s(S_T0), v(V_U2)))
    E(raw("s_waitcnt lgkmcnt(0)", 'wait_raw'))
    kx, kk, kv, kwq, kwo, kwg, kwu, kwd, kws = [S_KA + o for o in (0, 2, 4, 6, 8, 12, 14, 16, 22)]
    def srd(dst, ptr, nbytes):
        E(salu('s_mov_b32', s(dst), s(ptr))); E(salu('s_mov_b32', s(dst + 1), s(ptr + 1)))
        E(salu('s_mov_b32', s(dst + 2), nbytes)); E(salu('s_mov_b32', s(dst + 3), '0x00020000'))
    srd(S_X, kx, 2048 * 896)
    E(salu('s_mul_i32', s(S_T0), s(S_RB), 57344)); E(salu('s_mul_i32', s(S_T1), s(S_W), 14336))
    E(salu('s_add_u32', s(S_T0), s(S_T0), s(S_T1))); E(salu('s_add_u32', s(S_T1), s(S_T0), 7168))
    for p in range(2):
        for i in range(7):
            E(vload('buffer_load_dwordx4', v((p * 7 + i) * 4, 4), v(V_U0), s(S_X, 4), s(S_T0 + p), i * 128, tag='x'))
    E(salu('s_cmp_eq_u32', s(S_RH), 0))
    E(salu('s_cselect_b32', s(S_F1), s(kwg), s(kwu))); E(salu('s_cselect_b32', s(S_F1 + 1), s(kwg + 1), s(kwu + 1)))
    E(salu('s_mov_b32', s(S_F1 + 2), 448 * 3584)); E(salu('s_mov_b32', s(S_F1 + 3), '0x00020000'))
    srd(S_WQ, kwq, 448 * 8192); srd(S_WD, kwd, 1792 * 896); srd(S_WO, kwo, 4096 * 896)
    srd(S_WS, kws, 2 * 256 * 57344 + 256 * 128)
    for (dst, ptr) in ((S_K, kk), (S_V, kv)):
        E(salu('s_lshl_b32', s(S_T2), s(S_KVH), 20)); E(salu('s_add_u32', s(S_T2), s(S_T2), 1536 * 512))
        E(salu('s_add_u32', s(dst), s(ptr), s(S_T2))); E(salu('s_addc_u32', s(dst + 1), s(ptr + 1), 0))
        E(salu('s_mov_b32', s(dst + 2), 512 * 512)); E(salu('s_mov_b32', s(dst + 3), '0x00020000'))
    E(valu('v_lshrrev_b32', v(V_U2), 1, v(V_R8))); E(valu('v_and_b32', v(V_U2), 3, v(V_U2)))
    E(valu('v_lshlrev_b32', v(V_U2), 1, v(V_U2))); E(valu('v_xor_b32', v(V_U2), v(V_U2), v(V_U1)))
    E(valu('v_lshlrev_b32', v(V_SC16), 4, v(V_U2)))
    P += dv_setup(V_DVA, 3584)
    E(salu('s_mul_i32', s(S_T0), s(S_KVH), 7)); E(salu('s_lshr_b32', s(S_T0), s(S_T0), 1)); E(salu('s_lshl_b32', s(S_T0), s(S_T0), 7))
    E(salu('s_mul_i32', s(S_T1), s(S_CH), 32 * 3584)); E(salu('s_add_u32', s(S_T0), s(S_T0), s(S_T1)))
    for st in range(4):
        P += sel(S_T1, S_PAR, st * 128, (3 - st) * 128)
        E(salu('s_add_u32', s(S_F1B + st), s(S_T0), s(S_T1)))
    return P

def sel(dst, cond, v0, v1):
    d = (v1 - v0) & 0xffffffff
    return [salu('s_mul_i32', s(dst), s(cond), f"0x{d:x}"), salu('s_add_u32', s(dst), s(dst), v0)]

def dv_setup(dst, stride):
    out = [salu('s_mov_b32', s(S_T2), stride),
           valu('v_mad_u32_u24', v(dst), v(V_R8), s(S_T2), v(V_SC16))]
    for j in range(1, 4):
        out.append(valu('v_add_u32', v(dst + j), j * (8 * stride - 1024), v(dst)))
    return out
def dv_setup_K(dst):
    out = [valu('v_lshrrev_b32', v(V_U0), 5, v(V_LANE)), valu('v_and_b32', v(V_U1), 31, v(V_LANE)),
           salu('s_lshl_b32', s(S_T2), s(S_RH), 3),
           valu('v_xor_b32', v(V_U1), v(V_U1), v(V_U0)),
           valu('v_xor_b32', v(V_U1), s(S_T2), v(V_U1)),
           valu('v_lshlrev_b32', v(V_U0), 9, v(V_U0))]
    for j in range(4):
        out.append(valu('v_xor_b32', v(V_U2), 2 * j, v(V_U1)))
        out.append(valu('v_lshl_add_u32', v(dst + j), v(V_U2), 4, v(V_U0)))
    return out

S_GA = {V_DVA: 68, V_DVB: 70}
S_GC = 72
_last_base = {}
def chunk_dma(c, ch):
    slot = c % NSLOT
    if CFG.gdma:
        out = []
        ga = S_GA[ch.pair]
        if _last_base.get(ch.pair) != (ch.srd, ch.soff):
            _last_base[ch.pair] = (ch.srd, ch.soff)
            out += [salu('s_add_u32', s(ga), s(ch.srd), s(ch.soff)), salu('s_addc_u32', s(ga + 1), s(ch.srd + 1), 0)]
        out += [salu('s_add_u32', 'm0', s(S_WLDS), slot * SLOT),
                salu('s_add_u32', s(S_GC), s(ga), ch.imm), salu('s_addc_u32', s(S_GC + 1), s(ga + 1), 0)]
        for j in range(4): out.append(gdma(v(ch.dv + j), s(S_GC, 2), j * 1024, tag=('dma', c)))
        return out
    out = [salu('s_add_u32', 'm0', s(S_WLDS), slot * SLOT),
           salu('s_add_u32', s(S_SOFF), s(ch.soff), ch.imm)]
    for j in range(4):
        imm = j * 1024
        out.append(dma(v(ch.dv + j), s(ch.srd, 4), s(S_SOFF), imm, tag=('dma', c)))
    return out

V_DUM = 198
def warm_code():
    return [raw("s_getpc_b64 s[92:93]", 'salu', [], [s(92, 2)]), label("L_pc_here"),
            salu('s_and_b32', s(93), s(93), '0xffff'),
            raw("s_mov_b32 s94, L_all_code_end-L_pc_here", 'salu', [], [s(94)]), salu('s_mov_b32', s(95), '0x00020000'),
            salu('s_lshr_b32', s(96), s(2), 3), salu('s_and_b32', s(96), s(96), 3), salu('s_lshl_b32', s(96), s(96), 15),
            valu('v_lshlrev_b32', v(V_U3), 7, v(0)),
            vload('buffer_load_dword', v(198), v(V_U3), s(92, 4), s(96), 0, tag='warm')]
WARM_V = {'wq': 132, 'wd': 133, 'k': 134, 'v': 135, 'wo': 199}
WARM_S = {'wq': 4, 'wd': 5, 'k': 6, 'v': 7, 'wo': 43}
def warm_weights():
    W0, W1, W2 = 88, 89, 90
    T0, T2 = 64, 65
    G = CFG.warm_gran; lg = {64: 6, 128: 7}[G]
    head = [valu('v_mov_b32', v(W2), '0x7ffffff0')]
    setup = {}; issue = {}
    def lin(key, srd, nbytes, base):
        V, T1 = WARM_V[key], WARM_S[key]
        per = -(-nbytes // G // 128)
        o = [base(T1), salu('s_mul_i32', s(T2), s(T0), per * G), salu('s_add_u32', s(T1), s(T1), s(T2)),
             valu('v_lshlrev_b32', v(V), lg, v(V_LANE)),
             valu('v_cmp_gt_u32', 'vcc', per, v(V_LANE)), nop(0), valu('v_cndmask_b32', v(V), v(W2), v(V), 'vcc')]
        setup[key] = o; issue[key] = [vload('buffer_load_dword', v(198), v(V), s(srd, 4), s(T1), 0, tag='warm')]
    def strided(key, V, T1, srd, rowbytes, stride, nwaves, colbase):
        npr = rowbytes // G; lgr = npr.bit_length() - 1
        per = 448 * npr // nwaves
        o = list(colbase)
        o += [salu('s_mul_i32', s(T2), s(T0), per),
              valu('v_add_u32', v(W0), s(T2), v(V_LANE)),
              valu('v_lshrrev_b32', v(W1), lgr, v(W0)), valu('v_and_b32', v(W0), npr - 1, v(W0)),
              salu('s_mov_b32', s(T2), stride), valu('v_lshlrev_b32', v(W0), lg, v(W0)),
              valu('v_mad_u32_u24', v(V), v(W1), s(T2), v(W0)),
              valu('v_cmp_gt_u32', 'vcc', per, v(V_LANE)), nop(0), valu('v_cndmask_b32', v(V), v(W2), v(V), 'vcc')]
        setup[key] = o; issue[key] = [vload('buffer_load_dword', v(198), v(V), s(srd, 4), s(T1), 0, tag='warm')]
    strided('f1', 91, 43, S_F1, 512, 3584, 64,
            [salu('s_mul_i32', s(43), s(S_KVH), 7), salu('s_lshr_b32', s(43), s(43), 1), salu('s_lshl_b32', s(43), s(43), 7)])
    f1 = head + [salu('s_lshl_b32', s(T0), s(S_RB), 1), salu('s_add_u32', s(T0), s(T0), s(S_CH))] + setup.pop('f1') + issue.pop('f1')
    strided('wq', WARM_V['wq'], WARM_S['wq'], S_WQ, 1024, 8192, 128, [salu('s_lshl_b32', s(WARM_S['wq']), s(S_KVH), 10)])
    lin('wd', S_WD, 224 * 896, lambda r: salu('s_mul_i32', s(r), s(S_KVH), 224 * 896))
    lin('k', S_K, 262144, lambda r: salu('s_mov_b32', s(r), 0)); lin('v', S_V, 262144, lambda r: salu('s_mov_b32', s(r), 0))
    lin('wo', S_WO, 512 * 896, lambda r: salu('s_mul_i32', s(r), s(S_KVH), 512 * 896))
    allsetup = head + [salu('s_lshl_b32', s(T0), s(S_RB), 2), salu('s_add_u32', s(T0), s(T0), s(S_W))]
    for k in ('wq', 'wd', 'k', 'v', 'wo'): allsetup += setup[k]
    return f1, allsetup, issue

def prologue2():
    P = []; E = P.append
    E(salu('s_lshl_b32', s(S_T0), s(S_KVH), 1)); E(salu('s_add_u32', s(S_T0), s(S_T0), s(S_CH))); E(salu('s_lshl_b32', s(S_T0), s(S_T0), 9))
    E(salu('s_lshl_b32', s(S_T1), s(S_RH), 18)); E(salu('s_add_u32', s(S_QB), s(S_T0), s(S_T1)))
    KR = 32 * 896
    E(salu('s_mul_i32', s(S_T0), s(S_KVH), 224 * 896))
    E(salu('s_mul_i32', s(S_T1), s(S_RH), KR))
    for st in range(3):
        P += sel(S_T2, S_CH, st * 128, (6 - st) * 128)
        E(salu('s_add_u32', s(S_F2B + st), s(S_T0), s(S_T2))); E(salu('s_add_u32', s(S_F2B + st), s(S_F2B + st), s(S_T1)))
    P += sel(S_T2, S_CH, 0, 6 * 128); P += sel(S_F2C3, S_CH, 128, 5 * 128)
    E(salu('s_cmp_eq_u32', s(S_RH), 0)); E(salu('s_cselect_b32', s(S_T2), s(S_T2), s(S_F2C3)))
    E(salu('s_add_u32', s(S_F2C3), s(S_T0), s(S_T2)))
    P += sel(S_T2, S_CH, 6 * KR + 2 * 128, 6 * KR + 4 * 128); P += sel(S_F2C10, S_CH, 384, KR + 384)
    E(salu('s_cmp_eq_u32', s(S_RH), 0)); E(salu('s_cselect_b32', s(S_T2), s(S_T2), s(S_F2C10)))
    E(salu('s_add_u32', s(S_F2C10), s(S_T0), s(S_T2)))
    E(salu('s_mul_i32', s(S_T2), s(S_W), KR)); E(salu('s_add_u32', s(S_F2C11), s(S_T0), s(S_T2))); E(salu('s_add_u32', s(S_F2C11), s(S_F2C11), 384))
    E(salu('s_add_u32', s(S_F2C12), s(S_T0), 6 * KR + 384))
    E(salu('s_lshl_b32', s(S_KB), s(S_W), 12)); E(salu('s_lshl_b32', s(S_VB), s(S_W), 7))
    E(salu('s_lshl_b32', s(S_T0), s(S_KVH), 9)); E(salu('s_lshl_b32', s(S_T1), s(S_RH), 5)); E(salu('s_add_u32', s(S_T0), s(S_T0), s(S_T1)))
    E(salu('s_lshl_b32', s(S_T1), s(S_CH), 8)); E(salu('s_add_u32', s(S_T1), s(S_T0), s(S_T1))); E(salu('s_mul_i32', s(S_T1), s(S_T1), 896))
    E(salu('s_xor_b32', s(S_T2), s(S_CH), 1)); E(salu('s_lshl_b32', s(S_T2), s(S_T2), 8)); E(salu('s_add_u32', s(S_T0), s(S_T0), s(S_T2))); E(salu('s_mul_i32', s(S_T0), s(S_T0), 896))
    for st in range(3):
        P += sel(S_T2, S_CH, st * 128, (6 - st) * 128)
        E(salu('s_add_u32', s(S_OOWN + st), s(S_T1), s(S_T2))); E(salu('s_add_u32', s(S_OPAR + st), s(S_T0), s(S_T2)))
    E(salu('s_add_u32', s(S_O3), s(S_T1), 384))
    E(salu('s_mul_i32', s(S_T0), s(2), 57344))
    E(salu('s_mul_i32', s(S_T1), s(S_RH), 28672)); E(salu('s_add_u32', s(S_PB), s(S_T0), s(S_T1)))
    E(salu('s_add_u32', s(S_GB), s(S_PB), 256 * 57344))
    for st in range(3):
        P += sel(S_CB + st, S_CH, 2 * st * 2048, (12 - 2 * st) * 2048)
    P += sel(S_CB + 3, S_CH, 6 * 2048, 7 * 2048)
    for st in range(3):
        P += sel(S_T0, S_PAR, 2 * st, 2 * (3 - st) - 1)
        E(salu('s_add_u32', s(S_T0), s(S_T0), s(S_CH))); E(salu('s_lshl_b32', s(S_HI + st), s(S_T0), 12))
    P += sel(S_T0, S_PAR, 6 * 4096, 0)
    E(salu('s_lshl_b32', s(S_T1), s(S_CH), 3)); E(salu('s_add_u32', s(S_HI + 3), s(S_T0), s(S_T1)))
    E(salu('s_mov_b32', s(S_THR), lit(65536.0)))
    E(salu('s_mov_b32', s(S_ONES), '0x3f803f80'))
    E(valu('v_bfe_u32', v(V_U0), v(V_LANE), 2, 2))
    E(valu('v_lshl_add_u32', v(V_U1), v(V_GQ), 2, v(V_U0)))
    E(valu('v_lshrrev_b32', v(V_U2), 1, v(V_U1))); E(valu('v_and_b32', v(V_U2), 3, v(V_U2)))
    E(valu('v_and_b32', v(V_U3), 3, v(V_LANE))); E(valu('v_lshlrev_b32', v(V_U3), 3, v(V_U3)))
    E(valu('v_lshl_add_u32', v(V_U3), v(V_U1), 7, v(V_U3)))
    for tt in range(4):
        E(valu('v_xor_b32', v(V_U0), tt, v(V_U2)))
        E(valu('v_lshl_add_u32', v(V_TA + tt), v(V_U0), 5, v(V_U3)))
        E(valu('v_add_u32', v(V_TA + 4 + tt), HIOFF, v(V_TA + tt)))
    E(salu('s_lshl_b32', s(S_T0), s(S_CH), 13))
    for tt in range(8):
        E(valu('v_add_u32', v(V_TAC + tt), s(S_T0), v(V_TA + tt)))
    E(salu('s_lshl_b32', s(S_T0), s(S_CH), 1))
    for ti in range(2):
        E(salu('s_add_u32', s(S_T1), s(S_T0), ti))
        E(valu('v_xor_b32', v(V_U0), s(S_T1), v(V_U2)))
        E(valu('v_lshl_add_u32', v(V_TS + ti), v(V_U0), 5, v(V_U3)))
        E(valu('v_add_u32', v(V_TS + 2 + ti), HIOFF, v(V_TS + ti)))
    E(salu('s_lshl_b32', s(S_T0), s(S_PAR), 1)); E(salu('s_add_u32', s(S_T1), s(S_T0), s(S_CH)))
    E(valu('v_xor_b32', v(V_U0), s(S_T1), v(V_U2)))
    E(valu('v_lshl_add_u32', v(V_TH), v(V_U0), 5, v(V_U3)))
    E(valu('v_add_u32', v(V_TH + 1), HIOFF, v(V_TH)))
    for i in range(4):
        E(valu('v_add_u32', v(V_U0), 4 * i, v(V_GQ))); E(valu('v_xor_b32', v(V_U0), v(V_U0), v(V_N16)))
        E(valu('v_lshlrev_b32', v(V_U0), 4, v(V_U0)))
        E(valu('v_lshl_add_u32', v(V_KA + i), v(V_N16), 9, v(V_U0)))
        E(valu('v_add_u32', v(V_KA + 4 + i), HIOFF, v(V_KA + i)))
    E(salu('s_lshl_b32', s(S_T0), s(S_RH), 11)); E(salu('s_add_u32', s(S_T0), s(S_T0), XA))
    E(valu('v_add_u32', v(V_HR), s(S_T0), v(V_L16)))
    E(salu('s_lshl_b32', s(S_T0), s(S_W), 13)); E(salu('s_add_u32', s(S_T0), s(S_T0), XA))
    E(valu('v_add_u32', v(V_XW), s(S_T0), v(V_L16)))
    E(salu('s_xor_b32', s(S_T0), s(S_W), 2)); E(salu('s_lshl_b32', s(S_T0), s(S_T0), 13)); E(salu('s_add_u32', s(S_T0), s(S_T0), XA))
    E(valu('v_add_u32', v(V_XR), s(S_T0), v(V_L16)))
    E(valu('v_mov_b32', v(V_C1), lit(C_GELU1)))
    E(salu('s_lshl_b32', s(S_T0), s(S_W), 10)); E(salu('s_add_u32', s(S_T0), s(S_T0), XA + 28672))
    E(valu('v_lshlrev_b32', v(V_U0), 6, v(V_N16))); E(valu('v_add_u32', v(V_U0), s(S_T0), v(V_U0)))
    E(valu('v_lshl_add_u32', v(V_QW), v(V_GQ), 3, v(V_U0))); E(valu('v_lshl_add_u32', v(V_QR), v(V_GQ), 4, v(V_U0)))
    return P

def layernorm(late, wl):
    P = []; E = P.append
    late = list(late); wl = list(wl)
    def drip(q, n=1):
        while q and n > 0:
            x = q.pop(0); E(x)
            if x.kind in ('dma', 'vload'): n -= 1
    ACC = 64
    for p in range(2):
        b = ACC + 4 * p
        for k in range(4): E(valu('v_mov_b32', v(b + k), 0))
        for n in range(28):
            d = p * 28 + n
            E(valu('v_dot2_f32_bf16', v(b + (n & 1)), v(d), s(S_ONES), v(b + (n & 1))))
            E(valu('v_dot2_f32_bf16', v(b + 2 + (n & 1)), v(d), v(d), v(b + 2 + (n & 1))))
            if n % 7 == 3: drip(late)
        E(valu('v_add_f32', v(b), v(b), v(b + 1))); E(valu('v_add_f32', v(b + 2), v(b + 2), v(b + 3)))
    for mods in ("quad_perm:[1,0,3,2] row_mask:0xf bank_mask:0xf", "quad_perm:[2,3,0,1] row_mask:0xf bank_mask:0xf", "row_half_mirror row_mask:0xf bank_mask:0xf"):
        for p in range(2):
            for k in (0, 2):
                r = ACC + 4 * p + k
                E(valu('v_add_f32_dpp', v(r), v(r), v(r), mods=mods))
    for p in range(2):
        b = ACC + 4 * p
        E(valu('v_mul_f32', v(b), lit(1.0 / 448), v(b)))
        E(valu('v_mul_f32', v(b + 2), lit(1.0 / 448), v(b + 2)))
        E(valu('v_fma_f32', v(b + 2), '-' + v(b), v(b), v(b + 2)))
        E(valu('v_max_f32', v(b + 2), 0, v(b + 2)))
        E(valu('v_add_f32', v(b + 2), lit(1e-5), v(b + 2)))
        E(valu('v_rsq_f32', v(b + 2), v(b + 2)))
        E(valu('v_mul_f32', v(b), v(b), v(b + 2)))
        E(valu('v_sub_f32', v(b + 1), 0, v(b)))
    E(valu('v_and_b32', v(V_U0), 7, v(V_LANE)))
    E(valu('v_and_b32', v(V_U1), 3, v(V_U0)))
    E(valu('v_lshrrev_b32', v(V_U0), 2, v(V_U0))); E(valu('v_lshlrev_b32', v(V_U0), 6, v(V_U0)))
    E(valu('v_and_b32', v(V_U2), 1, v(V_U1))); E(valu('v_lshl_add_u32', v(V_U0), v(V_U2), 5, v(V_U0)))
    E(valu('v_lshrrev_b32', v(V_U1), 1, v(V_U1))); E(valu('v_lshl_add_u32', v(V_U0), v(V_U1), 3, v(V_U0)))
    E(salu('s_mov_b32', s(S_T0), XROW)); E(valu('v_mad_u32_u24', v(V_U0), v(V_R8), s(S_T0), v(V_U0)))
    E(salu('s_mul_i32', s(S_T1), s(S_W), 16 * XROW)); E(salu('s_add_u32', s(S_T1), s(S_T1), XSTAGE))
    E(valu('v_add_u32', v(V_U0), s(S_T1), v(V_U0)))
    E(valu('v_add_u32', v(V_U1), 8 * XROW, v(V_U0)))
    E(salu('s_mov_b32', s(S_T2), '0xffff0000'))
    T = 72
    for p in range(2):
        b = ACC + 4 * p
        for i in range(7):
            d0 = (p * 7 + i) * 4
            for k in range(4):
                t = T + 2 * k
                E(valu('v_lshlrev_b32', v(t), 16, v(d0 + k))); E(valu('v_and_b32', v(t + 1), s(S_T2), v(d0 + k)))
            for k in range(4):
                t = T + 2 * k
                if CFG.pkln:
                    x = I(f"v_pk_fma_f32 v[{t}:{t+1}], v[{t}:{t+1}], v[{b+2}:{b+3}], v[{b}:{b+1}] op_sel:[0,0,1] op_sel_hi:[1,0,1]", 'valu',
                          regs(v(t, 2)) + regs(v(b, 4)), regs(v(t, 2)))
                    E(x)
                else:
                    E(valu('v_fma_f32', v(t), v(t), v(b + 2), '-' + v(b))); E(valu('v_fma_f32', v(t + 1), v(t + 1), v(b + 2), '-' + v(b)))
            for k in range(4):
                t = T + 2 * k
                E(valu('v_cvt_pk_bf16_f32', v(d0 + k), v(t), v(t + 1)))
            E(ds_write2_b64(v(V_U0 + p), v(d0, 2), v(d0 + 2, 2), 16 * i, 16 * i + 2, tag='xw'))
            drip(wl)
    drip(late, 99); drip(wl, 99)
    E(wait_lgkm_tag('xw')); E(barrier())
    E(salu('s_lshl_b32', s(S_T0), s(S_RH), 5)); E(valu('v_add_u32', v(V_U0), s(S_T0), v(V_N16)))
    E(salu('s_mov_b32', s(S_T0), XROW)); E(valu('v_lshlrev_b32', v(V_U1), 4, v(V_GQ)))
    E(valu('v_mad_u32_u24', v(V_U0), v(V_U0), s(S_T0), v(V_U1))); E(valu('v_add_u32', v(V_U0), XSTAGE, v(V_U0)))
    for ks in range(14):
        for ct in range(2):
            E(ds_read('ds_read_b128', a(A_XB + (ks * 2 + ct) * 4, 4), v(V_U0), ks * 64 + ct * 16 * XROW, tag='xb'))
    return P

def interleave(*lists):
    out = []; its = [list(l) for l in lists]
    while any(its):
        for l in its:
            if l: out.append(l.pop(0))
    return out

def geglu(st):
    base = accset(st) if (st < 3 or not CFG.f1mix) else V_F1H
    out = []
    tis = range(2) if st < 3 else range(1)
    TT = 64; HP = 80
    out.append(valu('v_add_u32', v(V_HW), s(S_HI + st), v(V_HR)))
    for ct in range(2):
        for ti in tis:
            G = base + ((0 * 2 + ti) * 2 + ct) * 4; U = base + ((1 * 2 + ti) * 2 + ct) * 4
            t = [TT + k for k in range(4)]; e = [TT + 4 + k for k in range(4)]
            for k in range(4): out.append(valu('v_mul_f32', v(t[k]), v(G + k), v(G + k)))
            for k in range(4): out.append(valu('v_fmaak_f32', v(t[k]), v(t[k]), v(V_C1), lit(C_GELU0)))
            for k in range(4): out.append(valu('v_mul_f32', v(t[k]), v(G + k), v(t[k])))
            for k in range(4): out.append(valu('v_exp_f32', v(e[k]), v(t[k])))
            for k in range(4): out.append(valu('v_mul_f32', v(t[k]), v(G + k), v(U + k)))
            for k in range(4): out.append(valu('v_add_f32', v(e[k]), '1.0', v(e[k])))
            for k in range(4): out.append(valu('v_rcp_f32', v(e[k]), v(e[k])))
            hp = HP + ct * 4 + ti * 2
            for k in range(4): out.append(valu('v_mul_f32', v(t[k]), v(t[k]), v(e[k])))
            out.append(valu('v_cvt_pk_bf16_f32', v(hp), v(t[0]), v(t[1]))); out.append(valu('v_cvt_pk_bf16_f32', v(hp + 1), v(t[2]), v(t[3])))
        if st < 3: out.append(ds_write('ds_write_b128', v(V_HW), v(HP + ct * 4, 4), ct * 1024, tag='hw'))
        else: out.append(ds_write('ds_write_b64', v(V_HW), v(HP + ct * 4, 2), ct * 1024, tag='hw'))
    return out

def qconv(st):
    base = accset(4 + st); out = []
    for pp in range(2):
        for ct in range(2):
            X0 = base + ((2 * pp) * 2 + ct) * 4; X1 = base + ((2 * pp + 1) * 2 + ct) * 4
            t = 64 + 8 * ct; h = 80 + 4 * ct
            for k in range(4): out.append(valu('v_mul_f32', v(t + k), lit(C_QS), v(X0 + k)))
            for k in range(4): out.append(valu('v_mul_f32', v(t + 4 + k), lit(C_QS), v(X1 + k)))
            for k in range(4): out.append(valu('v_cvt_pk_bf16_f32', v(h + k), v(t + 2 * k), v(t + 2 * k + 1)))
            if CFG.qlds:
                ks = 2 * st + pp
                out.append(ds_write2_b64(v(V_QW), v(h, 2), v(h + 2, 2), 0, 4, tag='qw'))
                out.append(ds_read('ds_read_b128', a(A_Q + (ks * 2 + ct) * 4, 4), v(V_QR), 0, tag='qr'))
                continue
            out.append(valu('v_permlane32_swap_b32', v(h), v(h + 2))); out.append(valu('v_permlane32_swap_b32', v(h + 1), v(h + 3)))
            out.append(nop(0))
            out.append(valu('v_permlane16_swap_b32', v(h), v(h + 2))); out.append(valu('v_permlane16_swap_b32', v(h + 1), v(h + 3)))
            ks = 2 * st + pp
            for k in range(4): out.append(valu('v_accvgpr_write_b32', a(A_Q + (ks * 2 + ct) * 4 + k), v(h + k)))
    return out

def gconv(st):
    base = accset(8 + st); out = []
    pps = range(2) if st < 3 else range(1)
    for pp in pps:
        for ct in range(2):
            if st < 3: X0 = base + ((2 * pp) * 2 + ct) * 4; X1 = base + ((2 * pp + 1) * 2 + ct) * 4
            else: X0 = base + (0 * 2 + ct) * 4; X1 = base + (1 * 2 + ct) * 4
            h = 80 + 4 * ct
            out.append(valu('v_cvt_pk_bf16_f32', v(h), v(X0), v(X0 + 1))); out.append(valu('v_cvt_pk_bf16_f32', v(h + 1), v(X0 + 2), v(X0 + 3)))
            out.append(valu('v_cvt_pk_bf16_f32', v(h + 2), v(X1), v(X1 + 1))); out.append(valu('v_cvt_pk_bf16_f32', v(h + 3), v(X1 + 2), v(X1 + 3)))
            li = st * 2 + pp
            for k in range(4): out.append(valu('v_accvgpr_write_b32', a(A_G + (li * 2 + ct) * 4 + k), v(h + k)))
    return out
def gstore(li, ct):
    st, pp = li // 2, li % 2
    return [salu('s_add_u32', s(S_T0), s(S_GB), s(S_CB + st)),
            vstore('buffer_store_dwordx4', a(A_G + (li * 2 + ct) * 4, 4), v(V_L16), s(S_WS, 4), s(S_T0), pp * 2048 + ct * 1024, (CFG.gstore_flags if CFG.gstore_flags is not None else CFG.store_flags).replace('_', ' ').strip(), tag='gst')]

def sconv(st):
    base = 128 + 32 * (st & 1); out = []
    pps = range(2) if st < 3 else range(1)
    out.append(salu('s_add_u32', s(S_T1), s(S_PB), s(S_CB + st)))
    n = 0
    for pp in pps:
        for ct in range(2):
            if st < 3: X0 = base + ((2 * pp) * 2 + ct) * 4; X1 = base + ((2 * pp + 1) * 2 + ct) * 4
            else: X0 = 160 + (0 * 2 + ct) * 4; X1 = 160 + (1 * 2 + ct) * 4
            h = 192 + 4 * (n & 1); n += 1
            out.append(valu('v_cvt_pk_bf16_f32', v(h), v(X0), v(X0 + 1))); out.append(valu('v_cvt_pk_bf16_f32', v(h + 1), v(X0 + 2), v(X0 + 3)))
            out.append(valu('v_cvt_pk_bf16_f32', v(h + 2), v(X1), v(X1 + 1))); out.append(valu('v_cvt_pk_bf16_f32', v(h + 3), v(X1 + 2), v(X1 + 3)))
            out.append(vstore('buffer_store_dwordx4', v(h, 4), v(V_L16), s(S_WS, 4), s(S_T1), pp * 2048 + ct * 1024, CFG.store_flags.replace('_', ' ').strip(), tag='sst'))
    return out

def xlane_reduce(op, reg, tmp):
    return [valu('v_mov_b32', v(tmp), v(reg)), nop(0), valu('v_permlane16_swap_b32', v(reg), v(tmp)), nop(0), valu(op, v(reg), v(reg), v(tmp)),
            valu('v_mov_b32', v(tmp), v(reg)), nop(0), valu('v_permlane32_swap_b32', v(reg), v(tmp)), nop(0), valu(op, v(reg), v(reg), v(tmp))]

def Sreg(t, T, ct): return V_S + 16 * (t & 1) + (ct * 2 + T) * 4
def Preg(t, ct): return V_P + 8 * (t & 1) + ct * 4

def softmax_first():
    out = []
    for ct in range(2):
        r = [Sreg(0, 0, ct) + k for k in range(4)] + [Sreg(0, 1, ct) + k for k in range(4)]
        m = V_T + ct
        out.append(valu('v_max3_f32', v(m), v(r[0]), v(r[1]), v(r[2])))
        out.append(valu('v_max3_f32', v(m), v(m), v(r[3]), v(r[4])))
        out.append(valu('v_max3_f32', v(m), v(m), v(r[5]), v(r[6])))
        out.append(valu('v_max_f32', v(m), v(m), v(r[7])))
    a0 = xlane_reduce('v_max_f32', V_T, V_T + 2); a1 = xlane_reduce('v_max_f32', V_T + 1, V_T + 3)
    out += interleave(a0, a1)
    for ct in range(2):
        for k in range(4): out.append(valu('v_sub_f32', v(V_NEGM + 4 * ct + k), 0, v(V_T + ct)))
    for ct in range(2):
        for T in range(2):
            for k in range(4): out.append(valu('v_add_f32', v(Sreg(0, T, ct) + k), v(V_NEGM + 4 * ct), v(Sreg(0, T, ct) + k)))
    out.append(valu('v_mov_b32', v(V_L0), 0)); out.append(valu('v_mov_b32', v(V_L1), 0))
    return out
def s1_fix():
    out = []
    for ct in range(2):
        for T in range(2):
            for k in range(4): out.append(valu('v_add_f32', v(Sreg(1, T, ct) + k), v(V_NEGM + 4 * ct), v(Sreg(1, T, ct) + k)))
    return out
def softmax_body(t):
    out = []
    for ct in range(2):
        ts = V_TS0 + ct
        for T in range(2):
            S = Sreg(t, T, ct); e = V_T + 4 * T
            for k in range(4): out.append(valu('v_exp_f32', v(e + k), v(S + k)))
            if T == 0:
                out.append(valu('v_add_f32', v(ts), v(e), v(e + 1)))
            else:
                out.append(valu('v_add_f32', v(ts), v(ts), v(e)));
            out.append(valu('v_cvt_pk_bf16_f32', v(Preg(t, ct) + 2 * T), v(e), v(e + 1)))
            if T == 1: out.append(valu('v_add_f32', v(ts), v(ts), v(e + 1)))
            out.append(valu('v_add_f32', v(ts), v(ts), v(e + 2)))
            out.append(valu('v_cvt_pk_bf16_f32', v(Preg(t, ct) + 2 * T + 1), v(e + 2), v(e + 3)))
            out.append(valu('v_add_f32', v(ts), v(ts), v(e + 3)))
    return out
def softmax_check(t):
    return [valu('v_max_f32', v(V_TM), v(V_TS0), v(V_TS1)),
            valu('v_cmp_lt_f32', 'vcc', s(S_THR), v(V_TM)),
            raw(f"s_cbranch_vccnz L_slow_{t}", 'branch', ['vcc']),
            label(f"L_back_{t}"),
            valu('v_add_f32', v(V_L0), v(V_L0), v(V_TS0)), valu('v_add_f32', v(V_L1), v(V_L1), v(V_TS1))]

def slow_path(par):
    t = par
    o = []
    o.append(label(f"L_slowsub_{par}"))
    o.append(nop(15))
    for ct in range(2):
        r = [Sreg(t, 0, ct) + k for k in range(4)] + [Sreg(t, 1, ct) + k for k in range(4)]
        m = V_T + ct
        o += [valu('v_max3_f32', v(m), v(r[0]), v(r[1]), v(r[2])), valu('v_max3_f32', v(m), v(m), v(r[3]), v(r[4])),
              valu('v_max3_f32', v(m), v(m), v(r[5]), v(r[6])), valu('v_max_f32', v(m), v(m), v(r[7]))]
        o += xlane_reduce('v_max_f32', m, V_T + 2)
        o.append(valu('v_max_f32', v(m), 0, v(m)))
    for ct in range(2):
        d = V_T + ct; f = V_T + 2 + ct
        o.append(valu('v_sub_f32', v(f), 0, v(d))); o.append(valu('v_exp_f32', v(f), v(f)))
        for k in range(4): o.append(valu('v_sub_f32', v(V_NEGM + 4 * ct + k), v(V_NEGM + 4 * ct + k), v(d)))
        for tt in (t, t + 1):
            for T in range(2):
                for k in range(4): o.append(valu('v_sub_f32', v(Sreg(tt, T, ct) + k), v(Sreg(tt, T, ct) + k), v(d)))
        o.append(valu('v_mul_f32', v(V_L0 + ct), v(V_L0 + ct), v(f)))
        for dt in range(16):
            b = ((dt >> 1) * 2 + ct) * 8 + (dt & 1) * 4
            for k in range(4): o.append(valu('v_mul_f32', v(b + k), v(b + k), v(f)))
    o += softmax_body(t)
    o.append(nop(3))
    o.append(raw(f"s_setpc_b64 s[{S_RET}:{S_RET+1}]", 'branch', [s(S_RET, 2)]))
    return o

def onorm(i):
    ct = i & 1; b = 8 * i; rl = V_RL0 + ct; t = V_T
    out = []
    for k in range(8): out.append(valu('v_mul_f32', v(t + k), v(b + k), v(rl)))
    for k in range(4): out.append(valu('v_cvt_pk_bf16_f32', v(b + k), v(t + 2 * k), v(t + 2 * k + 1)))
    if i < 8: out.append(ds_write('ds_write_b128', v(V_XW), v(b, 4), i * 1024, tag='ow1'))
    return out


FLAGBASE = 2 * 256 * 57344
S_DBG, S_XS, S_OUTS = 12, 16, 20
V_Z = 94
V_FLAG = 241
V_FL0 = 242
S_B0, S_B1 = 50, 51
S_PO0, S_PO1, S_OO0, S_OO1 = 52, 53, 54, 55
S_LO, S_HI16 = 56, 57
def flag_setup():
    a1 = [raw(f"s_load_dwordx2 s[{S_DBG}:{S_DBG+1}], s[0:1], 80", 'salu', [], [s(S_DBG, 2)])]
    a2 = [raw("s_waitcnt lgkmcnt(0)", 'wait_raw'), salu('s_mov_b32', s(S_DBG + 2), 256), salu('s_mov_b32', s(S_DBG + 3), '0x00020000'),
          valu('v_mov_b32', v(V_FLAG), '0x7ffffff0'), valu('v_mov_b32', v(V_U0), s(2)),
          salu('s_lshl_b32', s(S_T2), s(S_W), 6), valu('v_add_u32', v(V_U1), s(S_T2), v(V_LANE)),
          valu('v_cmp_eq_u32', 'vcc', 0, v(V_U1)), nop(1), valu('v_cndmask_b32', v(V_FLAG), v(V_FLAG), v(V_U0), 'vcc')]
    return a1, a2
def flag_store(val):
    return [valu('v_mov_b32', v(V_U1), val),
            vstore('buffer_store_byte', v(V_U1), v(V_FLAG), s(S_DBG, 4), '0', 0, 'sc1', tag='flag')]
def wsflag_store(val, vreg):
    return [salu('s_lshl_b32', s(S_T0), s(2), 7), salu('s_add_u32', s(S_T0), s(S_T0), FLAGBASE), valu('v_mov_b32', v(V_U1), val),
            vstore('buffer_store_dword', v(V_U1), v(vreg), s(S_WS, 4), s(S_T0), 0, 'sc1', tag='wsflag')]
def flag_load():
    return [salu('s_lshl_b32', s(S_T2), s(S_RB), 3), valu('v_mov_b32', v(V_U2), 0),
            vload('buffer_load_dwordx2', v(V_FL0, 2), v(V_U2), s(S_DBG, 4), s(S_T2), 0, 'sc1', tag='fl')]
def flags_nonzero():
    return [valu('v_lshrrev_b32', v(V_U0), 1, v(V_FL0)), valu('v_lshrrev_b32', v(V_U1), 1, v(V_FL0 + 1)),
            valu('v_or_b32', v(V_U0), v(V_U0), v(V_FL0)), valu('v_or_b32', v(V_U1), v(V_U1), v(V_FL0 + 1)),
            valu('v_and_b32', v(V_U0), v(V_U0), v(V_U1)), valu('v_and_b32', v(V_U0), '0x01010101', v(V_U0)),
            valu('v_cmp_eq_u32', 'vcc', '0x01010101', v(V_U0))]
def tail_setup():
    a1 = [raw(f"s_load_dwordx2 s[{S_XS}:{S_XS+1}], s[0:1], 0", 'salu', [], [s(S_XS, 2)]),
          raw(f"s_load_dwordx2 s[{S_OUTS}:{S_OUTS+1}], s[0:1], 72", 'salu', [], [s(S_OUTS, 2)])]
    o = [raw("s_waitcnt lgkmcnt(0)", 'wait_raw')]
    for r in (S_XS, S_OUTS): o += [salu('s_mov_b32', s(r + 2), 2048 * 896), salu('s_mov_b32', s(r + 3), '0x00020000')]
    o += [salu('s_mul_i32', s(S_B0), s(S_KVH), 7), salu('s_add_u32', s(S_B0), s(S_B0), s(S_W)),
          salu('s_add_u32', s(S_B1), s(S_B0), 4), salu('s_cmp_eq_u32', s(S_W), 3), salu('s_cselect_b32', s(S_B1), s(S_B0), s(S_B1))]
    for (b, po, oo) in ((S_B0, S_PO0, S_OO0), (S_B1, S_PO1, S_OO1)):
        o += [salu('s_mul_i32', s(po), s(S_RB), 8 * 57344), salu('s_lshl_b32', s(S_T0), s(b), 10), salu('s_add_u32', s(po), s(po), s(S_T0))]
        o += [salu('s_cmp_ge_u32', s(b), 28), salu('s_cselect_b32', s(S_T0), 1, 0), salu('s_mul_i32', s(S_T1), s(S_T0), 28), salu('s_sub_u32', s(S_T1), s(b), s(S_T1)),
              salu('s_lshl_b32', s(oo), s(S_RB), 6), salu('s_lshl_b32', s(S_T0), s(S_T0), 5), salu('s_add_u32', s(oo), s(oo), s(S_T0)),
              salu('s_and_b32', s(S_T0), s(S_T1), 1), salu('s_lshl_b32', s(S_T0), s(S_T0), 4), salu('s_add_u32', s(oo), s(oo), s(S_T0)),
              salu('s_mul_i32', s(oo), s(oo), 896), salu('s_lshr_b32', s(S_T1), s(S_T1), 1), salu('s_lshl_b32', s(S_T1), s(S_T1), 6), salu('s_add_u32', s(oo), s(oo), s(S_T1))]
    o += [salu('s_mov_b32', s(S_LO), '0x00003f80'), salu('s_mov_b32', s(S_HI16), '0x3f800000')]
    return a1, o
def part_loads(which, dst, f=None):
    f = f or v
    out = []
    for blk, po in enumerate((S_PO0, S_PO1)):
        for k in range(8):
            out.append(salu('s_add_u32', s(48 + (k & 1)), s(po), which * 256 * 57344 + k * 57344))
            out.append(vload('buffer_load_dwordx4', f(dst(blk, k), 4), v(V_L16), s(S_WS, 4), s(48 + (k & 1)), 0, 'sc1', tag='pl%d' % which))
    return out
def part_sum(dst, acc):
    out = []
    for k in range(8):
        for d in range(4):
            for h, sel_ in enumerate((S_LO, S_HI16)):
                r = acc + 2 * d + h
                out.append(valu('v_dot2_f32_bf16', v(r), v(dst(k) + d), s(sel_), v(r) if k else '0'))
    return out
GDST = lambda blk, k: 8 * (blk * 8 + k) + 4
GAGPR = lambda blk, k: (blk * 8 + k) * 4
SDST = lambda blk, k: 128 + (blk * 8 + k) * 4
def fused_tail():
    P = []; E = P.append
    def stamp(k):
        if CFG.stamps == 't': E(raw(f"s_memrealtime s[{74+2*k}:{75+2*k}]", 'salu'))
    def untracked(ins):
        return [raw(x.text, 'salu') for x in ins]
    stamp(1)
    E(raw("s_waitcnt vmcnt(0)", 'wait_raw'))
    stamp(2); E(barrier())
    E(valu('v_cmp_gt_u32', 'vcc', 256, v(V_FLAG))); E(valu('v_cndmask_b32', v(V_U0), v(V_FLAG), 0, 'vcc'))
    P += wsflag_store(2, V_U0)
    gl = part_loads(1, GDST)
    E(salu('s_cmp_eq_u32', s(S_W), 3)); E(raw("s_cbranch_scc1 L_w3", 'branch'))
    P += untracked(gl)
    E(raw("s_branch L_poll_done", 'branch'))
    E(label("L_w3"))
    E(raw(f"s_mov_b32 s{S_T1}, {CFG.spin}", 'salu'))
    E(raw(f"s_lshl_b32 s{S_T2}, s{S_RB}, 10", 'salu')); E(raw(f"s_add_u32 s{S_T2}, s{S_T2}, {FLAGBASE}", 'salu'))
    E(raw(f"v_lshlrev_b32 v{V_U2}, 7, v{V_LANE}", 'salu')); E(raw(f"v_mov_b32 v{V_U1}, 0x7ffffff0", 'salu'))
    E(raw(f"v_cmp_gt_u32 vcc, 8, v{V_LANE}", 'salu')); E(raw("s_nop 1", 'salu')); E(raw(f"v_cndmask_b32 v{V_U2}, v{V_U1}, v{V_U2}, vcc", 'salu'))
    E(label("L_poll"))
    E(raw(f"buffer_load_dword v{V_FL0}, v{V_U2}, s[{S_WS}:{S_WS+3}], s{S_T2} offen sc1", 'salu'))
    E(raw("s_waitcnt vmcnt(0)", 'salu'))
    E(raw(f"v_cmp_eq_u32 vcc, 2, v{V_FL0}", 'salu')); E(raw("s_nop 4", 'salu'))
    E(raw("s_and_b32 s3, vcc_lo, 0xff", 'salu')); E(raw("s_cmp_eq_u32 s3, 0xff", 'salu'))
    E(raw("s_cbranch_scc1 L_poll_done", 'branch'))
    if CFG.poll_sleep: E(raw(f"s_sleep {CFG.poll_sleep}", 'salu'))
    E(raw(f"s_sub_u32 s{S_T1}, s{S_T1}, 1", 'salu')); E(raw(f"s_cmp_lg_u32 s{S_T1}, 0", 'salu')); E(raw("s_cbranch_scc1 L_poll", 'branch'))
    E(label("L_poll_done"))
    E(barrier())
    stamp(3)
    E(salu('s_cmp_eq_u32', s(S_W), 3)); E(raw("s_cbranch_scc0 L_w3g", 'branch'))
    P += untracked(gl[:16])
    E(label("L_w3g"))
    P += part_loads(0, SDST)
    XD = [192, 196]
    E(salu('s_mov_b32', s(S_T0), 896)); E(valu('v_lshlrev_b32', v(232), 4, v(V_GQ))); E(valu('v_mad_u32_u24', v(232), v(V_N16), s(S_T0), v(232)))
    for blk, oo in enumerate((S_OO0, S_OO1)): E(vload('buffer_load_dwordx4', v(XD[blk], 4), v(232), s(S_XS, 4), s(oo), 0, tag='xf'))
    stamp(4)
    E(raw("s_waitcnt vmcnt(18)", 'salu'))
    GA = [200, 208]
    for blk in range(2): P += part_sum(lambda k: GDST(blk, k), GA[blk])
    for blk in range(2):
        g = GA[blk]; t = 216 + 8 * blk
        for k in range(8): E(valu('v_mul_f32', v(t + k), lit(-math.log2(math.e)), v(g + k)))
        for k in range(8): E(valu('v_exp_f32', v(t + k), v(t + k)))
        for k in range(8): E(valu('v_add_f32', v(t + k), '1.0', v(t + k)))
        for k in range(8): E(valu('v_rcp_f32', v(t + k), v(t + k)))
        for k in range(8): E(valu('v_mul_f32', v(g + k), v(g + k), v(t + k)))
    stamp(5)
    E(salu('s_mov_b32', s(S_T2), '0xffff0000'))
    E(salu('s_cmp_eq_u32', s(S_W), 3)); E(salu('s_cselect_b32', s(S_OO1), '0x70000000', s(S_OO1)))
    for blk in range(2):
        SA = 8 * blk
        ps = part_sum(lambda k: SDST(blk, k), SA)
        if blk == 1 and CFG.stamps == 't': ps.append(raw("s_memrealtime s[86:87]", 'salu'))
        P += ps
        g = GA[blk]; h = 16 + 4 * blk; u = 24 + 16 * blk
        for k in range(8): E(valu('v_mul_f32', v(SA + k), v(SA + k), v(g + k)))
        for k in range(4): E(valu('v_cvt_pk_bf16_f32', v(h + k), v(SA + 2 * k), v(SA + 2 * k + 1)))
        E(valu('v_permlane32_swap_b32', v(h), v(h + 2))); E(valu('v_permlane32_swap_b32', v(h + 1), v(h + 3)))
        E(valu('v_permlane16_swap_b32', v(h), v(h + 2))); E(valu('v_permlane16_swap_b32', v(h + 1), v(h + 3)))
        for d in range(4):
            E(valu('v_lshlrev_b32', v(u + 2 * d), 16, v(h + d))); E(valu('v_and_b32', v(u + 2 * d + 1), s(S_T2), v(h + d)))
            E(valu('v_lshlrev_b32', v(u + 8 + 2 * d), 16, v(XD[blk] + d))); E(valu('v_and_b32', v(u + 8 + 2 * d + 1), s(S_T2), v(XD[blk] + d)))
        for k in range(8): E(valu('v_add_f32', v(u + k), v(u + k), v(u + 8 + k)))
        for k in range(4): E(valu('v_cvt_pk_bf16_f32', v(h + k), v(u + 2 * k), v(u + 2 * k + 1)))
        E(vstore('buffer_store_dwordx4', v(h, 4), v(232), s(S_OUTS, 4), s((S_OO0, S_OO1)[blk]), 0, CFG.out_flags))
    return P

class Bundle:
    def __init__(self, ins): self.ins = ins; self.kind = 'bundle'

def units(x):
    if x.kind == 'bundle': return sum(units(y) for y in x.ins)
    if x.kind == 'trans': return 2
    if x.kind == 'nop': return x.tag + 1
    if x.kind == 'label': return 0
    return 1

def build():
    _last_base.clear()
    chunks, groups, marks = build_main()
    nchunks = len(chunks)
    fcount = 0
    for g in groups:
        g.bufs = []
        for _ in g.frs:
            g.bufs.append(A_FB + 4 * (fcount % CFG.nb)); fcount += 1
        g.f0 = fcount - len(g.frs)
        g.mf = g.mk(g.bufs)
    merged = set()
    if CFG.merge_waits:
        gi = 0
        while gi + 1 < len(groups):
            g, h = groups[gi], groups[gi + 1]
            nm = chunks[g.chunk].name
            on = (CFG.merge_waits == 'all') or (CFG.merge_waits == 'att' and nm[0] in 'KV') or (CFG.merge_waits == 'atto' and nm[0] in 'KVO') or (CFG.merge_waits == 'k' and nm[0] == 'K')
            if on:
                for b in h.bufs: g.mf[0].extra_need |= set(regs(a(b, 4)))
                merged.add(gi)
            gi += 2
    mstart = []; m = 0
    for g in groups:
        mstart.append(m); m += len(g.mf)
    mstart.append(m); NM = m
    M = {k: mstart[i] for k, i in marks.items()}
    chunk_first_m = {}
    for gi, g in enumerate(groups): chunk_first_m.setdefault(g.chunk, mstart[gi])
    chunk_first_m[nchunks] = NM
    def first_chunk(name):
        return min(i for i, c in enumerate(chunks) if c.name.startswith(name))
    forced = {first_chunk("O s0 j0"), first_chunk("O s0 j2"), first_chunk("O s0 j4"), first_chunk("O s0 j6")}
    bars = []; b = 0
    while b < nchunks:
        bars.append(b)
        b += 1 if (CFG.bar_every == 1 or (b + 1) in forced) else 2
    barset = set(bars)
    nextbar = {bb: (bars[i + 1] if i + 1 < len(bars) else nchunks) for i, bb in enumerate(bars)}
    def bar_at_or_after(c):
        return min(bb for bb in bars if bb >= c)

    side = []
    seq = [0]
    def spread(ins, m0, m1, early=True):
        n = len(ins)
        for k, x in enumerate(ins):
            side.append([m0 + (m1 - m0) * k / max(n, 1), seq[0], m0 if early else None, x]); seq[0] += 1
    def at(ins, m0):
        for x in ins:
            side.append([m0, seq[0], None, x]); seq[0] += 1
    LAT = 6
    if CFG.f1mix:
        spread(geglu(0), M["F1_1"] + LAT, M["F1_2"] - 2)
        spread(geglu(1), M["F1_2"] + LAT, M["Q_0"] - 2)
        spread(geglu(2), M["Q_0"] + LAT, M["Q_0"] + 76)
        spread(geglu(3), M["Q_0"] + 78, M["Q_1"] - 6)
    else:
        spread(geglu(0), M["F1_1"] + LAT, M["F1_2"] + 20)
        spread(geglu(1), M["F1_2"] + 24, M["F1_3"] + 10)
        spread(geglu(2), M["F1_3"] + 14, M["Q_0"] + 50)
        spread(geglu(3), M["Q_0"] + 54, M["Q_1"] - 8)
    pre_dma = {}
    pre_dma[first_chunk("Q ")] = dv_setup(V_DVB, 8192)
    pre_dma[first_chunk("F2")] = dv_setup(V_DVA, 896)
    pre_dma[first_chunk("K0")] = dv_setup_K(V_DVB)
    pre_dma[first_chunk("V0")] = dv_setup(V_DVA, 512)
    pre_dma[first_chunk("O ")] = dv_setup(V_DVB, 896)
    qn = ["Q_1", "Q_2", "Q_3", "F2_0"]; qe = ["Q_2", "Q_3", "F2_0", "F2_1"]
    for st in range(4):
        spread(qconv(st), M[qn[st]] + LAT, M[qe[st]] - 8)
    hc = bar_at_or_after(first_chunk("Q s2 j0"))
    fence = {hc: ['hw']}; fence_count = {'hw': 8, 'ow1': 8, 'ow2': 8, 'pr1': 8}
    q3 = first_chunk("Q s3 j0")
    for i in range(7):
        m0 = chunk_first_m[q3 + i // 2 + 1] + 1
        at([ds_read('ds_read_b128', a(A_H + (i * 2 + ct) * 4, 4), v(V_HR), i * 4096 + ct * 1024, tag='hr') for ct in range(2)], m0 + 2 * (i & 1))
    spread(gconv(0), M["F2_1"] + LAT, M["F2_2"] - 8)
    spread(gconv(1), M["F2_2"] + LAT, M["F2_3"] - 8)
    spread(gconv(2), M["F2_3"] + LAT, M["S_0"] + 8)
    spread(gconv(3), M["S_0"] + 12, M["S_1"] - 2)
    spread(softmax_first() + softmax_body(0), M["S_1"] + LAT, M["S_2"] - 2)
    at([valu('v_add_f32', v(V_L0), v(V_L0), v(V_TS0)), valu('v_add_f32', v(V_L1), v(V_L1), v(V_TS1))], M["S_2"] - 1)
    for t in range(1, 16):
        if t < 15: m0, m1 = M[f"S_{t+1}"], (M[f"S_{t+2}"] if t < 14 else M["PV_14"])
        else: m0, m1 = M["PV_14"], M["PV_15"]
        body = softmax_body(t)
        if t == 1: body = s1_fix() + body
        spread(body, m0 + (LAT if t == 1 else 1), m1 - 3)
        at(softmax_check(t), m1 - 1)
    k = 0
    for li in range(7):
        for ct in range(2):
            if CFG.fused: t = 1 + k // 2; off = 8 + 12 * (k & 1)
            else: t = 1 + k; off = 8
            at(gstore(li, ct), M[f"PV_{t-1}"] + off); k += 1
    if CFG.fused:
        fa1, fa2 = flag_setup()
        at(fa1, M["S_2"] + 4); at(fa2, M["S_2"] + 24)
        ta1, ta2 = tail_setup()
        if CFG.gl_att: at(ta1, M["S_4"] + 4); at(ta2, M["S_4"] + 24)
        else: at(ta1, M["O_0"] + 40); at(ta2, M["O_part"] + 20)
    fin = interleave(xlane_reduce('v_add_f32', V_L0, V_T), xlane_reduce('v_add_f32', V_L1, V_T + 1))
    fin += [valu('v_rcp_f32', v(V_RL0), v(V_L0)), valu('v_rcp_f32', v(V_RL1), v(V_L1))]
    spread(fin, M["PV_15"], M["PV_15"] + 10, early=False)
    allnorm = []
    for ks in range(8): allnorm += onorm(2 * ks) + onorm(2 * ks + 1)
    spread(allnorm, M["PV_15"] + 12, M["O_0"] + 28, early=False)
    oj2, oj4, oj6 = first_chunk("O s0 j2"), first_chunk("O s0 j4"), first_chunk("O s0 j6")
    fence[oj2] = ['ow1']; fence[oj4] = ['pr1']; fence[oj6] = ['ow2']
    after_bar = {}
    vmfence = {}
    if CFG.fused:
        gb = bar_at_or_after(first_chunk("K9" if CFG.gl_att else "K11"))
        vmfence[gb] = ['gst']; fence_count_vm = {'gst': 14}
        after_bar[gb] = [Bundle(flag_store(1))]
        fb = bar_at_or_after(first_chunk("K12" if CFG.gl_att else "O s1 j0"))
        after_bar[fb] = [Bundle(flag_load())]
        cb = bar_at_or_after(first_chunk("K13" if CFG.gl_att else "O s1 j6"))
        fz = flags_nonzero()
        after_bar[cb] = [Bundle(fz[:3]), Bundle(fz[3:6]), Bundle([fz[6], nop(3), raw("s_cbranch_vccz L_gspin\nL_gback:", 'branch', ['vcc'])])]
        if CFG.gl_att:
            gl = part_loads(1, GAGPR, a)
            after_bar[cb] = after_bar[cb] + [Bundle(gl[k:k + 2]) for k in range(0, len(gl), 2)]
    after_bar[oj2] = [ds_read('ds_read_b128', a(A_PART + i * 4, 4), v(V_XR), i * 1024, tag='pr1') for i in range(8)]
    after_bar[oj4] = [ds_write('ds_write_b128', v(V_XW), v(8 * i, 4), (i - 8) * 1024, tag='ow2') for i in range(8, 16)]
    after_bar[oj6] = [ds_read('ds_read_b128', a(A_PART + i * 4, 4), v(V_XR), (i - 8) * 1024, tag='pr2') for i in range(8, 16)]
    o3 = [salu('s_lshl_b32', s(S_T0), s(S_CH), 13), salu('s_xor_b32', s(S_T2), s(S_T0), 8192)]
    for k in range(4): o3.append(valu('v_add_u32', v(V_TS + 4 + k), s(S_T2), v(V_TS + k)))
    for k in range(4): o3.append(valu('v_add_u32', v(V_TS + k), s(S_T0), v(V_TS + k)))
    spread(o3, M["O_1"] + 8, M["O_1"] + 30, early=False)
    spread(sconv(0), M["O_1"] + LAT, M["O_1"] + 60)
    spread(sconv(1), M["O_2"] + LAT, M["O_2"] + 60)
    spread(sconv(2), M["O_3"] + LAT, M["O_3"] + 40)
    tail = sconv(3)

    if CFG.warm_w:
        w_f1, w_setup, w_issue = warm_weights()
        for item in CFG.warm_main.split('+'):
            if not item: continue
            k, where, off = item.split(':')
            at(w_issue[k], M[where] + int(off))
    STAMP = ["F1_0", "Q_0", "F2_0", "S_0", "S_2", "PV_14", "O_0"]
    if CFG.stamps == 'pro': STAMP = ["F1_0", "F1_1", "F1_2", "F1_3"]
    if CFG.stamps == 'p2': STAMP = ["F1_0"]
    if CFG.stamps == 't': STAMP = ["O_3"]
    if CFG.stamps == 'f1': STAMP = ["F1_0", "F1_1", "F1_2", "F1_3", "Q_0", "Q_1", "Q_2"]
    if CFG.stamps == 'o': STAMP = ["PV_14", "PV_15", "O_0", "O_part", "O_1", "O_2", "O_3"]
    if CFG.stamps == 'q': STAMP = ["Q_0", "Q_1", "Q_2", "Q_3", "F2_0", "F2_2", "S_0"]
    if CFG.stamps == 'a': STAMP = ["S_2", "PV_0", "S_3", "PV_1", "S_4", "S_8", "S_12"]
    sbase = 3 if CFG.stamps == 'pro' else (6 if CFG.stamps == 'p2' else 0)
    if CFG.stamps:
        for k0, nm in enumerate(STAMP):
            k = k0 + sbase
            at([raw(f"s_memrealtime s[{74+2*k}:{75+2*k}]", 'salu')], M[nm])
    side.sort(key=lambda x: (x[0], x[1]))

    P = prologue()
    if CFG.warm_first and CFG.warm_w:
        xl = [x for x in P if x.kind == 'vload' and x.tag == 'x']
        P = [x for x in P if not (x.kind == 'vload' and x.tag == 'x')]
        k = [i for i, x in enumerate(P) if x.text.startswith('s_mov_b32 s11,')][0] + 1
        P = P[:k] + (w_f1 + xl if CFG.warm_first == 1 else xl + w_f1) + P[k:]
    if CFG.stamps:
        P.insert(2, raw("s_memrealtime s[88:89]", 'salu'))
        P.append(raw("s_mov_b32 s67, s88", 'salu'))
    pro_v = []
    if CFG.stamps == 'p2': P.append(raw("s_memrealtime s[74:75]", 'salu'))
    wc = []
    P += wc
    if CFG.warm_w: P += w_setup
    if CFG.fused:
        P += [valu('v_mov_b32', v(V_Z), '0x7ffffff0'), salu('s_lshl_b32', s(S_T2), s(S_W), 6), valu('v_add_u32', v(V_U1), s(S_T2), v(V_LANE)),
              valu('v_cmp_eq_u32', 'vcc', 0, v(V_U1)), nop(1), valu('v_cndmask_b32', v(V_Z), v(V_Z), 0, 'vcc')]
        P += wsflag_store(0, V_Z)
    P += prologue2()
    late = chunk_dma(0, chunks[0]) + chunk_dma(1, chunks[1])
    wl_b = chunk_dma(2, chunks[2]) + chunk_dma(3, chunks[3])
    if CFG.stamps == 'p2': P.append(raw("s_memrealtime s[76:77]", 'salu'))
    if CFG.stamps == 'p2': P.append(raw("s_memrealtime s[78:79]", 'salu'))
    LN = layernorm(late, wl_b)
    if CFG.stamps == 'p2':
        kb = [i for i, x in enumerate(LN) if x.kind == 'barrier'][0]
        LN.insert(kb, raw("s_memrealtime s[84:85]", 'salu'))
        kd = [i for i, x in enumerate(LN) if x.text.startswith('v_add_f32_dpp')][0]
        LN.insert(kd, raw("s_memrealtime s[82:83]", 'salu'))
        LN.insert(10, raw("s_memrealtime s[80:81]", 'salu'))
    if CFG.stamps == 'pro':
        LN.insert(8, raw("s_memrealtime s[76:77]", 'salu'))
        LN.insert(0, raw("s_memrealtime s[74:75]", 'salu'))
        kb = [i for i, x in enumerate(LN) if x.kind == 'barrier'][0]
        LN.insert(kb, raw("s_memrealtime s[78:79]", 'salu'))
    P += LN

    for gi, g in enumerate(groups):
        g.reads = []
        for fi, fr in enumerate(g.frs):
            g.reads += fr(g.bufs[fi], g.chunk % NSLOT, g.chunk)
    st8 = dict(opened=-1, issued=3, rg=0, ri=0, sp=0, prevbar=None)
    dq = []
    xq = []
    last_x = [0]
    gap = [0]
    def emit(x):
        if x.kind == 'bundle':
            for y in x.ins: P.append(y)
        else: P.append(x)
        gap[0] += units(x)
    def open_bar(c, mi):
        while dq: emit(dq.pop(0)[1])
        if c in fence:
            for tg in fence[c]:
                have = sum(1 for x in P if x.tag == tg); want = fence_count[tg]
                assert have == want, (tg, have, want)
            P.append(wait_lgkm_tag(fence[c]))
        if c in vmfence:
            for tg in vmfence[c]:
                have = sum(1 for x in P if x.tag == tg); assert have == 14, (tg, have)
            P.append(wait_vm_tag(vmfence[c]))
        pb0 = st8['prevbar']
        lim0 = 5 if pb0 is None else pb0 + NSLOT - 1
        P.append(wait_lgkm_tag([('rd', cc) for cc in range(max(0, lim0 - NSLOT - 3), lim0 - NSLOT + 1)]))
        cover = list(range(c, nextbar[c]))
        P.append(wait_vm_tag([('dma', cc) for cc in cover])); gap[0] += 1
        emit(barrier())
        st8['opened'] = nextbar[c] - 1
        pb = st8['prevbar']
        lim = 5 if pb is None else pb + NSLOT - 1
        st8['prevbar'] = c
        todo = []
        while st8['issued'] < min(lim, nchunks - 1):
            n = st8['issued'] + 1
            if n in pre_dma: todo += pre_dma[n]
            todo += chunk_dma(n, chunks[n]); st8['issued'] = n
        nd = sum(1 for x in todo if x.kind == 'dma')
        if nd:
            L = max(4, chunk_first_m[nextbar[c]] - chunk_first_m[c] - 2)
            step = L / nd
            k = 0; pend = []
            for x in todo:
                if x.kind == 'dma':
                    pos = mi + 1 + k * step
                    for j, y in enumerate(pend): dq.append([pos - step * (len(pend) - j) / (len(pend) + 1) if k > 0 else mi, y])
                    pend = []
                    dq.append([pos, x]); k += 1
                else: pend.append(x)
        if CFG.fused and CFG.gl_early and st8['issued'] == nchunks - 1 and not st8.get('gl'):
            st8['gl'] = True
            base = (dq[-1][0] if dq else mi) + 1
            gl = part_loads(1, GDST)
            for k, y in enumerate(gl): dq.append([base + k * 0.75, y])
        if c in after_bar: xq.extend(after_bar[c])
    def can_read(gidx, cur):
        g = groups[gidx]
        prevf = g.f0 + len(g.frs) - 1 - CFG.nb
        return prevf < 0 or groups[cur].f0 > prevf
    def issue_reads(cur, maxn, mi):
        n = 0
        while st8['rg'] < len(groups) and n < maxn and can_read(st8['rg'], cur):
            g = groups[st8['rg']]
            if g.chunk > st8['opened']:
                assert g.chunk in barset, g.chunk
                open_bar(g.chunk, mi)
            r = g.reads[st8['ri']]
            emit(r); st8['ri'] += 1; n += 1
            if st8['ri'] == len(g.reads): st8['rg'] += 1; st8['ri'] = 0
        return n
    while st8['rg'] < len(groups) and groups[st8['rg']].f0 + len(groups[st8['rg']].frs) <= CFG.nb: issue_reads(0, 1, 0)
    mi = 0
    for gi, g in enumerate(groups):
        while st8['rg'] <= gi:
            if not issue_reads(gi, 8, mi): raise Exception("cannot issue reads")
        for k, mf in enumerate(g.mf):
            P.append(mf); gap[0] = 0
            last = (k == len(g.mf) - 1)
            if last and gi not in merged: gap[0] += 1
            cur = gi + 1 if (last and gi + 1 < len(groups)) else gi
            nrd = len(groups[min(st8['rg'], len(groups) - 1)].reads)
            issue_reads(cur, 1 if len(g.mf) >= 4 else 2, mi)
            while xq and gap[0] < 2: emit(xq.pop(0)); last_x[0] = mi
            if xq and mi - last_x[0] >= CFG.xq_pace: emit(xq.pop(0)); last_x[0] = mi
            while dq and dq[0][0] <= mi: emit(dq.pop(0)[1])
            while st8['sp'] < len(side):
                dl, _, early, x = side[st8['sp']]
                if dl <= mi or (CFG.fill and early is not None and early <= mi and gap[0] + units(x) <= 2):
                    emit(x); st8['sp'] += 1
                else: break
            mi += 1
    while xq: emit(xq.pop(0))
    while st8['sp'] < len(side):
        P.append(side[st8['sp']][3]); st8['sp'] += 1
    while dq: P.append(dq.pop(0)[1])
    P += tail
    if CFG.stamps: P.append(raw("s_memrealtime s[44:45]", 'salu'))
    if CFG.fused: P += fused_tail()
    P.append(raw("s_waitcnt vmcnt(0)", 'wait_raw'))
    if CFG.stamps:
        P.append(raw("s_memrealtime s[46:47]", 'salu'))
        P.append(raw("s_waitcnt lgkmcnt(0)", 'wait_raw'))
        P.append(salu('s_lshl_b32', s(S_T0), s(2), 2)); P.append(salu('s_add_u32', s(S_T0), s(S_T0), s(S_W))); P.append(salu('s_lshl_b32', s(S_T0), s(S_T0), 6))
        P.append(salu('s_add_u32', s(S_T0), s(S_T0), 30 << 20)); P.append(salu('s_mov_b32', s(S_WS + 2), 40 << 20))
        order = [67] + [74 + 2 * k for k in range(7)] + [44, 46, 46, 46]
        for k, r in enumerate(order): P.append(valu('v_mov_b32', v(k), s(r)))
        P.append(valu('v_mov_b32', v(16), 0))
        P.append(raw("s_mov_b64 exec, 1", 'salu'))
        for k in range(3): P.append(vstore('buffer_store_dwordx4', v(4 * k, 4), v(16), s(S_WS, 4), s(S_T0), 16 * k))
        P.append(raw("s_waitcnt vmcnt(0)", 'wait_raw'))
        if CFG.dbgstamps is not False:
            P.append(raw("s_load_dwordx2 s[4:5], s[0:1], 80", 'salu')); P.append(raw("s_waitcnt lgkmcnt(0)", 'wait_raw'))
            P.append(salu('s_mov_b32', s(6), 256)); P.append(salu('s_mov_b32', s(7), '0x00020000'))
            for k in range(1, 11): P.append(valu('v_sub_u32', v(k), v(k), v(0)))
            P.append(salu('s_lshl_b32', s(S_T0), s(2), 2)); P.append(salu('s_add_u32', s(S_T0), s(S_T0), s(S_W)))
            P.append(salu('s_cmp_eq_u32', s(S_T0), int(CFG.dbgstamps))); P.append(raw("s_cbranch_scc0 L_main_end", 'branch'))
            for k in range(3): P.append(vstore('buffer_store_dwordx4', v(4 * k, 4), v(16), s(4, 4), '0', 16 * k))
            P.append(raw("s_waitcnt vmcnt(0)", 'wait_raw'))
    P.append(label("L_main_end")); P.append(raw("s_endpgm", 'branch'))
    for t in range(1, 16):
        P.append(label(f"L_slow_{t}"))
        P.append(raw(f"s_call_b64 s[{S_RET}:{S_RET+1}], L_slowsub_{t & 1}", 'branch', [], [s(S_RET, 2)]))
        P.append(raw(f"s_branch L_back_{t}", 'branch'))
    P += slow_path(0); P += slow_path(1)
    if CFG.fused:
        G = []
        G.append(label("L_gspin")); G.append(raw(f"s_mov_b32 s{S_T1}, {CFG.spin}", 'salu'))
        G.append(label("L_gspin_loop"))
        G.append(raw(f"s_lshl_b32 s{S_T2}, s{S_RB}, 3", 'salu')); G.append(raw(f"v_mov_b32 v{V_U2}, 0", 'salu'))
        G.append(raw(f"buffer_load_dwordx2 v[{V_FL0}:{V_FL0+1}], v{V_U2}, s[{S_DBG}:{S_DBG+3}], s{S_T2} offen sc1", 'salu'))
        G.append(raw("s_waitcnt vmcnt(0)", 'salu'))
        for x in flags_nonzero(): G.append(raw(x.text, 'salu'))
        G.append(raw("s_nop 4", 'salu')); G.append(raw("s_cbranch_vccnz L_gback", 'branch'))
        G.append(raw(f"s_sub_u32 s{S_T1}, s{S_T1}, 1", 'salu')); G.append(raw(f"s_cmp_lg_u32 s{S_T1}, 0", 'salu'))
        G.append(raw("s_cbranch_scc1 L_gspin_loop", 'branch')); G.append(raw("s_branch L_gback", 'branch'))
        P += G
    P.append(label("L_main_code_end"))
    if CFG.stampop != 's_memrealtime':
        for x in P:
            if x.text.startswith('s_memrealtime'): x.text = x.text.replace('s_memrealtime', CFG.stampop)
    Pf, stats = finalize(P)
    if 'nodma' in CFG.abl: Pf = [x for x in Pf if x.kind != 'dma']
    if 'nobar' in CFG.abl: Pf = [x for x in Pf if x.kind != 'barrier']
    if 'novm' in CFG.abl: Pf = [x for x in Pf if not (x.kind == 'wait' and 'vmcnt' in x.text)]
    if 'nolgkm' in CFG.abl:
        k0 = [i for i, x in enumerate(Pf) if x.kind == 'mfma'][0]
        Pf = [x for i, x in enumerate(Pf) if i < k0 or not (x.kind == 'wait' and 'lgkm' in x.text)]
    if 'nostore' in CFG.abl: Pf = [x for x in Pf if not (x.kind == 'vstore' and x.tag in ('gst', 'sst'))]
    return Pf, stats, M, NM

def reduce_kernel():
    P = []; E = P.append
    E(salu('s_cmp_ge_u32', s(2), 448)); E(raw("s_cbranch_scc1 L_red_end", 'branch'))
    if CFG.stamps: E(raw("s_memrealtime s[34:35]", 'salu'))
    E(raw("s_load_dwordx2 s[4:5], s[0:1], 0")); E(raw("s_load_dwordx2 s[6:7], s[0:1], 72")); E(raw("s_load_dwordx2 s[8:9], s[0:1], 88"))
    E(valu('v_and_b32', v(1), 63, v(0))); E(valu('v_lshrrev_b32', v(2), 6, v(0)))
    E(valu('v_lshlrev_b32', v(3), 4, v(1)))
    E(valu('v_readfirstlane_b32', s(20), v(2)))
    E(salu('s_lshl_b32', s(21), s(2), 2)); E(salu('s_add_u32', s(21), s(21), s(20)))
    E(salu('s_mul_hi_u32', s(22), s(21), (2 ** 32 + 55) // 56))
    E(salu('s_mul_i32', s(23), s(22), 56)); E(salu('s_sub_u32', s(23), s(21), s(23)))
    E(raw("s_waitcnt lgkmcnt(0)", 'wait_raw'))
    E(salu('s_mov_b32', s(12), s(8))); E(salu('s_mov_b32', s(13), s(9))); E(salu('s_mov_b32', s(14), 2 * 256 * 57344)); E(salu('s_mov_b32', s(15), '0x00020000'))
    E(salu('s_mul_i32', s(24), s(22), 8 * 57344)); E(salu('s_lshl_b32', s(25), s(23), 10)); E(salu('s_add_u32', s(24), s(24), s(25)))
    for which in range(2):
        for k in range(8):
            E(salu('s_add_u32', s(26), s(24), which * 256 * 57344 + k * 57344))
            E(vload('buffer_load_dwordx4', v(16 + (which * 8 + k) * 4, 4), v(3), s(12, 4), s(26), 0, tag='p'))
    E(salu('s_and_b32', s(27), s(23), 1))
    E(salu('s_lshr_b32', s(28), s(23), 1))
    E(salu('s_cmp_ge_u32', s(28), 14)); E(salu('s_cselect_b32', s(29), 1, 0))
    E(salu('s_mul_i32', s(30), s(29), 14)); E(salu('s_sub_u32', s(28), s(28), s(30)))
    E(salu('s_lshl_b32', s(30), s(22), 6)); E(salu('s_lshl_b32', s(31), s(29), 5)); E(salu('s_add_u32', s(30), s(30), s(31)))
    E(salu('s_lshl_b32', s(31), s(27), 4)); E(salu('s_add_u32', s(30), s(30), s(31)))
    E(salu('s_mul_i32', s(30), s(30), 896)); E(salu('s_lshl_b32', s(31), s(28), 6)); E(salu('s_add_u32', s(30), s(30), s(31)))
    E(valu('v_and_b32', v(4), 15, v(1))); E(valu('v_lshrrev_b32', v(5), 4, v(1)))
    E(salu('s_mov_b32', s(32), 896)); E(valu('v_lshlrev_b32', v(5), 4, v(5))); E(valu('v_mad_u32_u24', v(4), v(4), s(32), v(5)))
    E(salu('s_mov_b32', s(16), s(4))); E(salu('s_mov_b32', s(17), s(5))); E(salu('s_mov_b32', s(18), 2048 * 896)); E(salu('s_mov_b32', s(19), '0x00020000'))
    E(vload('buffer_load_dwordx4', v(8, 4), v(4), s(16, 4), s(30), 0, tag='x'))
    E(salu('s_mov_b32', s(33), '0xffff0000'))
    for which in range(2):
        acc = 80 + 8 * which
        for k in range(8):
            src = 16 + (which * 8 + k) * 4
            for d in range(4):
                E(valu('v_lshlrev_b32', v(96), 16, v(src + d))); E(valu('v_and_b32', v(97), s(33), v(src + d)))
                if k == 0:
                    E(valu('v_mov_b32', v(acc + 2 * d), v(96))); E(valu('v_mov_b32', v(acc + 2 * d + 1), v(97)))
                else:
                    E(valu('v_add_f32', v(acc + 2 * d), v(acc + 2 * d), v(96))); E(valu('v_add_f32', v(acc + 2 * d + 1), v(acc + 2 * d + 1), v(97)))
    for k in range(8): E(valu('v_mul_f32', v(100 + k), lit(-math.log2(math.e)), v(88 + k)))
    for k in range(8): E(valu('v_exp_f32', v(100 + k), v(100 + k)))
    for k in range(8): E(valu('v_add_f32', v(100 + k), '1.0', v(100 + k)))
    for k in range(8): E(valu('v_rcp_f32', v(100 + k), v(100 + k)))
    for k in range(8): E(valu('v_mul_f32', v(88 + k), v(88 + k), v(100 + k)))
    for k in range(8): E(valu('v_mul_f32', v(80 + k), v(80 + k), v(88 + k)))
    for k in range(4): E(valu('v_cvt_pk_bf16_f32', v(108 + k), v(80 + 2 * k), v(81 + 2 * k)))
    E(valu('v_permlane32_swap_b32', v(108), v(110))); E(valu('v_permlane32_swap_b32', v(109), v(111)))
    E(valu('v_permlane16_swap_b32', v(108), v(110))); E(valu('v_permlane16_swap_b32', v(109), v(111)))
    for d in range(4):
        E(valu('v_lshlrev_b32', v(80 + 2 * d), 16, v(108 + d))); E(valu('v_and_b32', v(81 + 2 * d), s(33), v(108 + d)))
        E(valu('v_lshlrev_b32', v(88 + 2 * d), 16, v(8 + d))); E(valu('v_and_b32', v(89 + 2 * d), s(33), v(8 + d)))
    for k in range(8): E(valu('v_add_f32', v(80 + k), v(80 + k), v(88 + k)))
    for k in range(4): E(valu('v_cvt_pk_bf16_f32', v(108 + k), v(80 + 2 * k), v(81 + 2 * k)))
    E(salu('s_mov_b32', s(16), s(6))); E(salu('s_mov_b32', s(17), s(7)))
    E(vstore('buffer_store_dwordx4', v(108, 4), v(4), s(16, 4), s(30), 0))
    E(raw("s_waitcnt vmcnt(0)", 'wait_raw'))
    if CFG.stamps:
        E(raw("s_memrealtime s[36:37]", 'salu')); E(raw("s_waitcnt lgkmcnt(0)", 'wait_raw'))
        E(salu('s_lshl_b32', s(21), s(21), 3)); E(salu('s_add_u32', s(21), s(21), 31 << 20)); E(salu('s_mov_b32', s(14), 40 << 20))
        E(valu('v_mov_b32', v(8), s(34))); E(valu('v_mov_b32', v(9), s(36))); E(valu('v_mov_b32', v(10), 0))
        E(raw("s_mov_b64 exec, 1", 'salu'))
        E(vstore('buffer_store_dwordx2', v(8, 2), v(10), s(12, 4), s(21), 0)); E(raw("s_waitcnt vmcnt(0)", 'wait_raw'))
        if CFG.dbgstamps is not False:
            E(salu('s_cmp_eq_u32', s(2), 447)); E(raw("s_cbranch_scc0 L_red_end", 'branch'))
            E(salu('s_cmp_eq_u32', s(20), 3)); E(raw("s_cbranch_scc0 L_red_end", 'branch'))
            E(raw("s_load_dwordx2 s[4:5], s[0:1], 80", 'salu')); E(raw("s_waitcnt lgkmcnt(0)", 'wait_raw'))
            E(salu('s_mov_b32', s(6), 256)); E(salu('s_mov_b32', s(7), '0x00020000'))
            E(salu('s_mov_b32', s(21), (30 << 20) + int(CFG.dbgstamps) * 64))
            for k in range(3): E(vload('buffer_load_dwordx4', v(16 + 4 * k, 4), v(10), s(12, 4), s(21), 16 * k, 'sc1'))
            E(raw("s_waitcnt vmcnt(0)", 'wait_raw'))
            E(valu('v_mov_b32', v(26), v(8))); E(valu('v_mov_b32', v(27), v(9)))
            for k in range(17, 28): E(valu('v_sub_u32', v(k), v(k), v(16)))
            for k in range(3): E(vstore('buffer_store_dwordx4', v(16 + 4 * k, 4), v(10), s(4, 4), '0', 16 * k))
            E(raw("s_waitcnt vmcnt(0)", 'wait_raw'))
    E(label("L_red_end")); E(raw("s_endpgm", 'branch'))
    Pf, _ = finalize(P)
    return Pf

HEADER = """; Kernarg layout (96 bytes, ptrs only, base s[0:1]):
; Generated by gen/gen.py (hand-written generator).  Two launches:
;  1. fused_main_kernel: workgroup = (64 rows, kv head): LayerNorm, GEGLU FFN slice, q projection, attention, output projection
;     -> bf16 partial sums of s and g in d_ws
; @launch kernel=fused_main_kernel grid=(256,1,1) block=(256,1,1) lds=163840
; @launch kernel=fused_reduce_kernel grid=(448,1,1) block=(256,1,1) lds=0
.amdgcn_target "amdgcn-amd-amdhsa--gfx950"
.text
"""
HEADER_FUSED = """; Kernarg layout (96 bytes, ptrs only, base s[0:1]):
; Generated by gen/gen.py (hand-written generator).
; workgroup = (64 rows, kv head): LayerNorm, GEGLU FFN slice, q projection, attention, output projection -> bf16 partial sums
; of s and g in d_ws (write-through), hand-off flags in d_debug, then every workgroup reduces 1/8 of its row block:
; @launch grid=(256,1,1) block=(256,1,1) lds=163840
.amdgcn_target "amdgcn-amd-amdhsa--gfx950"
.text
"""
def kd(name, nv, acc, ns):
    return f""".section .rodata,"a"
.p2align 6
.amdhsa_kernel {name}
  .amdhsa_next_free_vgpr {nv}
  .amdhsa_next_free_sgpr {ns}
  .amdhsa_accum_offset {acc}
  .amdhsa_group_segment_fixed_size 0
  .amdhsa_kernarg_size 96
  .amdhsa_user_sgpr_count 2
  .amdhsa_user_sgpr_kernarg_segment_ptr 1
  .amdhsa_system_sgpr_workgroup_id_x 1
  .amdhsa_float_denorm_mode_32 3
.end_amdhsa_kernel
"""
def generate():
    Pm, stats, M, NM = build()
    if CFG.fused:
        name = KNAME + "_kernel" if CFG.single_name else MAIN
        t = HEADER_FUSED if CFG.single_name else HEADER_FUSED.replace("; @launch grid=", f"; @launch kernel={MAIN} grid=")
        t += f".globl {name}\n.p2align 8\n.type {name},@function\n{name}:\n" + text(Pm) + "\nL_all_code_end:\n"
        t += kd(name, 512, 256, 102)
        return t, Pm, stats, M, NM
    Pr = reduce_kernel()
    t = HEADER
    t += f".globl {MAIN}\n.p2align 8\n.type {MAIN},@function\n{MAIN}:\n" + text(Pm) + "\n"
    t += f".globl {RED}\n.p2align 8\n.type {RED},@function\n{RED}:\n" + text(Pr) + "\nL_all_code_end:\n"
    t += kd(MAIN, 512, 256, 102) + kd(RED, 112, 112, 40)
    return t, Pm, stats, M, NM

if __name__ == "__main__":
    for arg in sys.argv[2:]:
        k, val = arg.split("=")
        setattr(CFG, k, {"True": True, "False": False}.get(val, int(val) if val.lstrip('-').isdigit() else val))
    t, Pm, stats, M, NM = generate()
    out = sys.argv[1] if len(sys.argv) > 1 else f"cdna_kernels/{KNAME}.s"
    open(out, "w").write(t)
    from collections import Counter
    cn = Counter(i.kind for i in Pm)
    print("instrs:", len(Pm), dict(cn)); print(stats, "NM", NM)
```

```python
import gen, sys
from collections import Counter
from asmlib import *
for arg in sys.argv[1:]:
    k, val = arg.split("=")
    setattr(gen.CFG, k, {"True": True, "False": False}.get(val, int(val) if val.lstrip('-').isdigit() else val))
t, Pm, stats, M, NM = gen.generate()
marks = sorted([(m, k) for k, m in M.items()])
sel = ["F1_0","F1_3","Q_0","F2_0","S_0","S_2","PV_14","O_0","O_3","END"]
bounds = [(M[k], k) for k in sel]
mi = 0; cur = None; C = {}
bi = 0
for x in Pm:
    if x.kind == 'mfma':
        while bi < len(bounds) and mi >= bounds[bi][0]:
            cur = bounds[bi][1]; bi += 1
        mi += 1
    if cur is None: key = "pro"
    else: key = cur
    if x.text.startswith("s_endpgm"): break
    if x.kind == 'label': continue
    c = C.setdefault(key, Counter())
    k = x.kind
    units = 1
    if k == 'trans': units = 2
    if k == 'nop': units = x.tag + 1
    c[k] += 1
    if k != 'mfma': c['units'] += units
for k, c in C.items():
    nm = c['mfma']
    print(f"{k:6s} mfma={nm:4d} slots={nm/2:5.0f} units/slot={c['units']/max(nm/2,1):.2f} pred_cyc/slot={16+4*c['units']/max(nm/2,1):.1f} ", {a: b for a, b in c.items() if a not in ('mfma','units')})
```
